```python
import torch

def _softmax(x, axis=-1):
    return torch.softmax(x, dim=axis)

def _gelu(x):
    return torch.nn.functional.gelu(x, approximate='tanh')

def _silu(x):
    return torch.nn.functional.silu(x)

def _sigmoid(x):
    return torch.sigmoid(x)

def _layernorm(x, axis=-1, eps=1e-05):
    m = x.mean(dim=axis, keepdim=True)
    v = x.var(dim=axis, keepdim=True, unbiased=False)
    return (x - m) / torch.sqrt(v + eps)

def _scatter_add(tgt, idx, src, axis=0):
    return tgt.clone().index_add_(axis, idx, src)

def _segment_sum(src, seg, n):
    out = torch.zeros((n,) + src.shape[1:], dtype=src.dtype)
    return out.index_add_(0, seg, src)

def _pad(x, pw):
    flat = tuple((v for pair in reversed(pw) for v in pair))
    return torch.nn.functional.pad(x, flat)
kernel_name = 'adaLN_cond__mha_block__mixer_gmlp__prompt'

def setup_inputs():

    _w = lambda a: (lambda t: t.to(torch.bfloat16) if t.is_floating_point() else t)(torch.as_tensor(a))

    def _A_setup():
        B, S, D, H = (1, 2048, 1024, 32)
        return {'x': _w((lambda *s: torch.randn(*s, dtype=torch.bfloat16) * 0.05)(B, S, D)), 'wqkv': _w((lambda *s: torch.randn(*s, dtype=torch.bfloat16) * 0.05)(D, 3 * D)), 'wo': _w((lambda *s: torch.randn(*s, dtype=torch.bfloat16) * 0.05)(D, D))}
    _A_in = _A_setup()

    def _B_setup():
        B, S, D, F = (1, 2048, 1024, 3584)
        Fh = F // 2
        return {'x': _w((lambda *s: torch.randn(*s, dtype=torch.bfloat16) * 0.05)(B, S, D)), 'w_in': _w((lambda *s: torch.randn(*s, dtype=torch.bfloat16) * 0.8)(D, 2 * Fh)), 'w_sp': _w(0.01 * (lambda *s: torch.randn(*s, dtype=torch.bfloat16) * 0.8)(S, S)), 'b_sp': _w(1.0 + 0.01 * (lambda *s: torch.randn(*s, dtype=torch.bfloat16) * 0.05)(S)), 'w_out': _w((lambda *s: torch.randn(*s, dtype=torch.bfloat16) * 0.05)(Fh, D))}
    _B_in = _B_setup()
    return {'A_x': _A_in['x'], 'A_wqkv': _A_in['wqkv'], 'A_wo': _A_in['wo'], 'B_x': _B_in['x'], 'B_w_in': _B_in['w_in'], 'B_w_sp': _B_in['w_sp'], 'B_b_sp': _B_in['b_sp'], 'B_w_out': _B_in['w_out'], 'c': _w((lambda *s: torch.randn(*s, dtype=torch.bfloat16) * 0.2)(1, 1024) * 8.0), 'w_mod': _w((lambda *s: torch.randn(*s, dtype=torch.bfloat16) * 0.2)(1024, 6 * 1024) * 1024 ** (-0.5) * 8.0)}

def reference(A_x, A_wqkv, A_wo, B_x, B_w_in, B_w_sp, B_b_sp, B_w_out, c, w_mod):

    def _A_ref(x, wqkv, wo):
        B, S, D = x.shape
        H = 32
        Dh = D // H
        qkv = (lambda x, *d: x.permute(*d))((x @ wqkv).reshape(B, S, 3, H, Dh), 2, 0, 3, 1, 4)
        q, k, v = (qkv[0], qkv[1], qkv[2])
        scores = torch.einsum('bhqd,bhkd->bhqk', q, k) * Dh ** (-0.5)
        p = _softmax(scores, axis=-1)
        o = torch.einsum('bhqk,bhkd->bhqd', p, v)
        return (lambda x, *d: x.permute(*d))(o, 0, 2, 1, 3).reshape(B, S, D) @ wo

    def _B_ref(x, w_in, w_sp, b_sp, w_out):
        B, S, D = x.shape
        F = w_in.shape[-1]
        Fh = F // 2
        z = _gelu(torch.einsum('bsd,df->bsf', x, w_in))
        z1 = z[..., :Fh].clone()
        z2 = _layernorm(z[..., Fh:], axis=-1)
        g = torch.einsum('ts,bsf->btf', w_sp, z2) + b_sp[None, :, None]
        return torch.einsum('bsf,fd->bsd', z1 * g, w_out)
    x = A_x
    mod = (_silu(c) @ w_mod).reshape(c.shape[0], 6, 1, -1)
    sa, ca, ga, sb, cb, gb = (mod[:, 0].clone(), mod[:, 1].clone(), mod[:, 2].clone(), mod[:, 3].clone(), mod[:, 4].clone(), mod[:, 5].clone())
    h = _layernorm(x, axis=-1) * (1 + ca) + sa
    x = x + ga * _A_ref(h, A_wqkv, A_wo)
    h = _layernorm(x, axis=-1) * (1 + cb) + sb
    x = x + gb * _B_ref(h, B_w_in, B_w_sp, B_b_sp, B_w_out)
    return x
```

```python
class Asm:
    def __init__(self):
        self.lines = []
        self.uid = 0
    def __call__(self, s=""):
        for l in s.split("\n"):
            self.lines.append(l)
    def e(self, s):
        self.lines.append("    " + s)
    def label(self, name):
        self.lines.append(name + ":")
    def newlabel(self, base):
        self.uid += 1
        return f"{base}_{self.uid}"
    def text(self):
        return "\n".join(self.lines) + "\n"

def vr(a, n=1):
    return f"v{a}" if n == 1 else f"v[{a}:{a+n-1}]"
def sr(a, n=1):
    return f"s{a}" if n == 1 else f"s[{a}:{a+n-1}]"

def kernel_header(a, name):
    a(f".globl {name}\n.p2align 8\n.type {name},@function\n{name}:")

def kernel_desc(name, vgpr, sgpr=102, kernarg=104):
    acc = (vgpr + 3) // 4 * 4
    return f""".p2align 6
.amdhsa_kernel {name}
  .amdhsa_next_free_vgpr {vgpr}
  .amdhsa_next_free_sgpr {sgpr}
  .amdhsa_accum_offset {acc}
  .amdhsa_group_segment_fixed_size 0
  .amdhsa_kernarg_size {kernarg}
  .amdhsa_user_sgpr_count 2
  .amdhsa_user_sgpr_kernarg_segment_ptr 1
  .amdhsa_system_sgpr_workgroup_id_x 1
.end_amdhsa_kernel
"""

def srd(a, d, base, nbytes, off_s=None):
    if off_s is None or off_s == 0:
        a.e(f"s_mov_b32 s{d}, s{base}")
        a.e(f"s_mov_b32 s{d+1}, s{base+1}")
    else:
        a.e(f"s_add_u32 s{d}, s{base}, {off_s}")
        a.e(f"s_addc_u32 s{d+1}, s{base+1}, 0")
    a.e(f"s_mov_b32 s{d+2}, {nbytes}")
    a.e(f"s_mov_b32 s{d+3}, 0x20000")

def interleave(a, mains, fills, start=0, per=1, every=1):
    fi = 0
    for i, m in enumerate(mains):
        a.e(m)
        if i >= start and (i - start) % every == 0:
            for _ in range(per):
                if fi < len(fills):
                    a.e(fills[fi]); fi += 1
    while fi < len(fills):
        a.e(fills[fi]); fi += 1
```

```python
from asmlib import *
A_X, A_WQKV, A_WO, B_X, B_WIN, B_WSP, B_BSP, B_WOUT, IN_C, W_MOD, D_OUT, D_DBG, D_WS = [8*i for i in range(13)]
MB = 1 << 20
WS_MOD   = 0
WS_ST1   = 64*1024
WS_ST2   = WS_ST1 + 256*1024
WS_STAMP = 1*MB
WS_H     = 2*MB
WS_Q     = 6*MB
WS_KV    = 10*MB
WS_O     = 18*MB
WS_X1    = 22*MB
WS_H2    = 26*MB
WS_Z1    = 30*MB
WS_Z2    = 38*MB
WS_U     = 46*MB
SENT = 0xffffffff
QSCALE = 0.17677669529663687 * 1.4426950408889634
import struct
def f2u(x): return struct.unpack('<I', struct.pack('<f', x))[0]
def hexf(x): return hex(f2u(x))

STAMPS = False
def stamp(a, slot):
    if STAMPS: a.e(f"s_memtime s[{80+2*slot}:{81+2*slot}]")
def stamp_start(a):
    if STAMPS:
        stamp(a, 0); a.e("s_memrealtime s[92:93]"); a.e("s_getreg_b32 s94, hwreg(HW_REG_XCC_ID)")
        for i in (1,2,3): a.e(f"s_mov_b32 s{80+2*i}, 0")
def stamp_end(a, kidx, wsreg, wave_s, nw=8):
    if not STAMPS: return
    a.e("s_waitcnt vmcnt(0)")
    stamp(a, 4); a.e("s_memrealtime s[90:91]"); a.e("s_waitcnt lgkmcnt(0)")
    a.e("s_mov_b64 exec, -1")
    srd(a, 76, wsreg, 65536, WS_STAMP + kidx*65536)
    a.e("s_lshl_b32 s75, s2, 3"); a.e(f"s_add_u32 s75, s75, s{wave_s}"); a.e("s_lshl_b32 s75, s75, 5")
    for i in range(8): a.e(f"v_mov_b32 v{2+i}, s{80+2*i}")
    a.e("v_mov_b32 v10, s75")
    a.e("v_and_b32 v11, 63, v0"); a.e("v_cmp_eq_u32 vcc, 0, v11"); a.e("s_and_saveexec_b64 s[74:75], vcc")
    a.e("buffer_store_dwordx4 v[2:5], v10, s[76:79], 0 offen")
    a.e("buffer_store_dwordx4 v[6:9], v10, s[76:79], 0 offen offset:16")

def wave_id(a, sdst, vtmp=1):
    a.e(f"v_lshrrev_b32 v{vtmp}, 6, v0"); a.e("s_nop 0"); a.e(f"v_readfirstlane_b32 s{sdst}, v{vtmp}")

def xrow_sum(a, regs, tmps):
    for op in ("v_permlane16_swap_b32", "v_permlane32_swap_b32"):
        for r, t in zip(regs, tmps): a.e(f"v_mov_b32 v{t}, v{r}")
        if len(regs) < 3: a.e("s_nop 1")
        for r, t in zip(regs, tmps): a.e(f"{op} v{r}, v{t}")
        a.e("s_nop 0")
        for r, t in zip(regs, tmps): a.e(f"v_add_f32 v{r}, v{r}, v{t}")

def row16_sum(a, regs):
    for m in ("quad_perm:[1,0,3,2]", "quad_perm:[2,3,0,1]", "row_half_mirror", "row_mirror"):
        a.e("s_nop 1")
        for r in regs: a.e(f"v_add_f32_dpp v{r}, v{r}, v{r} {m} row_mask:0xf bank_mask:0xf")

def rnd_bf16(a, dst, src):
    a.e(f"v_cvt_pk_bf16_f32 v{dst}, v{src}, v{src}")
    a.e(f"v_and_b32 v{dst}, 0xffff0000, v{dst}")

def unpack(a, lo, hi, src):
    a.e(f"v_lshlrev_b32 v{lo}, 16, v{src}")
    a.e(f"v_and_b32 v{hi}, 0xffff0000, v{src}")

def prefetch(a, srd_s, nbytes, vaddr, vtmp, slice_reg, nslices, step=128, dst=None):
    per = nbytes // nslices
    n = (per + 64*step - 1) // (64*step)
    a.e(f"s_mul_i32 s23, s{slice_reg}, {per}")
    for i in range(n):
        a.e(f"buffer_load_dword v{vtmp}, v{vaddr}, s[{srd_s}:{srd_s+3}], s23 offen")
        if i + 1 < n: a.e(f"s_add_u32 s23, s23, {64*step}")
```

```python
from asmlib import *

class GemmCfg:
    def __init__(s, name, TM, NB, K, NS, mode, tmode, fmode, ldt=None, ldf=None,
                 groups=None, swap=None, xm=None, xn=None, MT=None, NT=None):
        s.name = name; s.TM = TM; s.NB = NB; s.K = K; s.NS = NS
        s.mode = mode
        s.tmode = tmode
        s.fmode = fmode
        s.ldt = ldt; s.ldf = ldf
        s.groups = groups
        s.swap = swap or [False]*NB
        s.xm = xm; s.xn = xn
        s.MT = MT; s.NT = NT
        s.nT = TM // 8
        if fmode == 'tr':
            full, half = groups
            s.nF = full*8 + (4 if half else 0)
        else:
            s.nF = NB*2*(1 if mode == 'ksplitT' else 2)
        s.stage = (s.nT + s.nF)*1024
        s.nk = K // 64
        s.lds = s.stage*NS
        s.ksplit = mode != '2x2'

V_ACC = 8

def decode_tile(a, c):
    import math
    rx = c.MT // c.xm
    lrx = int(math.log2(rx)); lxm = int(math.log2(c.xm))
    a.e("s_and_b32 s20, s2, 7")
    a.e("s_lshr_b32 s21, s2, 3")
    a.e(f"s_and_b32 s4, s20, {rx-1}")
    a.e(f"s_lshl_b32 s4, s4, {lxm}")
    a.e(f"s_and_b32 s22, s21, {c.xm-1}")
    a.e("s_add_u32 s4, s4, s22")
    a.e(f"s_lshr_b32 s5, s20, {lrx}")
    a.e(f"s_mul_i32 s5, s5, {c.xn}")
    a.e(f"s_lshr_b32 s22, s21, {lxm}")
    a.e("s_add_u32 s5, s5, s22")

def loader(a, c, fcol_bytes, pre=None, tail=None):
    n = c.name
    vL = 1
    a.e(f"v_and_b32 v{vL}, 63, v0")
    nTi = c.nT // 4
    vT0 = 8
    vF0 = vT0 + nTi
    if c.tmode == 'frag':
        kb = c.K // 32
        a.e(f"s_mul_i32 s20, s4, {c.TM//16}")
        a.e("s_lshr_b32 s21, s3, 1")
        a.e("s_add_u32 s20, s20, s21")
        a.e(f"s_mul_i32 s20, s20, {kb*1024}")
        a.e("s_and_b32 s21, s3, 1")
        a.e("s_lshl_b32 s21, s21, 10")
        a.e("s_add_u32 s20, s20, s21")
        a.e(f"v_lshlrev_b32 v2, 4, v{vL}")
        a.e(f"v_add_u32 v{vT0}, s20, v2")
        for t in range(1, nTi):
            a.e(f"v_add_u32 v{vT0+t}, {t*2*kb*1024}, v{vT0}")
        dT = 2048
    else:
        a.e(f"v_lshrrev_b32 v2, 4, v{vL}")
        a.e("s_and_b32 s21, s3, 1")
        a.e("s_lshl_b32 s21, s21, 2")
        a.e("v_or_b32 v2, s21, v2")
        a.e(f"v_and_b32 v3, 7, v{vL}")
        a.e("v_xor_b32 v2, v2, v3")
        a.e("v_lshlrev_b32 v2, 4, v2")
        a.e(f"v_lshrrev_b32 v3, 3, v{vL}")
        a.e(f"s_mul_i32 s20, s4, {c.TM}")
        a.e("s_lshl_b32 s21, s3, 3")
        a.e("s_add_u32 s20, s20, s21")
        a.e("v_add_u32 v3, s20, v3")
        a.e(f"s_mov_b32 s21, {c.ldt}")
        a.e("v_mul_lo_u32 v3, v3, s21")
        a.e(f"v_add_u32 v{vT0}, v2, v3")
        for t in range(1, nTi):
            a.e(f"v_add_u32 v{vT0+t}, {t*32*c.ldt}, v{vT0}")
        dT = 128
    if c.fmode == 'tr':
        full, half = c.groups
        a.e(f"v_bfe_u32 v2, v{vL}, 4, 1")
        a.e("s_and_b32 s21, s3, 1")
        a.e("s_lshl_b32 s21, s21, 1")
        a.e("v_or_b32 v2, s21, v2")
        a.e(f"v_bfe_u32 v3, v{vL}, 1, 2")
        a.e("v_xor_b32 v2, v2, v3")
        a.e("v_lshlrev_b32 v2, 5, v2")
        a.e(f"v_and_b32 v3, 1, v{vL}")
        a.e("v_lshl_add_u32 v2, v3, 4, v2")
        a.e(f"v_lshrrev_b32 v3, 3, v{vL}")
        a.e("s_lshl_b32 s21, s3, 3")
        a.e("v_add_u32 v3, s21, v3")
        a.e(f"s_mov_b32 s21, {c.ldf}")
        a.e("v_mul_lo_u32 v3, v3, s21")
        a.e("v_add_u32 v2, v2, v3")
        for G in range(full):
            fcol_bytes(a, G, 20)
            a.e(f"v_add_u32 v{vF0+2*G}, s20, v2")
            a.e(f"v_add_u32 v{vF0+2*G+1}, {32*c.ldf}, v{vF0+2*G}")
        nFi = [2*full + (1 if half else 0)]*4
        if half:
            a.e(f"v_bfe_u32 v2, v{vL}, 1, 1")
            a.e(f"v_lshrrev_b32 v3, 5, v{vL}")
            a.e("v_xor_b32 v2, v2, v3")
            a.e("v_lshlrev_b32 v2, 5, v2")
            a.e(f"v_and_b32 v3, 1, v{vL}")
            a.e("v_lshl_add_u32 v2, v3, 4, v2")
            a.e(f"v_lshrrev_b32 v3, 2, v{vL}")
            a.e("s_lshl_b32 s21, s3, 4")
            a.e("v_add_u32 v3, s21, v3")
            a.e(f"s_mov_b32 s21, {c.ldf}")
            a.e("v_mul_lo_u32 v3, v3, s21")
            a.e("v_add_u32 v2, v2, v3")
            fcol_bytes(a, 'H', 20)
            a.e(f"v_add_u32 v{vF0+2*full}, s20, v2")
        dF = 64*c.ldf
    else:
        kb = c.K // 32
        fcol_bytes(a, 0, 20)
        a.e("s_lshr_b32 s21, s3, 1")
        a.e("s_add_u32 s20, s20, s21")
        a.e(f"s_mul_i32 s20, s20, {kb*1024}")
        a.e("s_and_b32 s21, s3, 1")
        a.e("s_lshl_b32 s21, s21, 10")
        a.e("s_add_u32 s20, s20, s21")
        a.e(f"v_lshlrev_b32 v2, 4, v{vL}")
        a.e(f"v_add_u32 v{vF0}, s20, v2")
        mx = (c.nF + 3)//4
        for t in range(1, mx):
            a.e(f"v_add_u32 v{vF0+t}, {t*2*kb*1024}, v{vF0}")
        nFi = [len(range(w, c.nF, 4)) for w in range(4)]
        dF = 2048
    a.e("s_mov_b32 s16, 0")
    a.e("s_mov_b32 s17, 0")
    a.e("s_lshl_b32 s18, s3, 10")
    a.e(f"s_add_u32 s23, s18, {c.lds}")
    if pre: pre(a)

    def issue(nf):
        for t in range(nTi):
            a.e(f"s_add_u32 m0, s18, {t*4096}")
            a.e("s_nop 0")
            a.e(f"buffer_load_dwordx4 v{vT0+t}, s[8:11], s16 offen{getattr(c,'ldflag','')} lds")
        for t in range(nf):
            a.e(f"s_add_u32 m0, s18, {(c.nT + 4*t)*1024}")
            a.e("s_nop 0")
            a.e(f"buffer_load_dwordx4 v{vF0+t}, s[12:15], s17 offen{getattr(c,'ldflag','')} lds")
        a.e(f"s_add_u32 s16, s16, {dT}")
        a.e(f"s_add_u32 s17, s17, {dF}")
        a.e(f"s_add_u32 s18, s18, {c.stage}")
        a.e("s_cmp_ge_u32 s18, s23")
        a.e(f"s_cselect_b32 s20, {c.lds}, 0")
        a.e("s_sub_u32 s18, s18, s20")

    variants = sorted(set(nFi), reverse=True)
    for vi, nf in enumerate(variants):
        if len(variants) > 1 and vi == 0:
            cnt = nFi.count(nf)
            a.e(f"s_cmp_ge_u32 s3, {cnt}")
            a.e(f"s_cbranch_scc1 {n}_ld_v1")
        if vi == 1:
            a.label(f"{n}_ld_v1")
        per = nTi + nf
        for st in range(c.NS):
            issue(nf)
        a.e(f"s_waitcnt vmcnt({per*(c.NS-1)})")
        a.e("s_barrier")
        nsteady = c.nk - c.NS
        a.e(f"s_mov_b32 s19, {nsteady}")
        a.label(f"{n}_ld_loop{vi}")
        a.e(f"s_waitcnt vmcnt({per*(c.NS-2)})")
        a.e("s_barrier")
        issue(nf)
        a.e("s_sub_u32 s19, s19, 1")
        a.e("s_cmp_lg_u32 s19, 0")
        a.e(f"s_cbranch_scc1 {n}_ld_loop{vi}")
        for i in range(c.nk - c.NS, c.nk):
            rem = c.nk - 1 - (i + 1)
            if tail is None:
                if rem >= 0:
                    a.e(f"s_waitcnt vmcnt({per*rem})")
                a.e("s_barrier")
            else:
                tail(a, i - (c.nk - c.NS), rem, per)
        a.e("s_endpgm")

class Regs: pass

def compute_setup(a, c, fblock):
    r = Regs()
    NB = c.NB
    r.acc = V_ACC
    nacc = 4*NB*4
    r.T = [r.acc + nacc, r.acc + nacc + 16 + NB*4]
    r.F = [r.T[0] + 16, r.T[1] + 16]
    nxt = r.T[1] + 16 + NB*4
    r.lane = 1
    a.e("v_and_b32 v1, 63, v0")
    if c.mode == '2x2':
        a.e("s_and_b32 s6, s3, 1")
        a.e("s_lshr_b32 s7, s3, 1")
    elif c.mode == 'ksplitT':
        a.e("s_and_b32 s6, s3, 1")
        a.e("s_lshr_b32 s7, s3, 1")
    else:
        a.e("s_and_b32 s6, s3, 1")
        a.e("s_lshr_b32 s7, s3, 1")
    r.Tb = nxt; r.Tc = nxt + 1; nxt += 2
    if c.tmode == 'frag':
        a.e(f"v_lshlrev_b32 v{r.Tb}, 4, v1")
        if c.mode != 'ksplitF':
            a.e("s_lshl_b32 s20, s6, 13")
            a.e(f"v_add_u32 v{r.Tb}, s20, v{r.Tb}")
        if c.ksplit:
            a.e("s_lshl_b32 s20, s7, 10")
            a.e(f"v_add_u32 v{r.Tb}, s20, v{r.Tb}")
        r.t_off = lambda i, sub: i*2048 + sub*1024
    else:
        assert c.ksplit
        a.e("v_and_b32 v2, 15, v1")
        a.e("v_lshrrev_b32 v3, 4, v1")
        a.e("s_lshl_b32 s20, s7, 2")
        a.e("v_or_b32 v3, s20, v3")
        a.e("v_lshrrev_b32 v4, 1, v2")
        a.e("v_xor_b32 v3, v3, v4")
        a.e("v_lshlrev_b32 v3, 4, v3")
        a.e(f"v_lshl_add_u32 v{r.Tb}, v2, 7, v3")
        if c.mode == 'ksplitT':
            a.e("s_lshl_b32 s20, s6, 13")
            a.e(f"v_add_u32 v{r.Tb}, s20, v{r.Tb}")
        r.t_off = lambda i, sub: i*2048
    fbase = c.nT*1024
    if c.fmode == 'tr':
        r.Fb = nxt; r.Fc = nxt + NB; nxt += 2*NB
        a.e("v_lshrrev_b32 v2, 4, v1")
        a.e("v_bfe_u32 v3, v1, 2, 2")
        a.e("v_lshl_add_u32 v4, v2, 3, v3")
        a.e("v_and_b32 v5, 3, v1")
        a.e("v_lshlrev_b32 v5, 3, v5")
        a.e("v_and_b32 v2, 1, v2")
        a.e("v_lshrrev_b32 v3, 1, v3")
        a.e("v_lshl_or_b32 v3, v2, 1, v3")
        r.fhalf = []
        for j in range(NB):
            half = fblock(a, j)
            r.fhalf.append(half)
            a.e(f"v_xor_b32 v6, s21, v{2 if half else 3}")
            a.e("v_lshl_add_u32 v6, v6, 5, v5")
            a.e(f"v_lshl_add_u32 v6, v4, {6 if half else 7}, v6")
            a.e(f"s_add_u32 s20, s20, {fbase}")
            if c.ksplit:
                a.e(f"s_lshl_b32 s22, s7, {11 if half else 12}")
                a.e("s_add_u32 s20, s20, s22")
            a.e(f"v_add_u32 v{r.Fb+j}, s20, v6")
        r.nFa = NB
    else:
        r.Fb = nxt; r.Fc = nxt + 1; nxt += 2
        if c.fmode == 'trp':
            a.e("v_bfe_u32 v2, v1, 2, 3")
            a.e("v_lshrrev_b32 v3, 5, v1")
            a.e("v_lshl_add_u32 v2, v3, 4, v2")
            a.e("v_and_b32 v3, 3, v1")
            a.e("v_lshlrev_b32 v3, 3, v3")
            a.e(f"v_lshl_add_u32 v{r.Fb}, v2, 5, v3")
        else:
            a.e(f"v_lshlrev_b32 v{r.Fb}, 4, v1")
        a.e(f"s_mov_b32 s20, {fbase}")
        if c.ksplit:
            a.e("s_lshl_b32 s22, s7, 10")
            a.e("s_add_u32 s20, s20, s22")
        if c.mode != 'ksplitT':
            a.e(f"s_mul_i32 s22, s{7 if c.mode == '2x2' else 6}, {NB*2048}")
            a.e("s_add_u32 s20, s20, s22")
        a.e(f"v_add_u32 v{r.Fb}, s20, v{r.Fb}")
        r.nFa = 1
    r.free = nxt
    for i in range(nacc):
        a.e(f"v_mov_b32 v{r.acc+i}, 0")
    return r

def reads(c, r, buf, sub):
    out = []
    tl = []
    for i in range(4):
        tl.append(f"ds_read_b128 {vr(r.T[buf]+4*i,4)}, v{r.Tc} offset:{r.t_off(i,sub)}")
    fl = []
    for j in range(c.NB):
        if c.fmode == 'tr':
            h = r.fhalf[j]
            for q in range(2):
                off = sub*(2048 if h else 4096) + q*(256 if h else 512)
                fl.append(f"ds_read_b64_tr_b16 {vr(r.F[buf]+4*j+2*q,2)}, v{r.Fc+j} offset:{off}")
        elif c.fmode == 'trp':
            for q in range(2):
                fl.append(f"ds_read_b64_tr_b16 {vr(r.F[buf]+4*j+2*q,2)}, v{r.Fc} offset:{j*2048+sub*1024+q*256}")
        else:
            fl.append(f"ds_read_b128 {vr(r.F[buf]+4*j,4)}, v{r.Fc} offset:{j*2048+sub*1024}")
    return tl + fl

def mfmas(c, r, buf):
    out = []
    for j in range(c.NB):
        for i in range(4):
            d = vr(r.acc + (i*c.NB + j)*4, 4)
            t = vr(r.T[buf]+4*i, 4); f = vr(r.F[buf]+4*j, 4)
            if c.swap[j]:
                out.append(f"v_mfma_f32_16x16x32_bf16 {d}, {t}, {f}, {d}")
            else:
                out.append(f"v_mfma_f32_16x16x32_bf16 {d}, {f}, {t}, {d}")
    return out

def setslot(c, r):
    o = [f"v_add_u32 v{r.Tc}, s18, v{r.Tb}"]
    for j in range(r.nFa):
        o.append(f"v_add_u32 v{r.Fc+j}, s18, v{r.Fb+j}")
    return o

def advslot(c):
    return [f"s_add_u32 s18, s18, {c.stage}", f"s_cmp_ge_u32 s18, {c.lds}",
            "s_cselect_b32 s18, 0, s18"]

def compute_loop(a, c, r, nomfma=False, noread=False):
    n = c.name
    mf = (lambda b: []) if nomfma else (lambda b: mfmas(c, r, b))
    rd = (lambda b, s: []) if noread else (lambda b, s: reads(c, r, b, s))
    a.e("s_mov_b32 s18, 0")
    for x in setslot(c, r): a.e(x)
    a.e("s_barrier")
    if getattr(c, 'stampP', None): a.e(c.stampP)
    for x in rd(0, 0): a.e(x)
    if not c.ksplit:
        a.e(f"s_mov_b32 s19, {c.nk}")
        a.e("s_waitcnt lgkmcnt(0)")
        a(".p2align 6")
        a.label(f"{n}_c_loop")
        interleave(a, mf(0), rd(1, 1) + advslot(c) + setslot(c, r))
        a.e("s_waitcnt lgkmcnt(0)")
        a.e("s_barrier")
        interleave(a, mf(1), rd(0, 0) + ["s_sub_u32 s19, s19, 1", "s_cmp_lg_u32 s19, 0"])
        a.e("s_waitcnt lgkmcnt(0)")
        a.e(f"s_cbranch_scc1 {n}_c_loop")
    else:
        assert c.nk % 2 == 0
        a.e(f"s_mov_b32 s19, {c.nk//2}")
        for x in advslot(c) + setslot(c, r): a.e(x)
        a(".p2align 6")
        a.label(f"{n}_c_loop")
        for b in range(2):
            a.e("s_waitcnt lgkmcnt(0)")
            a.e("s_barrier")
            extra = advslot(c) + setslot(c, r)
            if b == 1: extra += ["s_sub_u32 s19, s19, 1", "s_cmp_lg_u32 s19, 0"]
            interleave(a, mf(b), rd(1-b, 0) + extra)
        a.e(f"s_cbranch_scc1 {n}_c_loop")
        a.e("s_waitcnt lgkmcnt(0)")
    a.e("s_nop 7")
    a.e("s_nop 7")

def ksplit_reduce(a, c, r):
    NB = c.NB
    n = c.name
    sz = 2*NB*1024
    a.e("s_barrier")
    a.e(f"s_mul_i32 s20, s3, {sz}")
    a.e("v_lshlrev_b32 v2, 4, v1")
    a.e("v_add_u32 v3, s20, v2")
    a.e("s_xor_b32 s21, s3, 2")
    a.e(f"s_mul_i32 s21, s21, {sz}")
    a.e("v_add_u32 v4, s21, v2")
    a.e("s_cmp_eq_u32 s7, 0")
    a.e(f"s_cbranch_scc0 {n}_red_k1")
    for x in range(2*NB):
        a.e(f"ds_write_b128 v3, {vr(r.acc + (2*NB + x)*4, 4)} offset:{x*1024}")
    a.e(f"s_branch {n}_red_j")
    a.label(f"{n}_red_k1")
    for x in range(2*NB):
        a.e(f"ds_write_b128 v3, {vr(r.acc + x*4, 4)} offset:{x*1024}")
    a.e("s_nop 1")
    for x in range(2*NB*4):
        a.e(f"v_mov_b32 v{r.acc + x}, v{r.acc + 2*NB*4 + x}")
    a.label(f"{n}_red_j")
    a.e("s_waitcnt lgkmcnt(0)")
    a.e("s_barrier")
    base = r.acc + 2*NB*4
    for x in range(2*NB):
        a.e(f"ds_read_b128 {vr(base + x*4, 4)}, v4 offset:{x*1024}")
    for x in range(2*NB):
        a.e(f"s_waitcnt lgkmcnt({min(15, 2*NB-1-x)})")
        for q in range(4):
            a.e(f"v_add_f32 v{r.acc + x*4 + q}, v{r.acc + x*4 + q}, v{base + x*4 + q}")
```

```python
import sys
from asmlib import *
from gemm import *

def cfgs(NSq=3):
    d = {}
    d['qkv'] = GemmCfg('qkv', 128, 6, 1024, 3, '2x2', 'frag', 'tr', ldf=6144, groups=(3, False), xm=8, xn=4, MT=16, NT=16)
    d['qkv4'] = GemmCfg('qkv4', 128, 6, 1024, 4, '2x2', 'frag', 'tr', ldf=6144, groups=(3, False), xm=8, xn=4, MT=16, NT=16)
    d['proj'] = GemmCfg('proj', 64, 4, 1024, 6, 'ksplitF', 'frag', 'tr', ldf=2048, groups=(2, False), xm=8, xn=4, MT=32, NT=8)
    d['proj4'] = GemmCfg('proj4', 64, 4, 1024, 4, 'ksplitF', 'frag', 'tr', ldf=2048, groups=(2, False), xm=8, xn=4, MT=32, NT=8)
    d['win'] = GemmCfg('win', 128, 7, 1024, 3, '2x2', 'frag', 'tr', ldf=7168, groups=(3, True), xm=8, xn=4, MT=16, NT=16)
    d['spat'] = GemmCfg('spat', 128, 7, 2048, 5, 'ksplitT', 'nat', 'frag', ldt=4096, xm=4, xn=8, MT=16, NT=16)
    d['spat3'] = GemmCfg('spat3', 128, 7, 2048, 3, 'ksplitT', 'nat', 'frag', ldt=4096, xm=4, xn=8, MT=16, NT=16)
    d['wout'] = GemmCfg('wout', 64, 4, 1792, 6, 'ksplitF', 'frag', 'tr', ldf=2048, groups=(2, False), xm=8, xn=4, MT=32, NT=8)
    d['spatL'] = GemmCfg('spatL', 128, 7, 2048, 5, 'ksplitT', 'frag', 'frag', xm=4, xn=8, MT=16, NT=16)
    d['qkvL'] = GemmCfg('qkvL', 128, 6, 1024, 3, '2x2', 'frag', 'frag', xm=8, xn=4, MT=16, NT=16)
    d['winL'] = GemmCfg('winL', 128, 7, 1024, 3, '2x2', 'frag', 'frag', xm=8, xn=4, MT=16, NT=16)
    d['woutL'] = GemmCfg('woutL', 64, 4, 1792, 6, 'ksplitF', 'frag', 'frag', xm=8, xn=4, MT=32, NT=8)
    for k in ('qkv4','proj4','spat3','qkvL','winL','woutL'): del d[k]
    return d

NCOL = {'qkv':3072,'qkv4':3072,'proj':1024,'proj4':1024,'win':3584,'spat':1792,'spat3':1792,'wout':1024,'spatL':1792,'qkvL':3072,'winL':3584,'woutL':1024}

def fcol(c):
    base = c.name.rstrip('0123456789')
    def f(a, G, sd):
        if base == 'qkv':
            from common import ROTK, ROTV
            a.e(f"s_add_u32 s{sd}, s5, {(0, ROTK, ROTV)[G]}"); a.e(f"s_and_b32 s{sd}, s{sd}, 15")
            a.e(f"s_lshl_b32 s{sd}, s{sd}, 7"); a.e(f"s_add_u32 s{sd}, s{sd}, {G*2048}")
        elif base in ('proj', 'wout'):
            a.e(f"s_lshl_b32 s{sd}, s5, 8"); a.e(f"s_add_u32 s{sd}, s{sd}, {G*128}")
        elif base == 'win':
            a.e(f"s_mul_i32 s{sd}, s5, 448")
            a.e("s_and_b32 s22, s5, 1")
            if G == 'H':
                a.e("s_xor_b32 s22, s22, 1"); a.e("s_mul_i32 s22, s22, 384")
                a.e(f"s_add_u32 s{sd}, s{sd}, s22")
            else:
                a.e("s_lshl_b32 s22, s22, 6"); a.e(f"s_add_u32 s{sd}, s{sd}, s22")
                a.e(f"s_add_u32 s{sd}, s{sd}, {G*128}")
        elif base in ('spat', 'spatL'):
            a.e(f"s_mul_i32 s{sd}, s5, 7")
        elif base in ('qkvL', 'winL', 'woutL'):
            a.e(f"s_mul_i32 s{sd}, s5, {2*c.NB}")
    return f

def fblock(c):
    base = c.name.rstrip('0123456789')
    def f(a, j):
        if base == 'qkv':
            a.e(f"s_mov_b32 s20, {(j//2)*8192}")
            a.e("s_lshl_b32 s21, s7, 1"); a.e(f"s_add_u32 s21, s21, {j%2}")
            return False
        if base in ('proj', 'wout'):
            a.e("s_lshl_b32 s20, s6, 13"); a.e(f"s_mov_b32 s21, {j}")
            return False
        if base == 'win':
            if j < 4:
                a.e("s_lshl_b32 s20, s7, 14"); a.e(f"s_mov_b32 s21, {j}"); return False
            if j < 6:
                a.e("s_mov_b32 s20, 8192"); a.e("s_lshl_b32 s21, s7, 1"); a.e(f"s_add_u32 s21, s21, {j-4}"); return False
            a.e("s_mov_b32 s20, 24576"); a.e("s_mov_b32 s21, s7"); return True
    return f

def colchunk(c):
    base = c.name.rstrip('0123456789')
    def f(a, j):
        if base == 'qkv':
            a.e("s_lshl_b32 s20, s5, 3"); a.e("s_lshl_b32 s21, s7, 2"); a.e("s_add_u32 s20, s20, s21")
            a.e(f"s_add_u32 s20, s20, {(j//2)*128 + (j%2)*2}")
        elif base in ('proj', 'wout'):
            a.e("s_lshl_b32 s20, s5, 4"); a.e("s_lshl_b32 s21, s6, 3"); a.e("s_add_u32 s20, s20, s21")
            a.e(f"s_add_u32 s20, s20, {j*2}")
        elif base == 'win':
            a.e("s_mul_i32 s20, s5, 28"); a.e("s_and_b32 s22, s5, 1")
            if j < 6:
                a.e("s_lshl_b32 s22, s22, 2"); a.e("s_add_u32 s20, s20, s22")
                if j < 4:
                    a.e("s_lshl_b32 s21, s7, 4"); a.e("s_add_u32 s20, s20, s21"); a.e(f"s_add_u32 s20, s20, {2*j}")
                else:
                    a.e("s_lshl_b32 s21, s7, 2"); a.e("s_add_u32 s20, s20, s21"); a.e(f"s_add_u32 s20, s20, {8 + 2*(j-4)}")
            else:
                a.e("s_xor_b32 s22, s22, 1"); a.e("s_mul_i32 s22, s22, 24"); a.e("s_add_u32 s20, s20, s22")
                a.e("s_lshl_b32 s21, s7, 1"); a.e("s_add_u32 s20, s20, s21")
        elif base in ('spat', 'spatL'):
            a.e("s_mul_i32 s20, s5, 14"); a.e(f"s_add_u32 s20, s20, {2*j}")
        elif base in ('qkvL', 'winL', 'woutL'):
            a.e(f"s_mul_i32 s20, s5, {4*c.NB}"); a.e(f"s_mul_i32 s21, s{6 if base=='woutL' else 7}, {2*c.NB}")
            a.e("s_add_u32 s20, s20, s21"); a.e(f"s_add_u32 s20, s20, {2*j}")
    return f

def stamp(a, slot):
    a.e(f"s_memtime s[{40+2*slot}:{41+2*slot}]")

def gen(c, suffix='', nomfma=False, noread=False, nostore=False, same=False, ldflag='', stflag=''):
    c.ldflag = ldflag
    a = Asm()
    c.name = c.name
    base = c.name
    nm = base + suffix
    N = NCOL[base]
    fc, fb, cc = fcol(c), fblock(c), colchunk(c)
    c.name = nm
    kernel_header(a, nm)
    a.e("s_cmp_ge_u32 s2, 256"); a.e(f"s_cbranch_scc1 {nm}_end")
    stamp(a, 0)
    a.e("s_memrealtime s[52:53]")
    a.e("s_getreg_b32 s54, hwreg(HW_REG_XCC_ID)")
    a.e("s_load_dwordx4 s[28:31], s[0:1], 0")
    a.e("s_load_dwordx4 s[32:35], s[0:1], 16")
    a.e("v_lshrrev_b32 v1, 6, v0"); a.e("s_nop 0"); a.e("v_readfirstlane_b32 s3, v1")
    decode_tile(a, c)
    if same:
        a.e("s_and_b32 s4, s2, 7"); a.e("s_and_b32 s5, s2, 7")
    c.stampP = "s_memtime s[42:43]"
    a.e("s_waitcnt lgkmcnt(0)")
    srd(a, 8, 28, 2048*c.K*2)
    srd(a, 12, 30, c.K*N*2)
    srd(a, 24, 32, 2048*N*2)
    a.e("s_cmp_ge_u32 s3, 4"); a.e(f"s_cbranch_scc0 {nm}_comp")
    a.e("s_sub_u32 s3, s3, 4")
    loader(a, c, fc)
    a.label(f"{nm}_comp")
    r = compute_setup(a, c, fb)
    a.e("s_setprio 1")
    compute_loop(a, c, r, nomfma, noread)
    stamp(a, 2)
    if c.ksplit:
        ksplit_reduce(a, c, r); npair = 1
    else:
        npair = 2
    a.e("v_bfe_u32 v2, v1, 4, 1"); a.e(f"v_mul_u32_u24 v2, {N//8*256}, v2")
    a.e("v_lshrrev_b32 v3, 5, v1"); a.e("v_lshl_add_u32 v2, v3, 8, v2")
    a.e("v_and_b32 v3, 15, v1"); a.e("v_lshl_add_u32 v2, v3, 4, v2")
    a.e(f"s_mul_i32 s36, s4, {c.TM//16}")
    if c.mode != 'ksplitF':
        a.e("s_lshl_b32 s21, s6, 2"); a.e("s_add_u32 s36, s36, s21")
    if c.ksplit:
        a.e("s_lshl_b32 s21, s7, 1"); a.e("s_add_u32 s36, s36, s21")
    a.e(f"s_mul_i32 s36, s36, {N//8*256}")
    tmp = r.T[0]
    k = 0
    for j in range(c.NB):
        cc(a, j)
        a.e("s_lshl_b32 s20, s20, 8"); a.e("s_add_u32 s37, s20, s36")
        for p in range(npair):
            t = tmp + 4*(k % 8); k += 1
            x = r.acc + ((2*p)*c.NB + j)*4; y = r.acc + ((2*p+1)*c.NB + j)*4
            a.e(f"v_cvt_pk_bf16_f32 v{t}, v{x}, v{x+1}"); a.e(f"v_cvt_pk_bf16_f32 v{t+1}, v{x+2}, v{x+3}")
            a.e(f"v_cvt_pk_bf16_f32 v{t+2}, v{y}, v{y+1}"); a.e(f"v_cvt_pk_bf16_f32 v{t+3}, v{y+2}, v{y+3}")
            a.e("s_nop 1")
            a.e(f"v_permlane16_swap_b32 v{t}, v{t+2}"); a.e(f"v_permlane16_swap_b32 v{t+1}, v{t+3}")
            if p: a.e(f"s_add_u32 s37, s37, {2*N//8*256}")
            if not nostore:
                a.e(f"buffer_store_dwordx4 {vr(t,4)}, v2, s[24:27], s37 offen{stflag}")
    stamp(a, 3)
    a.e("s_waitcnt vmcnt(0)")
    stamp(a, 4)
    a.e("s_memrealtime s[50:51]")
    a.e("s_waitcnt lgkmcnt(0)")
    a.e("s_lshl_b32 s20, s2, 2"); a.e("s_add_u32 s20, s20, s3"); a.e("s_lshl_b32 s20, s20, 5")
    srd(a, 24, 34, 1 << 20)
    for i in range(8):
        a.e(f"v_mov_b32 v{2+i}, s{40+2*i}")
    a.e("v_mov_b32 v10, s20")
    a.e("v_cmp_eq_u32 vcc, 0, v1"); a.e("s_and_saveexec_b64 s[36:37], vcc")
    a.e("buffer_store_dwordx4 v[2:5], v10, s[24:27], 0 offen")
    a.e("buffer_store_dwordx4 v[6:9], v10, s[24:27], 0 offen offset:16")
    a.label(f"{nm}_end")
    a.e("s_endpgm")
    c.name = base
    return a.text(), nm, r.free, c.lds

def meta(name):
    return f"""  - .name: {name}
    .symbol: {name}.kd
    .kernarg_segment_size: 32
    .kernarg_segment_align: 8
    .group_segment_fixed_size: 0
    .private_segment_fixed_size: 0
    .wavefront_size: 64
    .sgpr_count: 102
    .vgpr_count: 256
    .max_flat_workgroup_size: 512
    .args:
      - {{.name: kernargs, .size: 32, .offset: 0, .value_kind: by_value}}
"""
if __name__ == '__main__':
    src = '.amdgcn_target "amdgcn-amd-amdhsa--gfx950"\n.text\n'
    ds = ''; ms = ''; info = []
    for k, c in cfgs().items():
        for suf, kw in (('', {}), ('_dma', dict(nomfma=True, noread=True)), ('_dmasc1', dict(nomfma=True, noread=True, ldflag=' sc1')), ('_dmant', dict(nomfma=True, noread=True, ldflag=' nt')), ('_dmasc01', dict(nomfma=True, noread=True, ldflag=' sc0 sc1')), ('_stsc1', dict(stflag=' sc1')), ('_stsc01', dict(stflag=' sc0 sc1')), ('_stnt', dict(stflag=' nt')), ('_ldsc1', dict(ldflag=' sc1'))):
            t, nm, vg, lds = gen(c, suf, **kw)
            assert vg <= 256, (nm, vg)
            src += t; ds += kernel_desc(nm, 256, 102, 32); ms += meta(nm)
            info.append(f"{nm} {k} {c.K} {NCOL[k]} {lds} {c.tmode} {c.fmode} {vg}")
    src += '.section .rodata,"a"\n' + ds
    src += "\n.amdgpu_metadata\n---\namdhsa.version: [1, 2]\namdhsa.kernels:\n" + ms + "...\n.end_amdgpu_metadata\n"
    open('gb.s', 'w').write(src)
    open('gb.info', 'w').write("\n".join(info))
    print("\n".join(info))
```

```python
from common import *

MARGIN = 40.0
NSLOT = 4
CH = 32768

def k_attn(name, force_fallback=False, pf=True):
    a = Asm(); kernel_header(a, name)
    n = name
    a.e("s_cmp_ge_u32 s2, 256"); a.e(f"s_cbranch_scc1 {n}_end")
    stamp_start(a)
    a.e(f"s_load_dwordx2 s[36:37], s[0:1], {D_WS}")
    if pf:
        a.e(f"s_load_dwordx2 s[28:29], s[0:1], {A_WO}")
        a.e(f"s_load_dwordx4 s[48:51], s[0:1], {B_WIN}")
        a.e(f"s_load_dwordx2 s[52:53], s[0:1], {B_WOUT}")
    wave_id(a, 3)
    a.e("s_and_b32 s4, s2, 7"); a.e("s_lshl_b32 s4, s4, 2"); a.e("s_lshr_b32 s20, s2, 6"); a.e("s_add_u32 s4, s4, s20")
    a.e("s_bfe_u32 s5, s2, 0x30003")
    a.e("v_and_b32 v1, 63, v0")
    vQ, vNM, vS, vP, vO, vL, vONE, vK, vV = 8, 16, 32, 64, 72, 88, 92, 96, 112
    vA, vAn, vD, vQo = 2, 3, 4, 5
    a.e("s_lshl_b32 s20, s4, 18"); a.e("s_lshl_b32 s6, s3, 12"); a.e("s_add_u32 s20, s20, s6")
    a.e(f"v_lshlrev_b32 v{vA}, 4, v1"); a.e(f"v_add_u32 v{vD}, s20, v{vA}")
    a.e(f"v_bfe_u32 v{vQo}, v1, 4, 1"); a.e(f"v_lshlrev_b32 v{vQo}, 15, v{vQo}")
    a.e("v_lshrrev_b32 v6, 5, v1"); a.e(f"v_lshl_add_u32 v{vQo}, v6, 8, v{vQo}")
    a.e("v_and_b32 v6, 15, v1"); a.e(f"v_lshl_add_u32 v{vQo}, v6, 4, v{vQo}")
    a.e("s_lshl_b32 s7, s5, 3"); a.e("s_add_u32 s7, s7, s3"); a.e("s_lshl_b32 s7, s7, 16")
    a.e("s_lshl_b32 s20, s4, 10"); a.e("s_add_u32 s7, s7, s20")
    a.e("s_waitcnt lgkmcnt(0)")
    srd(a, 8, 36, 8*MB, WS_KV); srd(a, 12, 36, 4*MB, WS_Q); srd(a, 24, 36, 4*MB, WS_O)
    a.e(f"buffer_load_dwordx4 {vr(vQ,4)}, v{vQo}, s[12:15], s7 offen")
    a.e(f"buffer_load_dwordx4 {vr(vQ+4,4)}, v{vQo}, s[12:15], s7 offen offset:512")
    a.e("s_mov_b32 s33, 0")

    def dma(slot_s, goff_s):
        a.e(f"s_add_u32 m0, s{slot_s}, s6"); a.e("s_nop 0")
        for i in range(4):
            a.e(f"buffer_load_dwordx4 v{vD}, s[8:11], s{goff_s} offen offset:{1024*i} lds")
    def stream_start():
        for c in range(3):
            a.e(f"s_mov_b32 s16, {c*CH}")
            dma(16, 16)
        a.e(f"s_mov_b32 s16, {3*CH}")
        a.e(f"s_mov_b32 s17, {3*CH}")
        a.e("s_mov_b32 s18, 0")
    def chunk_boundary(lbl):
        a.e(f"s_cmp_lt_u32 s16, {8*CH}")
        a.e(f"s_cbranch_scc1 {lbl}_a")
        a.e("s_waitcnt vmcnt(0)"); a.e("s_barrier"); a.e(f"s_branch {lbl}_b")
        a.label(f"{lbl}_a")
        a.e("s_waitcnt vmcnt(4)"); a.e("s_barrier")
        dma(17, 16)
        a.e(f"s_add_u32 s16, s16, {CH}")
        a.e(f"s_add_u32 s17, s17, {CH}"); a.e(f"s_and_b32 s17, s17, {NSLOT*CH-1}")
        a.label(f"{lbl}_b")

    stream_start()
    if pf:
        srd(a, 40, 28, 2*MB); srd(a, 44, 48, 1024*3584*2); srd(a, 56, 50, 8*MB); srd(a, 60, 52, 1792*2048)
    a.e("v_bfe_u32 v6, v1, 2, 1"); a.e("v_bfe_u32 v7, v1, 4, 1"); a.e("v_cmp_eq_u32 vcc, v6, v7")
    a.e("v_mov_b32 v6, 0x3f803f80")
    a.e("s_nop 0")
    a.e(f"v_cndmask_b32 v{vONE}, 0, v6, vcc")
    for i in range(1, 4): a.e(f"v_mov_b32 v{vONE+i}, v{vONE}")
    a.label(f"{n}_restart")
    for i in range(16): a.e(f"v_mov_b32 v{vO+i}, 0")
    for i in range(4): a.e(f"v_mov_b32 v{vL+i}, 0")
    for i in range(8): a.e(f"v_mov_b32 v{vP+i}, 0")
    for i in range(8): a.e(f"v_mov_b32 v{vV+8+i}, 0")
    a.e(f"v_lshlrev_b32 v{vA}, 4, v1")
    a.e("s_waitcnt vmcnt(8)"); a.e("s_barrier")
    stamp(a, 1)
    K = lambda b, s: vr(vK + 8*b + 4*s, 4)
    V = lambda b, s: vr(vV + 8*b + 4*s, 4)
    S = lambda b: vr(vS + 16*b, 16)
    Q = lambda s: vr(vQ + 4*s, 4)
    P = lambda s: vr(vP + 4*s, 4)
    rdK = lambda b, s, areg, off: f"ds_read_b128 {K(b,s)}, v{areg} offset:{off + 1024*s}"
    rdV = lambda b, s, areg, off: f"ds_read_b128 {V(b,s)}, v{areg} offset:{off + 2048 + 1024*s}"
    for s in range(2): a.e(rdK(0, s, vA, 0))
    for s in range(2): a.e(rdK(1, s, vA, 4096))
    for s in range(2): a.e(rdV(0, s, vA, 0))
    a.e("s_waitcnt lgkmcnt(4)")
    a.e("s_cmp_eq_u32 s33, 0"); a.e(f"s_cbranch_scc0 {n}_havem")
    a.e(f"v_mfma_f32_32x32x16_bf16 {S(0)}, {K(0,0)}, {Q(0)}, 0")
    a.e(f"v_mfma_f32_32x32x16_bf16 {S(0)}, {K(0,1)}, {Q(1)}, {S(0)}")
    a.e("s_nop 7"); a.e("s_nop 7")
    a.e(f"v_max3_f32 v6, v{vS}, v{vS+1}, v{vS+2}")
    for i in range(3, 15, 2): a.e(f"v_max3_f32 v6, v6, v{vS+i}, v{vS+i+1}")
    a.e(f"v_max_f32 v6, v6, v{vS+15}")
    a.e("v_mov_b32 v7, v6"); a.e("s_nop 1"); a.e("v_permlane32_swap_b32 v6, v7"); a.e("s_nop 0")
    a.e("v_max_f32 v6, v6, v7")
    mg = -200.0 if force_fallback else MARGIN
    a.e(f"v_sub_f32 v{vNM}, {hexf(-mg)}, v6")
    for i in range(1, 16): a.e(f"v_mov_b32 v{vNM+i}, v{vNM}")
    a.label(f"{n}_havem")
    a.e("s_nop 1")
    a.e(f"v_mfma_f32_32x32x16_bf16 {S(0)}, {K(0,0)}, {Q(0)}, {vr(vNM,16)}")
    a.e(f"v_mfma_f32_32x32x16_bf16 {S(0)}, {K(0,1)}, {Q(1)}, {S(0)}")
    a.e("s_mov_b32 s19, 8")
    if pf:
        a.e("s_cmp_eq_u32 s33, 0"); a.e(f"s_cbranch_scc0 {n}_nopf")
        a.e("s_lshl_b32 s22, s2, 3"); a.e("s_add_u32 s22, s22, s3")
        a.e("v_lshlrev_b32 v6, 6, v1")
        a.e("s_lshl_b32 s23, s22, 12"); a.e("buffer_load_dword v7, v6, s[56:59], s23 offen")
        a.e("s_mov_b64 exec, 0x00ffffffffffffff" if False else "s_bfm_b64 exec, 56, 0")
        a.e("s_mul_i32 s23, s22, 3584"); a.e("buffer_load_dword v7, v6, s[44:47], s23 offen")
        a.e("s_bfm_b64 exec, 28, 0")
        a.e("s_mul_i32 s23, s22, 1792"); a.e("buffer_load_dword v7, v6, s[60:63], s23 offen")
        a.e("s_bfm_b64 exec, 16, 0")
        a.e("s_lshl_b32 s23, s22, 10"); a.e("buffer_load_dword v7, v6, s[40:43], s23 offen")
        a.e("s_mov_b64 exec, -1")
        a.label(f"{n}_nopf")
    a.e("s_nop 7"); a.e("s_nop 1")
    a(".p2align 6")
    a.label(f"{n}_loop")
    for t in range(8):
        b = t & 1; nb = 1 - b
        e = lambda i: f"v_exp_f32 v{vS+16*b+i}, v{vS+16*b+i}"
        cv = lambda i: f"v_cvt_pk_bf16_f32 v{vP+i}, v{vS+16*b+2*i}, v{vS+16*b+2*i+1}"
        if t == 6:
            chunk_boundary(f"{n}_cb")
            a.e(f"s_add_u32 s20, s18, {CH}"); a.e(f"s_and_b32 s18, s20, {NSLOT*CH-1}")
            a.e(f"v_lshl_add_u32 v{vAn}, v1, 4, s18")
        ka, ko = (vA, (t+2)*4096) if t < 6 else (vAn, (t-6)*4096)
        va, vo = (vA, (t+1)*4096) if t < 7 else (vAn, 0)
        a.e("s_waitcnt lgkmcnt(0)")
        a.e(f"v_mfma_f32_32x32x16_bf16 {S(nb)}, {K(nb,0)}, {Q(0)}, {vr(vNM,16)}")
        a.e(rdK(b, 0, ka, ko)); a.e(rdK(b, 1, ka, ko))
        for i in range(0, 4): a.e(e(i))
        a.e(f"v_mfma_f32_32x32x16_bf16 {vr(vO,16)}, {V(nb,1)}, {P(1)}, {vr(vO,16)}")
        a.e(rdV(nb, 0, va, vo)); a.e(rdV(nb, 1, va, vo))
        for i in range(4, 8): a.e(e(i))
        a.e(f"v_mfma_f32_32x32x16_bf16 {S(nb)}, {K(nb,1)}, {Q(1)}, {S(nb)}")
        for i in range(0, 4): a.e(cv(i))
        for i in range(8, 10): a.e(e(i))
        a.e(f"v_mfma_f32_16x16x32_bf16 {vr(vL,4)}, {vr(vONE,4)}, {P(1)}, {vr(vL,4)}")
        for i in range(10, 14): a.e(e(i))
        a.e(f"v_mfma_f32_32x32x16_bf16 {vr(vO,16)}, {V(b,0)}, {P(0)}, {vr(vO,16)}")
        for i in range(14, 16): a.e(e(i))
        for i in range(4, 8): a.e(cv(i))
        if t == 7:
            a.e(f"v_mov_b32 v{vA}, v{vAn}")
            a.e("s_sub_u32 s19, s19, 1"); a.e("s_cmp_lg_u32 s19, 0")
        a.e(f"v_mfma_f32_16x16x32_bf16 {vr(vL,4)}, {vr(vONE,4)}, {P(0)}, {vr(vL,4)}")
    a.e(f"s_cbranch_scc1 {n}_loop")
    a.e(f"v_mfma_f32_32x32x16_bf16 {vr(vO,16)}, {V(1,1)}, {P(1)}, {vr(vO,16)}")
    a.e(f"v_mfma_f32_16x16x32_bf16 {vr(vL,4)}, {vr(vONE,4)}, {P(1)}, {vr(vL,4)}")
    a.e("s_waitcnt lgkmcnt(0)")
    a.e("s_nop 7"); a.e("s_nop 7")
    stamp(a, 2)
    a.e("s_cmp_eq_u32 s33, 0"); a.e(f"s_cbranch_scc0 {n}_out")
    a.e(f"v_mov_b32 v6, {hexf(2.0**100)}")
    a.e(f"v_cmp_nle_f32 s[20:21], v{vL}, v6")
    a.e("v_mov_b32 v7, 0x207")
    for i in range(16):
        a.e(f"v_cmp_class_f32 vcc, v{vO+i}, v7"); a.e("s_or_b64 s[20:21], s[20:21], vcc")
    a.e("s_cmp_lg_u64 s[20:21], 0"); a.e("s_cselect_b32 s20, 1, 0")
    a.e("v_mov_b32 v6, s20"); a.e("s_lshl_b32 s21, s3, 2"); a.e(f"s_add_u32 s21, s21, {NSLOT*CH}"); a.e("v_mov_b32 v7, s21")
    a.e("ds_write_b32 v7, v6"); a.e("s_waitcnt lgkmcnt(0)"); a.e("s_barrier")
    a.e(f"v_mov_b32 v7, {NSLOT*CH}")
    a.e(f"ds_read_b128 {vr(vK,4)}, v7"); a.e(f"ds_read_b128 {vr(vK+4,4)}, v7 offset:16")
    a.e("s_waitcnt lgkmcnt(0)")
    a.e(f"v_or3_b32 v6, v{vK}, v{vK+1}, v{vK+2}"); a.e(f"v_or3_b32 v6, v6, v{vK+3}, v{vK+4}")
    a.e(f"v_or3_b32 v6, v6, v{vK+5}, v{vK+6}"); a.e(f"v_or_b32 v6, v6, v{vK+7}")
    a.e("s_nop 0"); a.e("v_readfirstlane_b32 s20, v6"); a.e("s_nop 3")
    a.e("s_cmp_eq_u32 s20, 0"); a.e(f"s_cbranch_scc1 {n}_out")
    a.e("s_mov_b32 s33, 1")
    a.e("s_barrier")
    stream_start()
    a.e("v_mov_b32 v6, 0xff800000")
    a.e("s_waitcnt vmcnt(8)"); a.e("s_barrier")
    a.e("s_mov_b32 s19, 8")
    a.label(f"{n}_mx")
    a.e(f"v_lshl_add_u32 v{vA}, v1, 4, s18")
    for t in range(8):
        for s in range(2): a.e(rdK(0, s, vA, t*4096))
        a.e("s_waitcnt lgkmcnt(0)")
        a.e(f"v_mfma_f32_32x32x16_bf16 {S(0)}, {K(0,0)}, {Q(0)}, 0")
        a.e(f"v_mfma_f32_32x32x16_bf16 {S(0)}, {K(0,1)}, {Q(1)}, {S(0)}")
        a.e("s_nop 7"); a.e("s_nop 7")
        for i in range(0, 16, 2): a.e(f"v_max3_f32 v6, v6, v{vS+i}, v{vS+i+1}")
    chunk_boundary(f"{n}_cm")
    a.e(f"s_add_u32 s20, s18, {CH}"); a.e(f"s_and_b32 s18, s20, {NSLOT*CH-1}")
    a.e("s_sub_u32 s19, s19, 1"); a.e("s_cmp_lg_u32 s19, 0"); a.e(f"s_cbranch_scc1 {n}_mx")
    a.e("v_mov_b32 v7, v6"); a.e("s_nop 1"); a.e("v_permlane32_swap_b32 v6, v7"); a.e("s_nop 0")
    a.e("v_max_f32 v6, v6, v7")
    a.e(f"v_sub_f32 v{vNM}, 0, v6")
    for i in range(1, 16): a.e(f"v_mov_b32 v{vNM+i}, v{vNM}")
    stream_start()
    a.e(f"s_branch {n}_restart")
    a.label(f"{n}_out")
    a.e(f"v_rcp_f32 v6, v{vL}"); a.e("s_nop 0")
    for i in range(16): a.e(f"v_mul_f32 v{vO+i}, v{vO+i}, v6")
    for i in range(8): a.e(f"v_cvt_pk_bf16_f32 v{vP+i}, v{vO+2*i}, v{vO+2*i+1}")
    a.e("s_nop 1")
    for h in range(2):
        a.e(f"v_permlane32_swap_b32 v{vP+4*h}, v{vP+4*h+2}"); a.e(f"v_permlane32_swap_b32 v{vP+4*h+1}, v{vP+4*h+3}")
    for h in range(2):
        a.e(f"buffer_store_dwordx4 {vr(vP+4*h,4)}, v{vQo}, s[24:27], s7 offen offset:{512*h} sc1")
    stamp(a, 3)
    stamp_end(a, 3, 36, 3)
    a.label(f"{n}_end"); a.e("s_endpgm")
    return a.text(), 128, NSLOT*CH + 64
```

```python
from common import *
from gemm import *
import gemm_bench as gb

STF = " sc1"

def prolog(a, name, c, tptr, tbytes, toff, fptr, fbytes, foff, extra_loads, kidx):
    kernel_header(a, name)
    a.e("s_cmp_ge_u32 s2, 256"); a.e(f"s_cbranch_scc1 {name}_end")
    stamp_start(a)
    a.e(f"s_load_dwordx2 s[36:37], s[0:1], {D_WS}")
    if tptr != D_WS: a.e(f"s_load_dwordx2 s[28:29], s[0:1], {tptr}")
    if fptr != D_WS: a.e(f"s_load_dwordx2 s[30:31], s[0:1], {fptr}")
    for reg, off in extra_loads: a.e(f"s_load_dwordx2 s[{reg}:{reg+1}], s[0:1], {off}")
    wave_id(a, 3)
    decode_tile(a, c)
    a.e("s_waitcnt lgkmcnt(0)")
    srd(a, 8, 36 if tptr == D_WS else 28, tbytes, toff)
    srd(a, 12, 36 if fptr == D_WS else 30, fbytes, foff)
    a.e("s_cmp_ge_u32 s3, 4"); a.e(f"s_cbranch_scc0 {name}_comp")
    a.e("s_sub_u32 s3, s3, 4")
    base = c.name; fc = gb.fcol(c); c.name = name
    loader(a, c, fc)
    a.label(f"{name}_comp")
    c.name = base; fb = gb.fblock(c); cc = gb.colchunk(c); c.name = name
    r = compute_setup(a, c, fb)
    if STAMPS: c.stampP = "s_memtime s[82:83]"
    return r, cc

def fin(a, name, kidx):
    stamp_end(a, kidx, 36, 3)
    a.label(f"{name}_end"); a.e("s_endpgm")

def pack_pair(a, t, x, y):
    a.e(f"v_cvt_pk_bf16_f32 v{t}, v{x}, v{x+1}"); a.e(f"v_cvt_pk_bf16_f32 v{t+1}, v{x+2}, v{x+3}")
    a.e(f"v_cvt_pk_bf16_f32 v{t+2}, v{y}, v{y+1}"); a.e(f"v_cvt_pk_bf16_f32 v{t+3}, v{y+2}, v{y+3}")
def swap_pair(a, t):
    a.e(f"v_permlane16_swap_b32 v{t}, v{t+2}"); a.e(f"v_permlane16_swap_b32 v{t+1}, v{t+3}")

def store_pairs(a, items, tmp, ntmp=4):
    pend = None
    for k, (x, y, pre, st) in enumerate(items):
        t = tmp + 4*(k % ntmp)
        pack_pair(a, t, x, y)
        if pend is not None:
            swap_pair(a, pend[0])
            for p in pend[1]: a.e(p)
            a.e(pend[2](pend[0]))
        pend = (t, pre, st)
    a.e("s_nop 1")
    swap_pair(a, pend[0])
    for p in pend[1]: a.e(p)
    a.e(pend[2](pend[0]))

def lane_chunk_off(a, vd, nchunks):
    a.e(f"v_bfe_u32 v{vd}, v1, 4, 1"); a.e(f"v_mul_u32_u24 v{vd}, {nchunks*256}, v{vd}")
    a.e("v_lshrrev_b32 v3, 5, v1"); a.e(f"v_lshl_add_u32 v{vd}, v3, 8, v{vd}")
    a.e("v_and_b32 v3, 15, v1"); a.e(f"v_lshl_add_u32 v{vd}, v3, 4, v{vd}")

def swap23(a, vd, vt):
    a.e(f"v_and_b32 v{vd}, 19, v1")
    a.e(f"v_bfe_u32 v{vt}, v1, 2, 1"); a.e(f"v_lshl_or_b32 v{vd}, v{vt}, 3, v{vd}")
    a.e(f"v_bfe_u32 v{vt}, v1, 3, 1"); a.e(f"v_lshl_or_b32 v{vd}, v{vt}, 2, v{vd}")

def k_qkv(name):
    c = GemmCfg('qkv', 128, 6, 1024, 3, '2x2', 'frag', 'tr', ldf=6144, groups=(3, False), xm=8, xn=4, MT=16, NT=16,
                swap=[False]*4 + [True]*2)
    a = Asm()
    r, cc = prolog(a, name, c, D_WS, 4*MB, WS_H, A_WQKV, 6*MB, 0, [], 2)
    srd(a, 24, 36, 4*MB, WS_Q); srd(a, 40, 36, 8*MB, WS_KV)
    vq, vk, vv = r.free, r.free+1, r.free+2
    lane_chunk_off(a, vq, 128)
    swap23(a, vk, 3); a.e(f"v_lshlrev_b32 v{vk}, 4, v{vk}")
    a.e("v_lshrrev_b32 v3, 5, v1"); a.e(f"v_lshl_add_u32 v{vk}, v3, 9, v{vk}")
    a.e("v_bfe_u32 v2, v1, 4, 1"); a.e("v_lshl_add_u32 v2, v2, 1, v3")
    a.e("v_and_b32 v3, 15, v1"); a.e("v_lshlrev_b32 v3, 4, v3"); a.e(f"v_lshl_add_u32 v{vv}, v2, 9, v3")
    a.e("s_lshl_b32 s32, s5, 1"); a.e("s_add_u32 s32, s32, s7")
    a.e("s_lshl_b32 s33, s4, 2"); a.e("s_lshl_b32 s20, s6, 1"); a.e("s_add_u32 s33, s33, s20")
    a.e("s_lshl_b32 s34, s33, 16"); a.e("s_lshl_b32 s20, s32, 10"); a.e("s_add_u32 s34, s34, s20")
    a.e("s_lshl_b32 s35, s32, 6"); a.e("s_add_u32 s35, s35, s33"); a.e("s_lshl_b32 s35, s35, 12")
    a.e("s_add_u32 s38, s34, 65536"); a.e("s_add_u32 s39, s35, 4096")
    a.e(f"s_mov_b32 s44, {hexf(QSCALE)}"); a.e(f"s_mov_b32 s45, s44")
    a.e("s_setprio 1")
    compute_loop(a, c, r)
    stamp(a, 2)
    items = []
    acc = lambda i, j: r.acc + (i*6 + j)*4
    for j in (2, 3, 4, 5, 0, 1):
        for p in range(2):
            jj = j & 1
            if j < 2:
                st = (lambda t, p=p, jj=jj: f"buffer_store_dwordx4 {vr(t,4)}, v{vq}, s[24:27], s{38 if p else 34} offen offset:{jj*512}{STF}")
            elif j < 4:
                st = (lambda t, p=p, jj=jj: f"buffer_store_dwordx4 {vr(t,4)}, v{vk}, s[40:43], s{39 if p else 35} offen offset:{jj*1024}{STF}")
            else:
                st = (lambda t, p=p, jj=jj: f"buffer_store_dwordx4 {vr(t,4)}, v{vv}, s[40:43], s{39 if p else 35} offen offset:{2048+jj*256}{STF}")
            items.append((acc(2*p, j), acc(2*p+1, j), [], st))
    for i in range(4):
        for j in range(2):
            for q in range(2):
                x = acc(i, j) + 2*q
                a.e(f"v_pk_mul_f32 {vr(x,2)}, {vr(x,2)}, s[44:45]")
    store_pairs(a, items, r.T[0])
    stamp(a, 3)
    fin(a, name, 2)
    return a.text(), r.free + 3, c.lds

def stats_publish(a, r, NB, nti, vS, vT, srd_s, vaddr, soff):
    for i in range(nti):
        x0 = r.acc + i*NB*4
        a.e(f"v_add_f32 v{vS+2*i}, v{x0}, v{x0+1}")
        a.e(f"v_mul_f32 v{vS+2*i+1}, v{x0}, v{x0}")
        a.e(f"v_fmac_f32 v{vS+2*i+1}, v{x0+1}, v{x0+1}")
        for k in range(2, NB*4):
            a.e(f"v_add_f32 v{vS+2*i}, v{vS+2*i}, v{x0+k}")
            a.e(f"v_fmac_f32 v{vS+2*i+1}, v{x0+k}, v{x0+k}")
    xrow_sum(a, list(range(vS, vS+2*nti)), list(range(vT, vT+2*nti)))
    a.e("s_mov_b64 exec, 0xffff")
    for i in range(nti):
        o = i*2048
        if o < 4096:
            a.e(f"buffer_store_dwordx2 {vr(vS+2*i,2)}, v{vaddr}, s[{srd_s}:{srd_s+3}], s{soff} offen offset:{o} sc1")
        else:
            a.e(f"buffer_store_dwordx2 {vr(vS+2*i,2)}, v{vaddr}, s[{srd_s}:{srd_s+3}], s{soff+1} offen offset:{o-4096} sc1")
    a.e("s_mov_b64 exec, -1")

def stats_gather(a, name, nti, vP, vS, vT, srd_s, vaddr2, soff, n):
    a.e("s_mov_b32 s19, 0x40000")
    a.label(f"{name}_poll")
    for i in range(nti):
        o = i*2048; so = soff if o < 4096 else soff+1; o %= 4096
        for h in range(2):
            a.e(f"buffer_load_dwordx4 {vr(vP+8*i+4*h,4)}, v{vaddr2}, s[{srd_s}:{srd_s+3}], s{so} offen offset:{o+16*h} sc1")
    a.e("s_waitcnt vmcnt(0)")
    a.e(f"v_max_u32 v{vT}, v{vP}, v{vP+1}")
    for k in range(2, 8*nti, 2):
        a.e(f"v_max3_u32 v{vT}, v{vT}, v{vP+k}, v{vP+k+1}")
    a.e(f"v_cmp_eq_u32 vcc, -1, v{vT}")
    a.e("s_sub_u32 s19, s19, 1")
    a.e("s_cmp_eq_u32 s19, 0")
    a.e(f"s_cbranch_scc1 {name}_pdone")
    a.e(f"s_cbranch_vccnz {name}_poll")
    a.label(f"{name}_pdone")
    for i in range(nti):
        p = vP + 8*i
        for h in range(2):
            a.e(f"v_add_f32 v{vS+2*i+h}, v{p+h}, v{p+2+h}")
            a.e(f"v_add_f32 v{vS+2*i+h}, v{vS+2*i+h}, v{p+4+h}")
            a.e(f"v_add_f32 v{vS+2*i+h}, v{vS+2*i+h}, v{p+6+h}")
    xrow_sum(a, list(range(vS, vS+2*nti)), list(range(vT, vT+2*nti)))
    for i in range(nti):
        s, q, t = vS+2*i, vS+2*i+1, vT
        a.e(f"v_mul_f32 v{s}, {hexf(1.0/n)}, v{s}")
        a.e(f"v_mul_f32 v{q}, {hexf(1.0/n)}, v{q}")
        a.e(f"v_fma_f32 v{q}, -v{s}, v{s}, v{q}")
        a.e(f"v_max_f32 v{q}, 0, v{q}")
        a.e(f"v_add_f32 v{q}, {hexf(1e-5)}, v{q}")
        a.e(f"v_rsq_f32 v{t}, v{q}")
        a.e("s_nop 0")
        a.e(f"v_mul_f32 v{q}, -v{s}, v{t}" .replace("v_mul_f32", "v_mul_f32_e64"))
        a.e(f"v_mov_b32 v{s}, v{t}")

def k_proj(name):
    c = GemmCfg('proj', 64, 4, 1024, 6, 'ksplitF', 'frag', 'tr', ldf=2048, groups=(2, False), xm=8, xn=4, MT=32, NT=8)
    a = Asm()
    r, cc = prolog(a, name, c, D_WS, 4*MB, WS_O, A_WO, 2*MB, 0, [(32, A_X)], 4)
    srd(a, 24, 32, 4*MB); srd(a, 40, 36, 24576); srd(a, 44, 36, 256*1024, WS_ST1)
    srd(a, 48, 36, 4*MB, WS_X1); srd(a, 52, 36, 4*MB, WS_H2)
    f = r.free
    vX, vGA, vG, vSB = f, f+16, f+32, f+48
    vo, vs1, vs2, vS, vT = f+64, f+65, f+66, f+68, f+72
    vP = r.T[0] + 16
    a.e("s_lshl_b32 s56, s4, 6"); a.e("s_lshl_b32 s20, s7, 5"); a.e("s_add_u32 s56, s56, s20")
    a.e("s_lshl_b32 s57, s5, 7"); a.e("s_lshl_b32 s20, s6, 6"); a.e("s_add_u32 s57, s57, s20")
    a.e("v_and_b32 v2, 15, v1"); a.e("v_lshrrev_b32 v3, 4, v1")
    a.e("v_lshlrev_b32 v4, 11, v2"); a.e("v_lshl_add_u32 v4, v3, 3, v4")
    a.e("s_lshl_b32 s20, s56, 11"); a.e("s_lshl_b32 s21, s57, 1"); a.e("s_add_u32 s20, s20, s21"); a.e("s_add_u32 s21, s20, 32768")
    for i in range(2):
        for j in range(4):
            a.e(f"buffer_load_dwordx2 {vr(vX+(i*4+j)*2,2)}, v4, s[24:27], s{20+i} offen offset:{32*j}")
    a.e("v_lshlrev_b32 v5, 4, v3")
    a.e("s_lshl_b32 s22, s57, 2")
    for reg, ch in ((vGA, 2), (vSB, 3), (vG, 4)):
        a.e(f"s_add_u32 s23, s22, {ch*4096}")
        for j in range(4):
            a.e(f"buffer_load_dwordx4 {vr(reg+4*j,4)}, v5, s[40:43], s23 offen offset:{64*j}")
    a.e(f"v_lshlrev_b32 v{vs1}, 7, v2"); a.e(f"v_lshl_add_u32 v{vs2}, v3, 5, v{vs1}")
    lane_chunk_off(a, vo, 128)
    a.e("s_lshl_b32 s58, s56, 7")
    a.e("s_lshl_b32 s60, s5, 1"); a.e("s_add_u32 s60, s60, s6"); a.e("s_lshl_b32 s60, s60, 3"); a.e("s_add_u32 s60, s60, s58")
    a.e("s_lshl_b32 s62, s56, 11"); a.e("s_lshl_b32 s20, s57, 5"); a.e("s_add_u32 s62, s62, s20")
    a.e("s_setprio 1")
    compute_loop(a, c, r)
    stamp(a, 2)
    ksplit_reduce(a, c, r)
    a.e("s_waitcnt vmcnt(0)")
    for i in range(2):
        for j in range(4):
            x = r.acc + (i*4+j)*4; s = vX + (i*4+j)*2
            for h in range(2):
                unpack(a, 2, 3, s+h)
                a.e(f"v_fma_f32 v{x+2*h}, v{x+2*h}, v{vGA+4*j+2*h}, v2")
                a.e(f"v_fma_f32 v{x+2*h+1}, v{x+2*h+1}, v{vGA+4*j+2*h+1}, v3")
    stats_publish(a, r, 4, 2, vS, vT, 44, vs1, 60)
    items = [(r.acc + j*4, r.acc + (4+j)*4, [],
              (lambda t, j=j: f"buffer_store_dwordx4 {vr(t,4)}, v{vo}, s[48:51], s62 offen offset:{512*j}{STF}")) for j in range(4)]
    store_pairs(a, items, r.T[0])
    stats_gather(a, name, 2, vP, vS, vT, 44, vs2, 58, 1024)
    for i in range(2):
        for j in range(4):
            for q in range(4):
                x = r.acc + (i*4+j)*4 + q
                a.e(f"v_fma_f32 v{x}, v{x}, v{vS+2*i}, v{vS+2*i+1}")
                a.e(f"v_fma_f32 v{x}, v{x}, v{vG+4*j+q}, v{vSB+4*j+q}")
    items = [(r.acc + j*4, r.acc + (4+j)*4, [],
              (lambda t, j=j: f"buffer_store_dwordx4 {vr(t,4)}, v{vo}, s[52:55], s62 offen offset:{512*j}{STF}")) for j in range(4)]
    store_pairs(a, items, r.T[0])
    stamp(a, 3)
    fin(a, name, 4)
    return a.text(), f + 76, c.lds

def gelu(a, regs, t0):
    n = len(regs)//2
    G = 4
    for b in range(0, n, G):
        ps = [(regs[2*k], t0 + 2*(k-b)) for k in range(b, min(n, b+G))]
        for x, t in ps: a.e(f"v_pk_mul_f32 {vr(t,2)}, {vr(x,2)}, {vr(x,2)}")
        for x, t in ps: a.e(f"v_pk_fma_f32 {vr(t,2)}, {vr(t,2)}, s[64:65], {vr(t0+2*G,2)}")
        for x, t in ps: a.e(f"v_pk_mul_f32 {vr(t,2)}, {vr(t,2)}, {vr(x,2)}")
        for x, t in ps: a.e(f"v_exp_f32 v{t}, v{t}"); a.e(f"v_exp_f32 v{t+1}, v{t+1}")
        for x, t in ps: a.e(f"v_pk_add_f32 {vr(t,2)}, {vr(t,2)}, 1.0 op_sel_hi:[1,0]")
        for x, t in ps: a.e(f"v_rcp_f32 v{t}, v{t}"); a.e(f"v_rcp_f32 v{t+1}, v{t+1}")
        for x, t in ps: a.e(f"v_pk_mul_f32 {vr(x,2)}, {vr(x,2)}, {vr(t,2)}")

def k_win(name):
    c = GemmCfg('win', 128, 7, 1024, 3, '2x2', 'frag', 'tr', ldf=7168, groups=(3, True), xm=8, xn=4, MT=16, NT=16)
    a = Asm()
    r, cc = prolog(a, name, c, D_WS, 4*MB, WS_H2, B_WIN, 1024*3584*2, 0, [], 5)
    ZB = 2048*1792*2
    srd(a, 24, 36, ZB, WS_Z1); srd(a, 40, 36, ZB, WS_Z2); srd(a, 44, 36, 256*1024, WS_ST2)
    f = r.free
    vo, vz, vs1, vs2 = f, f+1, f+2, f+3
    lane_chunk_off(a, vo, 224)
    swap23(a, vz, 3); a.e(f"v_lshlrev_b32 v{vz}, 5, v{vz}")
    a.e("v_lshrrev_b32 v3, 5, v1"); a.e(f"v_lshl_add_u32 v{vz}, v3, 4, v{vz}")
    a.e("v_and_b32 v2, 15, v1"); a.e("v_lshrrev_b32 v3, 4, v1")
    a.e(f"v_lshlrev_b32 v{vs1}, 7, v2"); a.e(f"v_lshl_add_u32 v{vs2}, v3, 5, v{vs1}")
    a.e("s_lshl_b32 s56, s4, 7"); a.e("s_lshl_b32 s20, s6, 6"); a.e("s_add_u32 s56, s56, s20")
    a.e("s_lshl_b32 s58, s56, 7"); a.e("s_add_u32 s59, s58, 4096")
    a.e("s_and_b32 s60, s5, 7"); a.e("s_lshl_b32 s60, s60, 1"); a.e("s_add_u32 s60, s60, s7"); a.e("s_lshl_b32 s60, s60, 3")
    a.e("s_add_u32 s60, s60, s58"); a.e("s_add_u32 s61, s60, 4096")
    for j in range(7):
        cc(a, j)
        a.e(f"s_lshr_b32 s21, s56, 4"); a.e("s_mul_i32 s21, s21, 224"); a.e("s_add_u32 s21, s21, s20"); a.e("s_lshl_b32 s21, s21, 8")
        a.e("s_sub_u32 s20, s20, 224"); a.e("s_lshl_b32 s20, s20, 15"); a.e("s_lshl_b32 s22, s56, 5"); a.e("s_add_u32 s20, s20, s22")
        a.e("s_cmp_lt_u32 s5, 8"); a.e(f"s_cselect_b32 s{68+j}, s21, s20")
    c1 = -2*0.7978845608028654*1.4426950408889634
    a.e(f"s_mov_b32 s64, {hexf(c1*0.044715)}"); a.e("s_mov_b32 s65, s64")
    a.e("s_setprio 1")
    compute_loop(a, c, r)
    stamp(a, 2)
    t0 = r.T[0]
    a.e(f"v_mov_b32 v{t0+8}, {hexf(c1)}"); a.e(f"v_mov_b32 v{t0+9}, {hexf(c1)}")
    gelu(a, list(range(r.acc, r.acc + 112)), t0)
    acc = lambda i, j: r.acc + (i*7 + j)*4
    a.e("s_cmp_lt_u32 s5, 8"); a.e(f"s_cbranch_scc0 {name}_z2")
    items = []
    for j in range(7):
        for p in range(2):
            pre = [f"s_add_u32 s{68+j}, s{68+j}, {2*224*256}"] if p else []
            items.append((acc(2*p, j), acc(2*p+1, j), pre,
                          (lambda t, j=j: f"buffer_store_dwordx4 {vr(t,4)}, v{vo}, s[24:27], s{68+j} offen{STF}")))
    store_pairs(a, items, t0)
    a.e(f"s_branch {name}_fin")
    a.label(f"{name}_z2")
    vS, vT, vP = t0 + 16, t0 + 24, t0 + 32
    stats_publish(a, r, 7, 4, vS, vT, 44, vs1, 60)
    stats_gather(a, name, 4, vP, vS, vT, 44, vs2, 58, 1792)
    for i in range(4):
        for k in range(28):
            x = r.acc + i*28 + k
            a.e(f"v_fma_f32 v{x}, v{x}, v{vS+2*i}, v{vS+2*i+1}")
    items = []
    for j in range(7):
        for p in range(2):
            items.append((acc(2*p, j), acc(2*p+1, j), [],
                          (lambda t, j=j, p=p: f"buffer_store_dwordx4 {vr(t,4)}, v{vz}, s[40:43], s{68+j} offen offset:{1024*p}{STF}")))
    store_pairs(a, items, t0)
    a.label(f"{name}_fin")
    stamp(a, 3)
    fin(a, name, 5)
    return a.text(), f + 4, c.lds

def k_spat(name):
    c = GemmCfg('spat', 128, 7, 2048, 5, 'ksplitT', 'nat', 'trp', ldt=4096, xm=4, xn=8, MT=16, NT=16)
    a = Asm()
    ZB = 2048*1792*2
    r, cc = prolog(a, name, c, B_WSP, 8*MB, 0, D_WS, ZB, WS_Z2, [(32, B_BSP)], 6)
    srd(a, 24, 36, ZB, WS_Z1); srd(a, 40, 36, ZB, WS_U); srd(a, 44, 32, 4096)
    f = r.free
    vZ, vB, vo = f, f+28, f+30
    a.e("s_lshl_b32 s56, s4, 7"); a.e("s_lshl_b32 s20, s6, 6"); a.e("s_add_u32 s56, s56, s20")
    a.e("s_lshl_b32 s20, s7, 5"); a.e("s_add_u32 s56, s56, s20")
    a.e("s_lshr_b32 s57, s56, 4"); a.e("s_mul_i32 s57, s57, 224"); a.e("s_mul_i32 s20, s5, 14")
    a.e("s_add_u32 s57, s57, s20"); a.e("s_lshl_b32 s57, s57, 8"); a.e(f"s_add_u32 s58, s57, {224*256}")
    a.e("v_and_b32 v2, 15, v1"); a.e("v_lshlrev_b32 v4, 4, v2")
    a.e("v_bfe_u32 v3, v1, 4, 1"); a.e("v_lshl_add_u32 v4, v3, 3, v4")
    a.e("v_lshrrev_b32 v3, 5, v1"); a.e("v_lshl_add_u32 v4, v3, 8, v4")
    for i in range(2):
        for j in range(7):
            a.e(f"buffer_load_dwordx2 {vr(vZ+(i*7+j)*2,2)}, v4, s[24:27], s{57+i} offen offset:{512*j}")
    a.e("v_lshlrev_b32 v2, 1, v2"); a.e("s_lshl_b32 s20, s56, 1")
    for i in range(2):
        a.e(f"buffer_load_ushort v{vB+i}, v2, s[44:47], s20 offen offset:{32*i}")
    lane_chunk_off(a, vo, 224)
    a.e("s_setprio 1")
    compute_loop(a, c, r)
    stamp(a, 2)
    ksplit_reduce(a, c, r)
    a.e("s_waitcnt vmcnt(0)")
    for i in range(2): a.e(f"v_lshlrev_b32 v{vB+i}, 16, v{vB+i}")
    for i in range(2):
        for j in range(7):
            x = r.acc + (i*7+j)*4; s = vZ + (i*7+j)*2
            for h in range(2):
                unpack(a, 2, 3, s+h)
                a.e(f"v_add_f32 v{x+2*h}, v{x+2*h}, v{vB+i}"); a.e(f"v_add_f32 v{x+2*h+1}, v{x+2*h+1}, v{vB+i}")
                a.e(f"v_mul_f32 v{x+2*h}, v{x+2*h}, v2"); a.e(f"v_mul_f32 v{x+2*h+1}, v{x+2*h+1}, v3")
    items = [(r.acc + j*4, r.acc + (7+j)*4, [],
              (lambda t, j=j: f"buffer_store_dwordx4 {vr(t,4)}, v{vo}, s[40:43], s57 offen offset:{512*j}{STF}")) for j in range(7)]
    store_pairs(a, items, r.T[0])
    stamp(a, 3)
    fin(a, name, 6)
    return a.text(), f + 31, c.lds

def k_wout(name):
    c = GemmCfg('wout', 64, 4, 1792, 6, 'ksplitF', 'frag', 'tr', ldf=2048, groups=(2, False), xm=8, xn=4, MT=32, NT=8)
    a = Asm()
    ZB = 2048*1792*2
    r, cc = prolog(a, name, c, D_WS, ZB, WS_U, B_WOUT, 1792*2048, 0, [(32, D_OUT)], 7)
    srd(a, 24, 32, 4*MB); srd(a, 40, 36, 24576); srd(a, 48, 36, 4*MB, WS_X1)
    f = r.free
    vX, vG, vo = f, f+16, f+32
    a.e("s_lshl_b32 s56, s4, 6"); a.e("s_lshl_b32 s20, s7, 5"); a.e("s_add_u32 s56, s56, s20")
    a.e("s_lshl_b32 s57, s5, 7"); a.e("s_lshl_b32 s20, s6, 6"); a.e("s_add_u32 s57, s57, s20")
    a.e("s_lshl_b32 s62, s56, 11"); a.e("s_lshl_b32 s20, s57, 5"); a.e("s_add_u32 s60, s62, s20"); a.e("s_add_u32 s61, s60, 32768")
    a.e("s_lshl_b32 s20, s57, 1"); a.e("s_add_u32 s62, s62, s20"); a.e("s_add_u32 s63, s62, 32768")
    a.e("v_and_b32 v2, 15, v1"); a.e("v_lshlrev_b32 v4, 4, v2")
    a.e("v_bfe_u32 v3, v1, 4, 1"); a.e("v_lshl_add_u32 v4, v3, 3, v4")
    a.e(f"v_lshlrev_b32 v{vo}, 11, v2"); a.e(f"v_lshl_add_u32 v{vo}, v3, 5, v{vo}")
    a.e("v_lshrrev_b32 v3, 5, v1"); a.e("v_lshl_add_u32 v4, v3, 8, v4"); a.e(f"v_lshl_add_u32 v{vo}, v3, 4, v{vo}")
    for i in range(2):
        for j in range(4):
            a.e(f"buffer_load_dwordx2 {vr(vX+(i*4+j)*2,2)}, v4, s[48:51], s{60+i} offen offset:{512*j}")
    a.e("v_lshrrev_b32 v3, 4, v1"); a.e("v_lshlrev_b32 v5, 4, v3")
    a.e("s_lshl_b32 s22, s57, 2"); a.e(f"s_add_u32 s23, s22, {5*4096}")
    for j in range(4):
        a.e(f"buffer_load_dwordx4 {vr(vG+4*j,4)}, v5, s[40:43], s23 offen offset:{64*j}")
    a.e("s_setprio 1")
    compute_loop(a, c, r)
    stamp(a, 2)
    ksplit_reduce(a, c, r)
    a.e("s_waitcnt vmcnt(0)")
    for i in range(2):
        for j in range(4):
            x = r.acc + (i*4+j)*4; s = vX + (i*4+j)*2
            for h in range(2):
                unpack(a, 2, 3, s+h)
                a.e(f"v_fma_f32 v{x+2*h}, v{x+2*h}, v{vG+4*j+2*h}, v2")
                a.e(f"v_fma_f32 v{x+2*h+1}, v{x+2*h+1}, v{vG+4*j+2*h+1}, v3")
    items = []
    for i in range(2):
        for jp in range(2):
            items.append((r.acc + (i*4+2*jp)*4, r.acc + (i*4+2*jp+1)*4, [],
                          (lambda t, i=i, jp=jp: f"buffer_store_dwordx4 {vr(t,4)}, v{vo}, s[24:27], s{62+i} offen offset:{64*jp}")))
    store_pairs(a, items, r.T[0])
    stamp(a, 3)
    fin(a, name, 7)
    return a.text(), f + 33, c.lds
```

```python
from common import *

def k_mod(name):
    a = Asm(); kernel_header(a, name)
    a.e("s_cmp_ge_u32 s2, 256"); a.e(f"s_cbranch_scc1 {name}_end")
    stamp_start(a)
    a.e(f"s_load_dwordx4 s[28:31], s[0:1], {IN_C}")
    a.e(f"s_load_dwordx4 s[32:35], s[0:1], {A_X}")
    a.e(f"s_load_dwordx2 s[36:37], s[0:1], {D_WS}")
    wave_id(a, 3)
    a.e("v_and_b32 v1, 63, v0")
    a.e("s_waitcnt lgkmcnt(0)")
    srd(a, 8, 28, 2048); srd(a, 12, 30, 1024*6144*2)
    srd(a, 16, 36, 1*MB)
    srd(a, 40, 32, 4*MB); srd(a, 44, 34, 6*MB)
    a.e("s_cmp_ge_u32 s2, 192"); a.e(f"s_cbranch_scc1 {name}_pf")
    a.e("v_lshrrev_b32 v2, 2, v0")
    a.e("v_and_b32 v3, 3, v0")
    a.e("v_mul_u32_u24 v4, 12288, v2")
    a.e("v_lshl_add_u32 v4, v3, 4, v4")
    a.e("s_lshl_b32 s20, s2, 6")
    a.e("v_lshlrev_b32 v5, 1, v2")
    for i in range(8):
        a.e(f"buffer_load_ushort v{8+i}, v5, s[8:11], 0 offen offset:{256*i}")
    for i in range(8):
        a.e(f"buffer_load_dwordx4 {vr(16+4*i,4)}, v4, s[12:15], s20 offen")
        if i < 7: a.e(f"s_add_u32 s20, s20, {128*12288}")
    a.label(f"{name}_pf")
    a.e("v_lshlrev_b32 v6, 2, v0"); a.e("s_lshl_b32 s21, s2, 11"); a.e(f"s_add_u32 s21, s21, {WS_ST1}")
    a.e(f"v_mov_b32 v7, {SENT}")
    a.e("buffer_store_dword v7, v6, s[16:19], s21 offen")
    a.e("s_lshl_b32 s22, s2, 3"); a.e("s_add_u32 s22, s22, s3")
    a.e("v_lshlrev_b32 v6, 6, v1")
    a.e("v_cmp_gt_u32 vcc, 48, v1"); a.e("s_and_saveexec_b64 s[24:25], vcc")
    a.e("s_mul_i32 s23, s22, 3072"); a.e("buffer_load_dword v48, v6, s[44:47], s23 offen")
    a.e("v_cmp_gt_u32 vcc, 32, v1"); a.e("s_and_b64 exec, exec, vcc")
    a.e("s_lshl_b32 s23, s22, 11"); a.e("buffer_load_dword v49, v6, s[40:43], s23 offen")
    a.e("s_mov_b64 exec, s[24:25]")
    a.e("s_cmp_ge_u32 s2, 192"); a.e(f"s_cbranch_scc1 {name}_fin")
    a.e("s_waitcnt vmcnt(11)")
    for i in range(8):
        r = 8+i
        a.e(f"v_lshlrev_b32 v{r}, 16, v{r}")
        a.e(f"v_mul_f32 v50, {hexf(-1.4426950408889634)}, v{r}")
        a.e("v_exp_f32 v50, v50"); a.e("s_nop 0")
        a.e("v_add_f32 v50, 1.0, v50"); a.e("v_rcp_f32 v50, v50"); a.e("s_nop 0")
        a.e(f"v_mul_f32 v{r}, v{r}, v50")
        rnd_bf16(a, r, r)
    for k in range(8): a.e(f"v_mov_b32 v{56+k}, 0")
    for i in range(8):
        a.e(f"s_waitcnt vmcnt({3+7-i})")
        for q in range(4):
            unpack(a, 50, 51, 16+4*i+q)
            a.e(f"v_fmac_f32 v{56+2*q}, v50, v{8+i}")
            a.e(f"v_fmac_f32 v{57+2*q}, v51, v{8+i}")
    regs = list(range(56, 64))
    for m in ("row_ror:4", "row_ror:8"):
        a.e("s_nop 1")
        for r in regs: a.e(f"v_add_f32_dpp v{r}, v{r}, v{r} {m} row_mask:0xf bank_mask:0xf")
    xrow_sum(a, regs, list(range(64, 72)))
    a.e("v_lshlrev_b32 v6, 5, v3"); a.e("s_lshl_b32 s21, s3, 7"); a.e("v_add_u32 v6, s21, v6")
    a.e("v_cmp_gt_u32 vcc, 4, v1"); a.e("s_and_saveexec_b64 s[24:25], vcc")
    a.e("ds_write_b128 v6, v[56:59]"); a.e("ds_write_b128 v6, v[60:63] offset:16")
    a.e("s_mov_b64 exec, s[24:25]")
    a.e("s_waitcnt lgkmcnt(0)"); a.e("s_barrier")
    a.e("s_cmp_lg_u32 s3, 0"); a.e(f"s_cbranch_scc1 {name}_fin")
    a.e("v_cmp_gt_u32 vcc, 32, v1"); a.e("s_and_saveexec_b64 s[24:25], vcc")
    a.e("v_lshlrev_b32 v6, 2, v1")
    for w in range(8): a.e(f"ds_read_b32 v{8+w}, v6 offset:{128*w}")
    a.e("s_waitcnt lgkmcnt(0)")
    for w in range(1, 8): a.e(f"v_add_f32 v8, v8, v{8+w}")
    rnd_bf16(a, 8, 8)
    a.e("s_lshr_b32 s21, s2, 5"); a.e("s_cmp_eq_u32 s21, 1"); a.e("s_cselect_b32 s22, 1, 0")
    a.e("s_cmp_eq_u32 s21, 4"); a.e("s_cselect_b32 s22, 1, s22"); a.e("s_cmp_eq_u32 s22, 0")
    a.e(f"s_cbranch_scc1 {name}_st")
    a.e("v_add_f32 v8, 1.0, v8"); rnd_bf16(a, 8, 8)
    a.label(f"{name}_st")
    a.e("s_lshl_b32 s21, s2, 7")
    a.e("buffer_store_dword v8, v6, s[16:19], s21 offen")
    a.label(f"{name}_fin")
    stamp_end(a, 0, 36, 3)
    a.label(f"{name}_end"); a.e("s_endpgm")
    return a.text(), 72, 1024

def k_ln1(name):
    a = Asm(); kernel_header(a, name)
    a.e("s_cmp_ge_u32 s2, 256"); a.e(f"s_cbranch_scc1 {name}_end")
    stamp_start(a)
    a.e(f"s_load_dwordx2 s[28:29], s[0:1], {A_X}")
    a.e(f"s_load_dwordx2 s[36:37], s[0:1], {D_WS}")
    wave_id(a, 3)
    a.e("v_and_b32 v1, 63, v0")
    a.e("v_lshlrev_b32 v2, 4, v1"); a.e("v_lshlrev_b32 v3, 5, v1")
    a.e("s_lshl_b32 s20, s2, 3"); a.e("s_add_u32 s20, s20, s3"); a.e("s_lshl_b32 s20, s20, 11")
    a.e("s_waitcnt lgkmcnt(0)")
    srd(a, 8, 28, 4*MB); srd(a, 12, 36, 24576); srd(a, 16, 36, 4*MB, WS_H)
    a.e("buffer_load_dwordx4 v[8:11], v2, s[8:11], s20 offen")
    a.e("buffer_load_dwordx4 v[12:15], v2, s[8:11], s20 offen offset:1024")
    a.e("s_movk_i32 s21, 0x1000")
    for h in range(2):
        for q in range(2):
            a.e(f"buffer_load_dwordx4 {vr(32+8*h+4*q,4)}, v3, s[12:15], 0 offen offset:{2048*h+16*q}")
            a.e(f"buffer_load_dwordx4 {vr(48+8*h+4*q,4)}, v3, s[12:15], s21 offen offset:{2048*h+16*q}")
    a.e("s_waitcnt vmcnt(8)")
    for i in range(8): unpack(a, 16+2*i, 17+2*i, 8+i)
    a.e("v_add_f32 v4, v16, v17")
    for i in range(2, 16): a.e(f"v_add_f32 v4, v4, v{16+i}")
    row16_sum(a, [4]); a.e("s_nop 0"); xrow_sum(a, [4], [5])
    a.e(f"v_mul_f32 v4, {hexf(1/1024)}, v4")
    for i in range(16): a.e(f"v_sub_f32 v{16+i}, v{16+i}, v4")
    a.e("v_mul_f32 v4, v16, v16")
    for i in range(1, 16): a.e(f"v_fmac_f32 v4, v{16+i}, v{16+i}")
    row16_sum(a, [4]); a.e("s_nop 0"); xrow_sum(a, [4], [5])
    a.e(f"v_mov_b32 v5, {hexf(1e-5)}")
    a.e(f"v_fmac_f32 v5, {hexf(1/1024)}, v4")
    a.e("v_rsq_f32 v5, v5"); a.e("s_nop 0")
    for i in range(16): a.e(f"v_mul_f32 v{16+i}, v{16+i}, v5")
    a.e("s_waitcnt vmcnt(0)")
    for i in range(16): a.e(f"v_fma_f32 v{16+i}, v{16+i}, v{48+i}, v{32+i}")
    for i in range(8): a.e(f"v_cvt_pk_bf16_f32 v{8+i}, v{16+2*i}, v{17+2*i}")
    a.e("v_and_b32 v4, 7, v1"); a.e("v_xor_b32 v4, s3, v4"); a.e("v_lshlrev_b32 v4, 4, v4")
    a.e("v_lshl_add_u32 v4, v1, 7, v4")
    a.e("ds_write_b128 v4, v[8:11]"); a.e("ds_write_b128 v4, v[12:15] offset:8192")
    a.e("v_lshlrev_b32 v5, 4, v0")
    a.e("v_lshrrev_b32 v6, 3, v0"); a.e("v_xor_b32 v7, v6, v0"); a.e("v_and_b32 v7, 7, v7")
    a.e("v_lshlrev_b32 v7, 4, v7"); a.e("v_lshl_add_u32 v7, v6, 8, v7")
    a.e("s_lshr_b32 s20, s2, 1"); a.e("s_lshl_b32 s20, s20, 15")
    a.e("s_and_b32 s21, s2, 1"); a.e("s_lshl_b32 s21, s21, 7"); a.e("s_add_u32 s20, s20, s21")
    a.e("s_add_u32 s21, s20, 16384")
    a.e("s_waitcnt lgkmcnt(0)"); a.e("s_barrier")
    a.e("ds_read_b128 v[8:11], v5"); a.e("ds_read_b128 v[12:15], v5 offset:8192")
    a.e("s_waitcnt lgkmcnt(1)")
    a.e("buffer_store_dwordx4 v[8:11], v7, s[16:19], s20 offen")
    a.e("s_waitcnt lgkmcnt(0)")
    a.e("buffer_store_dwordx4 v[12:15], v7, s[16:19], s21 offen")
    stamp_end(a, 1, 36, 3)
    a.label(f"{name}_end"); a.e("s_endpgm")
    return a.text(), 64, 16384
```

```python
import sys, re
import common
args = sys.argv[1:]
common.STAMPS = '--stamps' in args
from common import *
import k_small, k_gemm, k_attn
for m in (k_small, k_gemm, k_attn): m.STAMPS = common.STAMPS
out = [x for x in args if not x.startswith('--')][0]
ks = [('mod_kernel', k_small.k_mod, {}), ('ln1_kernel', k_small.k_ln1, {}), ('qkv_kernel', k_gemm.k_qkv, {}),
      ('attn_kernel', k_attn.k_attn, dict(force_fallback='--fallback' in args, side='--noside' not in args, exp=' '.join(args))),
      ('proj_kernel', k_gemm.k_proj, {}), ('win_kernel', k_gemm.k_win, {}), ('spat_kernel', k_gemm.k_spat, {}),
      ('wout_kernel', k_gemm.k_wout, {})]
ref = open('adaLN_cond__mha_block__mixer_gmlp__prompt.s.ref').read()
hdr = [l for l in ref.split('\n') if l.startswith(';') and '@launch' not in l and 'Override' not in l and 'grid=ceil' not in l]
body = ''; desc = ''; launches = []
for name, fn, kw in ks:
    t, vg, lds = fn(name, **kw)
    assert vg <= 256 and lds <= 163840, (name, vg, lds)
    body += t; desc += kernel_desc(name, vg, 102, 104)
    launches.append(f"; @launch kernel={name} grid=(256,1,1) block=(512,1,1) lds={lds}")
    print(name, 'vgpr', vg, 'lds', lds)
src = "\n".join(hdr + launches) + '\n.amdgcn_target "amdgcn-amd-amdhsa--gfx950"\n.text\n' + body + '.section .rodata,"a"\n' + desc
open(out, 'w').write(src)
print(len(src), 'bytes')
```

```python
import re
class Asm:
    def __init__(self):
        self.lines = []
        self.uid = 0
    def __call__(self, s=""):
        for l in s.split("\n"):
            self.lines.append(l)
    def e(self, s):
        m = re.match(r"s_cselect_b32 (s\d+), (\d+), (\d+)$", s)
        if m and int(m.group(2)) > 64 and int(m.group(3)) > 64:
            self.lines.append(f"    s_mov_b32 {m.group(1)}, {m.group(3)}")
            s = f"s_cmov_b32 {m.group(1)}, {m.group(2)}"
        self.lines.append("    " + s)
    def label(self, name):
        self.lines.append(name + ":")
    def newlabel(self, base):
        self.uid += 1
        return f"{base}_{self.uid}"
    def text(self):
        return "\n".join(self.lines) + "\n"

def vr(a, n=1):
    return f"v{a}" if n == 1 else f"v[{a}:{a+n-1}]"
def sr(a, n=1):
    return f"s{a}" if n == 1 else f"s[{a}:{a+n-1}]"

def kernel_header(a, name):
    a(f".globl {name}\n.p2align 8\n.type {name},@function\n{name}:")

def kernel_desc(name, vgpr, sgpr=102, kernarg=104):
    acc = (vgpr + 3) // 4 * 4
    return f""".p2align 6
.amdhsa_kernel {name}
  .amdhsa_next_free_vgpr {vgpr}
  .amdhsa_next_free_sgpr {sgpr}
  .amdhsa_accum_offset {acc}
  .amdhsa_group_segment_fixed_size 0
  .amdhsa_kernarg_size {kernarg}
  .amdhsa_user_sgpr_count 2
  .amdhsa_user_sgpr_kernarg_segment_ptr 1
  .amdhsa_system_sgpr_workgroup_id_x 1
.end_amdhsa_kernel
"""

def srd(a, d, base, nbytes, off_s=None):
    if off_s is None or off_s == 0:
        a.e(f"s_mov_b32 s{d}, s{base}")
        a.e(f"s_mov_b32 s{d+1}, s{base+1}")
    else:
        a.e(f"s_add_u32 s{d}, s{base}, {off_s}")
        a.e(f"s_addc_u32 s{d+1}, s{base+1}, 0")
    a.e(f"s_mov_b32 s{d+2}, {nbytes}")
    a.e(f"s_mov_b32 s{d+3}, 0x20000")

def interleave(a, mains, fills, start=0, per=1, every=1):
    fi = 0
    for i, m in enumerate(mains):
        a.e(m)
        if i >= start and (i - start) % every == 0:
            for _ in range(per):
                if fi < len(fills):
                    a.e(fills[fi]); fi += 1
    while fi < len(fills):
        a.e(fills[fi]); fi += 1
```

```python
from asmlib import *
A_X, A_WQKV, A_WO, B_X, B_WIN, B_WSP, B_BSP, B_WOUT, IN_C, W_MOD, D_OUT, D_DBG, D_WS = [8*i for i in range(13)]
MB = 1 << 20
WS_MOD   = 0
WS_ST1   = 64*1024
WS_UT    = 80*1024
WS_ST2   = 112*1024
WS_FLG   = 144*1024
WS_ST0   = 224*1024
WS_MP    = 256*1024
WS_STAMP = 1*MB
WS_H     = 2*MB
WS_Q     = 6*MB
WS_KV    = 10*MB
WS_O     = 18*MB
WS_H2    = 22*MB
WS_X1    = 26*MB
import os
REUSE = os.environ.get('REUSE', '0') == '1'
WS_Z1    = 2*MB if REUSE else 44*MB
WS_Z2    = 10*MB if REUSE else 52*MB
WS_U     = 18*MB if REUSE else 60*MB
WS_WO    = 30*MB
WS_WIN   = 32*MB
WS_WOUT  = 40*MB
SENT = 0xffffffff
QSCALE = 0.17677669529663687 * 1.4426950408889634
import struct
def f2u(x): return struct.unpack('<I', struct.pack('<f', x))[0]
def hexf(x): return hex(f2u(x))

STAMPS = False
def stamp(a, slot):
    if STAMPS: a.e(f"s_memtime s[{80+2*slot}:{81+2*slot}]")
def stamp_start(a):
    if STAMPS:
        stamp(a, 0); a.e("s_memrealtime s[92:93]"); a.e("s_getreg_b32 s94, hwreg(HW_REG_XCC_ID)")
        for i in (1,2,3): a.e(f"s_mov_b32 s{80+2*i}, 0")
def stamp_end(a, kidx, wsreg, wave_s, nw=8):
    if not STAMPS: return
    a.e("s_waitcnt vmcnt(0)")
    stamp(a, 4); a.e("s_memrealtime s[90:91]"); a.e("s_waitcnt lgkmcnt(0)")
    a.e("s_mov_b64 exec, -1")
    srd(a, 76, wsreg, 65536, WS_STAMP + kidx*65536)
    a.e("s_lshl_b32 s75, s2, 3"); a.e(f"s_add_u32 s75, s75, s{wave_s}"); a.e("s_lshl_b32 s75, s75, 5")
    for i in range(8): a.e(f"v_mov_b32 v{2+i}, s{80+2*i}")
    a.e("v_mov_b32 v10, s75")
    a.e("v_and_b32 v11, 63, v0"); a.e("v_cmp_eq_u32 vcc, 0, v11"); a.e("s_and_saveexec_b64 s[74:75], vcc")
    a.e("buffer_store_dwordx4 v[2:5], v10, s[76:79], 0 offen")
    a.e("buffer_store_dwordx4 v[6:9], v10, s[76:79], 0 offen offset:16")

def wave_id(a, sdst, vtmp=1):
    a.e(f"v_lshrrev_b32 v{vtmp}, 6, v0"); a.e("s_nop 0"); a.e(f"v_readfirstlane_b32 s{sdst}, v{vtmp}")

def xrow_sum(a, regs, tmps):
    for op in ("v_permlane16_swap_b32", "v_permlane32_swap_b32"):
        for r, t in zip(regs, tmps): a.e(f"v_mov_b32 v{t}, v{r}")
        if len(regs) < 3: a.e("s_nop 1")
        for r, t in zip(regs, tmps): a.e(f"{op} v{r}, v{t}")
        a.e("s_nop 0")
        for r, t in zip(regs, tmps): a.e(f"v_add_f32 v{r}, v{r}, v{t}")

def row16_sum(a, regs):
    for m in ("quad_perm:[1,0,3,2]", "quad_perm:[2,3,0,1]", "row_half_mirror", "row_mirror"):
        a.e("s_nop 1")
        for r in regs: a.e(f"v_add_f32_dpp v{r}, v{r}, v{r} {m} row_mask:0xf bank_mask:0xf")

def rnd_bf16(a, dst, src):
    a.e(f"v_cvt_pk_bf16_f32 v{dst}, v{src}, v{src}")
    a.e(f"v_and_b32 v{dst}, 0xffff0000, v{dst}")

def unpack(a, lo, hi, src):
    a.e(f"v_lshlrev_b32 v{lo}, 16, v{src}")
    a.e(f"v_and_b32 v{hi}, 0xffff0000, v{src}")

def prefetch(a, srd_s, nbytes, vaddr, vtmp, slice_reg, nslices, step=128, dst=None):
    per = nbytes // nslices
    n = (per + 64*step - 1) // (64*step)
    a.e(f"s_mul_i32 s23, s{slice_reg}, {per}")
    for i in range(n):
        a.e(f"buffer_load_dword v{vtmp}, v{vaddr}, s[{srd_s}:{srd_s+3}], s23 offen")
        if i + 1 < n: a.e(f"s_add_u32 s23, s23, {64*step}")
```

```python
from asmlib import *

class GemmCfg:
    def __init__(s, name, TM, NB, K, NS, mode, tmode, fmode, ldt=None, ldf=None,
                 groups=None, swap=None, xm=None, xn=None, MT=None, NT=None):
        s.name = name; s.TM = TM; s.NB = NB; s.K = K; s.NS = NS
        s.mode = mode
        s.tmode = tmode
        s.fmode = fmode
        s.ldt = ldt; s.ldf = ldf
        s.groups = groups
        s.swap = swap or [False]*NB
        s.xm = xm; s.xn = xn
        s.MT = MT; s.NT = NT
        s.nT = TM // 8
        if fmode == 'tr':
            full, half = groups
            s.nF = full*8 + (4 if half else 0)
        else:
            s.nF = NB*2*(1 if mode == 'ksplitT' else 2)
        s.stage = (s.nT + s.nF)*1024
        s.nk = K // 64
        s.lds = s.stage*NS
        s.ksplit = mode != '2x2'

V_ACC = 8

def decode_tile(a, c):
    import math
    rx = c.MT // c.xm
    lrx = int(math.log2(rx)); lxm = int(math.log2(c.xm))
    a.e("s_and_b32 s20, s2, 7")
    a.e("s_lshr_b32 s21, s2, 3")
    a.e(f"s_and_b32 s4, s20, {rx-1}")
    a.e(f"s_lshl_b32 s4, s4, {lxm}")
    a.e(f"s_and_b32 s22, s21, {c.xm-1}")
    a.e("s_add_u32 s4, s4, s22")
    a.e(f"s_lshr_b32 s5, s20, {lrx}")
    a.e(f"s_mul_i32 s5, s5, {c.xn}")
    a.e(f"s_lshr_b32 s22, s21, {lxm}")
    a.e("s_add_u32 s5, s5, s22")

def loader(a, c, fcol_bytes, pre=None, tail=None, postP=None, xf=None, fitem=None, extra=None, lfin=None):
    n = c.name
    vL = 1
    a.e(f"v_and_b32 v{vL}, 63, v0")
    nTi = c.nT // 4
    vT0 = 8
    vF0 = vT0 + nTi
    if c.tmode == 'frag':
        kb = c.K // 32
        a.e(f"s_mul_i32 s20, s4, {c.TM//16}")
        a.e("s_lshr_b32 s21, s3, 1")
        a.e("s_add_u32 s20, s20, s21")
        a.e(f"s_mul_i32 s20, s20, {kb*1024}")
        a.e("s_and_b32 s21, s3, 1")
        a.e("s_lshl_b32 s21, s21, 10")
        a.e("s_add_u32 s20, s20, s21")
        a.e(f"v_lshlrev_b32 v2, 4, v{vL}")
        a.e(f"v_add_u32 v{vT0}, s20, v2")
        for t in range(1, nTi):
            a.e(f"v_add_u32 v{vT0+t}, {t*2*kb*1024}, v{vT0}")
        dT = 2048
    else:
        a.e(f"v_lshrrev_b32 v2, 4, v{vL}")
        a.e("s_and_b32 s21, s3, 1")
        a.e("s_lshl_b32 s21, s21, 2")
        a.e("v_or_b32 v2, s21, v2")
        a.e(f"v_and_b32 v3, 7, v{vL}")
        a.e("v_xor_b32 v2, v2, v3")
        a.e("v_lshlrev_b32 v2, 4, v2")
        a.e(f"v_lshrrev_b32 v3, 3, v{vL}")
        a.e(f"s_mul_i32 s20, s4, {c.TM}")
        a.e("s_lshl_b32 s21, s3, 3")
        a.e("s_add_u32 s20, s20, s21")
        a.e("v_add_u32 v3, s20, v3")
        a.e(f"s_mov_b32 s21, {c.ldt}")
        a.e("v_mul_lo_u32 v3, v3, s21")
        a.e(f"v_add_u32 v{vT0}, v2, v3")
        for t in range(1, nTi):
            a.e(f"v_add_u32 v{vT0+t}, {t*32*c.ldt}, v{vT0}")
        dT = 128
    if c.fmode == 'tr':
        full, half = c.groups
        a.e(f"v_bfe_u32 v2, v{vL}, 4, 1")
        a.e("s_and_b32 s21, s3, 1")
        a.e("s_lshl_b32 s21, s21, 1")
        a.e("v_or_b32 v2, s21, v2")
        a.e(f"v_bfe_u32 v3, v{vL}, 1, 2")
        a.e("v_xor_b32 v2, v2, v3")
        a.e("v_lshlrev_b32 v2, 5, v2")
        a.e(f"v_and_b32 v3, 1, v{vL}")
        a.e("v_lshl_add_u32 v2, v3, 4, v2")
        a.e(f"v_lshrrev_b32 v3, 3, v{vL}")
        a.e("s_lshl_b32 s21, s3, 3")
        a.e("v_add_u32 v3, s21, v3")
        a.e(f"s_mov_b32 s21, {c.ldf}")
        a.e("v_mul_lo_u32 v3, v3, s21")
        a.e("v_add_u32 v2, v2, v3")
        for G in range(full):
            fcol_bytes(a, G, 20)
            a.e(f"v_add_u32 v{vF0+2*G}, s20, v2")
            a.e(f"v_add_u32 v{vF0+2*G+1}, {32*c.ldf}, v{vF0+2*G}")
        nFi = [2*full + (1 if half else 0)]*4
        if half:
            a.e(f"v_bfe_u32 v2, v{vL}, 1, 1")
            a.e(f"v_lshrrev_b32 v3, 5, v{vL}")
            a.e("v_xor_b32 v2, v2, v3")
            a.e("v_lshlrev_b32 v2, 5, v2")
            a.e(f"v_and_b32 v3, 1, v{vL}")
            a.e("v_lshl_add_u32 v2, v3, 4, v2")
            a.e(f"v_lshrrev_b32 v3, 2, v{vL}")
            a.e("s_lshl_b32 s21, s3, 4")
            a.e("v_add_u32 v3, s21, v3")
            a.e(f"s_mov_b32 s21, {c.ldf}")
            a.e("v_mul_lo_u32 v3, v3, s21")
            a.e("v_add_u32 v2, v2, v3")
            fcol_bytes(a, 'H', 20)
            a.e(f"v_add_u32 v{vF0+2*full}, s20, v2")
        dF = 64*c.ldf
    else:
        kb = c.K // 32
        fcol_bytes(a, 0, 20)
        a.e("s_lshr_b32 s21, s3, 1")
        a.e("s_add_u32 s20, s20, s21")
        a.e(f"s_mul_i32 s20, s20, {kb*1024}")
        a.e("s_and_b32 s21, s3, 1")
        a.e("s_lshl_b32 s21, s21, 10")
        a.e("s_add_u32 s20, s20, s21")
        a.e(f"v_lshlrev_b32 v2, 4, v{vL}")
        a.e(f"v_add_u32 v{vF0}, s20, v2")
        mx = (c.nF + 3)//4
        for t in range(1, mx):
            a.e(f"v_add_u32 v{vF0+t}, {t*2*kb*1024}, v{vF0}")
        if fitem:
            for t in range(mx):
                fitem(a, t, 20)
                a.e(f"s_mul_i32 s20, s20, {kb*1024}"); a.e("s_add_u32 s20, s20, s21")
                a.e(f"v_add_u32 v{vF0+t}, s20, v2")
        nFi = [len(range(w, c.nF, 4)) for w in range(4)]
        dF = 2048
    a.e("s_mov_b32 s16, 0")
    a.e("s_mov_b32 s17, 0")
    a.e("s_lshl_b32 s18, s3, 10")
    a.e(f"s_add_u32 s23, s18, {c.lds}")
    if pre: pre(a)

    def issue(nf):
        for t in range(nTi):
            a.e(f"s_add_u32 m0, s18, {t*4096}")
            a.e("s_nop 0")
            a.e(f"buffer_load_dwordx4 v{vT0+t}, s[8:11], s16 offen{getattr(c,'ldflag','')} lds")
        for t in range(nf):
            a.e(f"s_add_u32 m0, s18, {(c.nT + 4*t)*1024}")
            a.e("s_nop 0")
            a.e(f"buffer_load_dwordx4 v{vF0+t}, s[12:15], s17 offen{getattr(c,'ldflag','')} lds")
        a.e(f"s_add_u32 s16, s16, {dT}")
        a.e(f"s_add_u32 s17, s17, {dF}")
        a.e(f"s_add_u32 s18, s18, {c.stage}")
        a.e("s_cmp_ge_u32 s18, s23")
        a.e(f"s_cselect_b32 s20, {c.lds}, 0")
        a.e("s_sub_u32 s18, s18, s20")

    def issueT():
        for t in range(nTi):
            a.e(f"s_add_u32 m0, s18, {t*4096}")
            a.e("s_nop 0")
            a.e(f"buffer_load_dwordx4 v{vT0+t}, s[8:11], s16 offen lds")
        a.e(f"s_add_u32 s16, s16, {dT}")
        a.e(f"s_add_u32 s18, s18, {c.stage}")
        a.e("s_cmp_ge_u32 s18, s23")
        a.e(f"s_cselect_b32 s20, {c.lds}, 0")
        a.e("s_sub_u32 s18, s18, s20")

    def xf_variant(vi, nf):
        D = c.NS - 2; vB = 32; vW = 30; per = nTi + nf + 1
        srd_st, vst = xf['srd'], xf['vaddr']
        a.e(f"v_lshlrev_b32 v{vW}, 4, v{vL}"); a.e("s_lshl_b32 s20, s3, 10"); a.e(f"s_add_u32 s20, s20, {c.nT*1024}")
        a.e(f"v_add_u32 v{vW}, s20, v{vW}")
        a.e("s_mov_b32 s38, 0"); a.e("s_mov_b32 s39, 0")
        def issueF(bi):
            b = vB + 20*bi
            a.e(f"buffer_load_dwordx2 {vr(b+16,2)}, v{vst}, s[{srd_st}:{srd_st+3}], s39 offen")
            for t in range(nf):
                a.e(f"buffer_load_dwordx4 {vr(b+4*t,4)}, v{vF0+t}, s[12:15], s17 offen")
            a.e(f"s_add_u32 s17, s17, {dF}"); a.e("s_add_u32 s39, s39, 512")
        def xform(bi):
            b = vB + 20*bi; tmp = 100
            xf['finish'](a, b+16, b+17, b+18)
            a.e(f"v_add_u32 v{vW+1}, s38, v{vW}")
            for t in range(nf):
                u = tmp + 8*(t & 1)
                for q in range(4):
                    a.e(f"v_lshlrev_b32 v{u+2*q}, 16, v{b+4*t+q}")
                    a.e(f"v_and_b32 v{u+2*q+1}, 0xffff0000, v{b+4*t+q}")
                for q in range(4):
                    a.e(f"v_pk_fma_f32 {vr(u+2*q,2)}, {vr(u+2*q,2)}, {vr(b+16,2)}, {vr(b+16,2)} op_sel:[0,0,1] op_sel_hi:[1,0,1]")
                o = tmp + 16 + 4*t
                for q in range(4):
                    a.e(f"v_cvt_pk_bf16_f32 v{o+q}, v{u+2*q}, v{u+2*q+1}")
                a.e(f"ds_write_b128 v{vW+1}, {vr(o,4)} offset:{4096*t}")
            a.e(f"s_add_u32 s38, s38, {c.stage}"); a.e(f"s_cmp_ge_u32 s38, {c.lds}"); a.e("s_cselect_b32 s38, 0, s38")
        f1 = nf + 1
        issueT(); issueF(0); issueT(); issueF(1); issueT(); issueF(2)
        a.e(f"s_waitcnt vmcnt({2*per})"); xform(0); issueT(); issueF(0)
        a.e("s_waitcnt lgkmcnt(0)"); a.e("s_barrier")
        a.e(f"s_waitcnt vmcnt({2*per})"); xform(1); issueT(); issueF(1)
        a.e("s_waitcnt lgkmcnt(0)")
        nsteady = c.nk - c.NS
        assert nsteady % 3 == 0 and D == 3
        a.e(f"s_mov_b32 s19, {nsteady//3}")
        a.label(f"{n}_ld_loop{vi}")
        for u in range(3):
            a.e("s_barrier")
            issueT()
            a.e(f"s_waitcnt vmcnt({2*per + nTi})")
            xform((u+2) % 3); issueF((u+2) % 3)
            a.e("s_waitcnt lgkmcnt(0)")
        a.e("s_sub_u32 s19, s19, 1")
        a.e("s_cmp_lg_u32 s19, 0")
        a.e(f"s_cbranch_scc1 {n}_ld_loop{vi}")
        for i in range(nsteady, c.nk):
            a.e("s_barrier")
            st = i + 2
            if st < c.nk:
                a.e(f"s_waitcnt vmcnt({(c.nk-1-st)*per})")
                xform(st % 3)
                a.e("s_waitcnt lgkmcnt(0)")
        a.e("s_endpgm")

    variants = sorted(set(nFi), reverse=True)
    for vi, nf in enumerate(variants):
        if len(variants) > 1 and vi == 0:
            cnt = nFi.count(nf)
            a.e(f"s_cmp_ge_u32 s3, {cnt}")
            a.e(f"s_cbranch_scc1 {n}_ld_v1")
        if vi == 1:
            a.label(f"{n}_ld_v1")
        if xf is not None:
            xf_variant(vi, nf); continue
        per = nTi + nf
        for st in range(c.NS):
            issue(nf)
        a.e(f"s_waitcnt vmcnt({per*(c.NS-1)})")
        a.e("s_barrier")
        if postP: postP(a)
        nsteady = c.nk - c.NS
        a.e(f"s_mov_b32 s19, {nsteady}")
        a.label(f"{n}_ld_loop{vi}")
        a.e(f"s_waitcnt vmcnt({per*(c.NS-2)})")
        a.e("s_barrier")
        issue(nf)
        a.e("s_sub_u32 s19, s19, 1")
        a.e("s_cmp_lg_u32 s19, 0")
        a.e(f"s_cbranch_scc1 {n}_ld_loop{vi}")
        for i in range(c.nk - c.NS, c.nk):
            rem = c.nk - 1 - (i + 1)
            idx = i - (c.nk - c.NS)
            E = extra[0] if (extra and idx >= 1) else 0
            if rem >= 0:
                a.e(f"s_waitcnt vmcnt({per*rem + E})")
            elif extra:
                a.e("s_waitcnt vmcnt(0)")
            a.e("s_barrier")
            if extra and idx == 0: extra[1](a)
        if lfin: lfin(a)
        a.e("s_endpgm")

class Regs: pass

def compute_setup(a, c, fblock):
    r = Regs()
    NB = c.NB
    r.acc = V_ACC
    nacc = 4*NB*4
    r.T = [r.acc + nacc, r.acc + nacc + 16 + NB*4]
    r.F = [r.T[0] + 16, r.T[1] + 16]
    nxt = r.T[1] + 16 + NB*4
    r.lane = 1
    a.e("v_and_b32 v1, 63, v0")
    if c.mode == '2x2':
        a.e("s_and_b32 s6, s3, 1")
        a.e("s_lshr_b32 s7, s3, 1")
    elif c.mode == 'ksplitT':
        a.e("s_and_b32 s6, s3, 1")
        a.e("s_lshr_b32 s7, s3, 1")
    else:
        a.e("s_and_b32 s6, s3, 1")
        a.e("s_lshr_b32 s7, s3, 1")
    r.Tb = nxt; r.Tc = nxt + 1; nxt += 2
    if c.tmode == 'frag':
        a.e(f"v_lshlrev_b32 v{r.Tb}, 4, v1")
        if c.mode != 'ksplitF':
            a.e("s_lshl_b32 s20, s6, 13")
            a.e(f"v_add_u32 v{r.Tb}, s20, v{r.Tb}")
        if c.ksplit:
            a.e("s_lshl_b32 s20, s7, 10")
            a.e(f"v_add_u32 v{r.Tb}, s20, v{r.Tb}")
        r.t_off = lambda i, sub: i*2048 + sub*1024
    else:
        assert c.ksplit
        a.e("v_and_b32 v2, 15, v1")
        a.e("v_lshrrev_b32 v3, 4, v1")
        a.e("s_lshl_b32 s20, s7, 2")
        a.e("v_or_b32 v3, s20, v3")
        a.e("v_lshrrev_b32 v4, 1, v2")
        a.e("v_xor_b32 v3, v3, v4")
        a.e("v_lshlrev_b32 v3, 4, v3")
        a.e(f"v_lshl_add_u32 v{r.Tb}, v2, 7, v3")
        if c.mode == 'ksplitT':
            a.e("s_lshl_b32 s20, s6, 13")
            a.e(f"v_add_u32 v{r.Tb}, s20, v{r.Tb}")
        r.t_off = lambda i, sub: i*2048
    fbase = c.nT*1024
    if c.fmode == 'tr':
        r.Fb = nxt; r.Fc = nxt + NB; nxt += 2*NB
        a.e("v_lshrrev_b32 v2, 4, v1")
        a.e("v_bfe_u32 v3, v1, 2, 2")
        a.e("v_lshl_add_u32 v4, v2, 3, v3")
        a.e("v_and_b32 v5, 3, v1")
        a.e("v_lshlrev_b32 v5, 3, v5")
        a.e("v_and_b32 v2, 1, v2")
        a.e("v_lshrrev_b32 v3, 1, v3")
        a.e("v_lshl_or_b32 v3, v2, 1, v3")
        r.fhalf = []
        for j in range(NB):
            half = fblock(a, j)
            r.fhalf.append(half)
            a.e(f"v_xor_b32 v6, s21, v{2 if half else 3}")
            a.e("v_lshl_add_u32 v6, v6, 5, v5")
            a.e(f"v_lshl_add_u32 v6, v4, {6 if half else 7}, v6")
            a.e(f"s_add_u32 s20, s20, {fbase}")
            if c.ksplit:
                a.e(f"s_lshl_b32 s22, s7, {11 if half else 12}")
                a.e("s_add_u32 s20, s20, s22")
            a.e(f"v_add_u32 v{r.Fb+j}, s20, v6")
        r.nFa = NB
    else:
        r.Fb = nxt; r.Fc = nxt + 1; nxt += 2
        if c.fmode == 'trp':
            a.e("v_bfe_u32 v2, v1, 2, 3")
            a.e("v_lshrrev_b32 v3, 5, v1")
            a.e("v_lshl_add_u32 v2, v3, 4, v2")
            a.e("v_and_b32 v3, 3, v1")
            a.e("v_lshlrev_b32 v3, 3, v3")
            a.e(f"v_lshl_add_u32 v{r.Fb}, v2, 5, v3")
        else:
            a.e(f"v_lshlrev_b32 v{r.Fb}, 4, v1")
        a.e(f"s_mov_b32 s20, {fbase}")
        if c.ksplit:
            a.e("s_lshl_b32 s22, s7, 10")
            a.e("s_add_u32 s20, s20, s22")
        if c.mode != 'ksplitT':
            a.e(f"s_mul_i32 s22, s{7 if c.mode == '2x2' else 6}, {NB*2048}")
            a.e("s_add_u32 s20, s20, s22")
        a.e(f"v_add_u32 v{r.Fb}, s20, v{r.Fb}")
        r.nFa = 1
    r.free = nxt
    for i in range(nacc):
        a.e(f"v_mov_b32 v{r.acc+i}, 0")
    return r

def reads(c, r, buf, sub):
    out = []
    tl = []
    for i in range(4):
        tl.append(f"ds_read_b128 {vr(r.T[buf]+4*i,4)}, v{r.Tc} offset:{r.t_off(i,sub)}")
    fl = []
    for j in range(c.NB):
        if c.fmode == 'tr':
            h = r.fhalf[j]
            for q in range(2):
                off = sub*(2048 if h else 4096) + q*(256 if h else 512)
                fl.append(f"ds_read_b64_tr_b16 {vr(r.F[buf]+4*j+2*q,2)}, v{r.Fc+j} offset:{off}")
        elif c.fmode == 'trp':
            for q in range(2):
                fl.append(f"ds_read_b64_tr_b16 {vr(r.F[buf]+4*j+2*q,2)}, v{r.Fc} offset:{j*2048+sub*1024+q*256}")
        else:
            fl.append(f"ds_read_b128 {vr(r.F[buf]+4*j,4)}, v{r.Fc} offset:{j*2048+sub*1024}")
    return tl + fl

def mfmas(c, r, buf):
    out = []
    for j in range(c.NB):
        for i in range(4):
            d = vr(r.acc + (i*c.NB + j)*4, 4)
            t = vr(r.T[buf]+4*i, 4); f = vr(r.F[buf]+4*j, 4)
            if c.swap[j]:
                out.append(f"v_mfma_f32_16x16x32_bf16 {d}, {t}, {f}, {d}")
            else:
                out.append(f"v_mfma_f32_16x16x32_bf16 {d}, {f}, {t}, {d}")
    return out

def setslot(c, r):
    o = [f"v_add_u32 v{r.Tc}, s18, v{r.Tb}"]
    for j in range(r.nFa):
        o.append(f"v_add_u32 v{r.Fc+j}, s18, v{r.Fb+j}")
    return o

def advslot(c):
    return [f"s_add_u32 s18, s18, {c.stage}", f"s_cmp_ge_u32 s18, {c.lds}",
            "s_cselect_b32 s18, 0, s18"]

def compute_loop(a, c, r, nomfma=False, noread=False, afterP=None):
    n = c.name
    mf = (lambda b: []) if nomfma else (lambda b: mfmas(c, r, b))
    rd = (lambda b, s: []) if noread else (lambda b, s: reads(c, r, b, s))
    a.e("s_mov_b32 s18, 0")
    for x in setslot(c, r): a.e(x)
    a.e("s_barrier")
    if getattr(c, 'stampP', None): a.e(c.stampP)
    for x in rd(0, 0): a.e(x)
    if afterP: afterP()
    if not c.ksplit:
        a.e(f"s_mov_b32 s19, {c.nk}")
        a.e("s_waitcnt lgkmcnt(0)")
        a(".p2align 6")
        a.label(f"{n}_c_loop")
        interleave(a, mf(0), rd(1, 1) + advslot(c) + setslot(c, r))
        a.e("s_waitcnt lgkmcnt(0)")
        a.e("s_barrier")
        interleave(a, mf(1), rd(0, 0) + ["s_sub_u32 s19, s19, 1", "s_cmp_lg_u32 s19, 0"])
        a.e("s_waitcnt lgkmcnt(0)")
        a.e(f"s_cbranch_scc1 {n}_c_loop")
    else:
        assert c.nk % 2 == 0
        a.e(f"s_mov_b32 s19, {c.nk//2}")
        for x in advslot(c) + setslot(c, r): a.e(x)
        a(".p2align 6")
        a.label(f"{n}_c_loop")
        for b in range(2):
            a.e("s_waitcnt lgkmcnt(0)")
            a.e("s_barrier")
            extra = advslot(c) + setslot(c, r)
            if b == 1: extra += ["s_sub_u32 s19, s19, 1", "s_cmp_lg_u32 s19, 0"]
            interleave(a, mf(b), rd(1-b, 0) + extra)
        a.e(f"s_cbranch_scc1 {n}_c_loop")
        a.e("s_waitcnt lgkmcnt(0)")
    a.e("s_nop 7")
    a.e("s_nop 7")

def ksplit_reduce(a, c, r):
    NB = c.NB
    n = c.name
    sz = 2*NB*1024
    a.e("s_barrier")
    a.e(f"s_mul_i32 s20, s3, {sz}")
    a.e("v_lshlrev_b32 v2, 4, v1")
    a.e("v_add_u32 v3, s20, v2")
    a.e("s_xor_b32 s21, s3, 2")
    a.e(f"s_mul_i32 s21, s21, {sz}")
    a.e("v_add_u32 v4, s21, v2")
    a.e("s_cmp_eq_u32 s7, 0")
    a.e(f"s_cbranch_scc0 {n}_red_k1")
    for x in range(2*NB):
        a.e(f"ds_write_b128 v3, {vr(r.acc + (2*NB + x)*4, 4)} offset:{x*1024}")
    a.e(f"s_branch {n}_red_j")
    a.label(f"{n}_red_k1")
    for x in range(2*NB):
        a.e(f"ds_write_b128 v3, {vr(r.acc + x*4, 4)} offset:{x*1024}")
    a.e("s_nop 1")
    for x in range(2*NB*4):
        a.e(f"v_mov_b32 v{r.acc + x}, v{r.acc + 2*NB*4 + x}")
    a.label(f"{n}_red_j")
    a.e("s_waitcnt lgkmcnt(0)")
    a.e("s_barrier")
    base = r.acc + 2*NB*4
    for x in range(2*NB):
        a.e(f"ds_read_b128 {vr(base + x*4, 4)}, v4 offset:{x*1024}")
    for x in range(2*NB):
        a.e(f"s_waitcnt lgkmcnt({min(15, 2*NB-1-x)})")
        for q in range(4):
            a.e(f"v_add_f32 v{r.acc + x*4 + q}, v{r.acc + x*4 + q}, v{base + x*4 + q}")
```

```python
from common import *

MARGIN = 40.0
NSLOT = 4
CH = 32768
STG = NSLOT*CH

def k_attn(name, force_fallback=False, side=True, exp=''):
    a = Asm(); kernel_header(a, name)
    n = name
    a.e("s_cmp_ge_u32 s2, 256"); a.e(f"s_cbranch_scc1 {n}_end")
    stamp_start(a)
    a.e(f"s_load_dwordx2 s[36:37], s[0:1], {D_WS}")
    a.e(f"s_load_dwordx2 s[28:29], s[0:1], {A_WO}")
    a.e(f"s_load_dwordx4 s[48:51], s[0:1], {B_WIN}")
    a.e(f"s_load_dwordx2 s[52:53], s[0:1], {B_WOUT}")
    wave_id(a, 3)
    attn_body(a, n, force_fallback, side)
    a.label(f"{n}_end"); a.e("s_endpgm")
    return a.text(), 168, STG + 32768

def attn_body(a, n, force_fallback, side, wait_in=None, done=None, hdone=None):
    a.e("s_and_b32 s4, s2, 7"); a.e("s_lshl_b32 s4, s4, 2"); a.e("s_lshr_b32 s20, s2, 6"); a.e("s_add_u32 s4, s4, s20")
    a.e("s_bfe_u32 s5, s2, 0x30003")
    a.e("v_and_b32 v1, 63, v0")
    vL16 = 4
    a.e(f"v_lshlrev_b32 v{vL16}, 4, v1")
    a.e("s_mov_b32 s33, 0")
    a.e("s_cmp_ge_u32 s3, 4"); a.e(f"s_cbranch_scc0 {n}_comp")
    a.e("s_and_b32 s30, s3, 3")
    vD = 5
    a.e("s_lshl_b32 s6, s30, 13"); a.e(f"v_add_u32 v{vD}, s6, v{vL16}"); a.e(f"v_add_u32 v{vD+1}, 4096, v{vD}")
    a.e("s_lshl_b32 s21, s4, 18")
    a.e("s_waitcnt lgkmcnt(0)")
    srd(a, 8, 36, 262144, WS_KV); a.e("s_add_u32 s8, s8, s21"); a.e("s_addc_u32 s9, s9, 0")
    if wait_in: wait_in(a)
    def kv(c):
        a.e(f"s_mov_b32 s16, {c*CH}")
        for h in range(2):
            a.e(f"s_add_u32 m0, s6, {(c % NSLOT)*CH + 4096*h}"); a.e("s_nop 0")
            for i in range(4):
                a.e(f"buffer_load_dwordx4 v{vD+h}, s[8:11], s16 offen offset:{1024*i} lds")
        return 8
    vSF, vX, vDD, vSA, vSR = 32, 64, 72, 88, 92
    ops = []
    def wait_for(tag):
        last = max(i for i, t in enumerate(ops) if t == tag)
        a.e(f"s_waitcnt vmcnt({min(63, len(ops) - 1 - last)})")
    for c in range(3): ops += [f"c{c}"]*kv(c)
    if side:
        a.e("s_lshl_b32 s22, s2, 2"); a.e("s_add_u32 s22, s22, s30")
        a.e("s_cmp_lt_u32 s2, 224"); a.e("s_cselect_b32 s62, 1, 0")
        a.e("s_cselect_b32 s40, s48, s28"); a.e("s_cselect_b32 s41, s49, s29")
        a.e(f"s_cselect_b32 s42, {1024*7168}, {2*MB}"); a.e("s_mov_b32 s43, 0x20000")
        a.e("s_cselect_b32 s44, s52, s28"); a.e("s_cselect_b32 s45, s53, s29")
        a.e(f"s_cselect_b32 s46, {1792*2048}, {2*MB}"); a.e("s_mov_b32 s47, 0x20000")
        a.e("s_cselect_b32 s54, 7168, 2048")
        a.e(f"s_cselect_b32 s56, {WS_WIN-WS_WO}, 0"); a.e(f"s_cselect_b32 s60, {WS_WOUT-WS_WO}, 0")
        a.e(f"s_cselect_b32 s61, {56*1024}, 32768")
        a.e("s_lshr_b32 s20, s2, 2"); a.e("s_and_b32 s31, s22, 15"); a.e("s_cmp_lt_u32 s2, 224"); a.e("s_cselect_b32 s20, s20, s31")
        a.e("s_and_b32 s21, s22, 15"); a.e("s_lshl_b32 s21, s21, 1")
        a.e("s_sub_u32 s23, s22, 896"); a.e("s_lshr_b32 s23, s23, 4"); a.e("s_lshl_b32 s23, s23, 2")
        a.e("s_lshr_b32 s32, s22, 4"); a.e("s_add_u32 s34, s23, 2")
        a.e("s_cmp_lt_u32 s2, 224"); a.e("s_cselect_b32 s21, s21, s23"); a.e("s_cselect_b32 s32, s32, s34")
        a.e("s_lshl_b32 s63, s20, 8"); a.e("s_lshl_b32 s68, s21, 7")
        a.e("s_mul_i32 s55, s21, s54"); a.e("s_lshl_b32 s55, s55, 5"); a.e("s_lshl_b32 s23, s20, 7"); a.e("s_add_u32 s55, s55, s23")
        a.e("s_add_u32 s23, s23, s21"); a.e("s_lshl_b32 s23, s23, 10"); a.e("s_add_u32 s56, s56, s23")
        a.e("s_mov_b32 s57, 32768")
        a.e("s_lshl_b32 s59, s32, 16"); a.e("s_lshl_b32 s23, s31, 7"); a.e("s_add_u32 s59, s59, s23")
        a.e("s_mul_i32 s23, s31, s61"); a.e("s_lshl_b32 s23, s23, 2"); a.e("s_add_u32 s60, s60, s23")
        a.e("s_lshl_b32 s23, s32, 10"); a.e("s_add_u32 s60, s60, s23")
        a.e("s_lshl_b32 s69, s22, 13")
        srd(a, 64, 36, 14*MB, WS_WO); srd(a, 72, 36, 128*1024); srd(a, 96, 50, 8*MB)
        a.e("v_and_b32 v8, 1, v1"); a.e("v_sub_u32 v8, 4, v8"); a.e("v_lshlrev_b32 v8, 12, v8")
        a.e("v_lshrrev_b32 v7, 4, v1"); a.e("v_lshl_add_u32 v10, v7, 5, v8")
        a.e("v_bfe_u32 v8, v1, 2, 2"); a.e("v_lshl_add_u32 v8, v7, 3, v8"); a.e("v_lshlrev_b32 v8, 7, v8")
        a.e("v_and_b32 v9, 3, v1"); a.e("v_lshl_add_u32 v8, v9, 3, v8")
        a.e(f"s_add_u32 s20, s6, {STG}"); a.e("v_add_u32 v8, s20, v8")
        a.e("v_bfe_u32 v9, v1, 3, 2")
        for b in range(4):
            a.e(f"v_xor_b32 v7, {b}, v9"); a.e(f"v_lshl_add_u32 v{vSR+b}, v7, 5, v8")
        a.e("v_bfe_u32 v8, v1, 4, 1"); a.e("v_bfe_u32 v7, v1, 1, 2"); a.e("v_xor_b32 v8, v8, v7")
        a.e("v_and_b32 v7, 1, v1"); a.e("v_lshlrev_b32 v7, 4, v7"); a.e("v_lshl_add_u32 v8, v8, 5, v7")
        a.e("v_xor_b32 v9, 64, v8"); a.e("v_lshrrev_b32 v7, 3, v1"); a.e("v_mul_lo_u32 v11, v7, s54")
        a.e(f"v_add_u32 v{vSA}, v8, v11"); a.e(f"v_add_u32 v{vSA+1}, v9, v11")
        a.e(f"v_lshl_add_u32 v{vSA+2}, v7, 11, v8"); a.e(f"v_lshl_add_u32 v{vSA+3}, v7, 11, v9")
    def sdma(srd_s, va, ld8, off_s, nt):
        a.e(f"s_mov_b32 s21, s{off_s}")
        for jj in range(4*nt):
            a.e(f"s_add_u32 m0, s6, {STG + 1024*jj}")
            if jj: a.e(f"s_add_u32 s21, s21, {ld8}")
            else: a.e("s_nop 0")
            a.e(f"buffer_load_dwordx4 v{va+(jj&1)}, s[{srd_s}:{srd_s+3}], s21 offen lds")
    def sproc(k, off_s, str_s, mf):
        for b in range(4):
            for q in range(2):
                a.e(f"ds_read_b64_tr_b16 {vr(vSF+16*k+4*b+2*q,2)}, v{vSR+b} offset:{4096*k + 512*q}")
        a.e(f"s_add_u32 s20, s{off_s}, {1024*k}")
        a.e("s_waitcnt lgkmcnt(0)")
        for b in range(4):
            a.e(f"buffer_store_dwordx4 {vr(vSF+16*k+4*b,4)}, v{vL16}, s[64:67], s20 offen sc1")
            if b < 3: a.e(f"s_add_u32 s20, s20, s{str_s}")
            if mf:
                cc = "0" if k == 0 else vr(vDD+4*b, 4)
                a.e(f"v_mfma_f32_16x16x32_bf16 {vr(vDD+4*b,4)}, {vr(vX+4*k,4)}, {vr(vSF+16*k+4*b,4)}, {cc}")
    wait_for("c0"); a.e("s_barrier")
    for i in range(8):
        if side:
            if i == 0:
                a.e("s_lshl_b32 s35, s54, 3")
                sdma(40, vSA, "s35", 55, 2); ops += ["A"]*8
                for k in range(2):
                    for h in range(2):
                        a.e(f"buffer_load_dwordx4 {vr(16+8*k+4*h,4)}, v10, s[72:75], s68 offen offset:{128*k+16*h}")
                ops += ["X"]*4
            elif i == 1:
                a.e("v_lshlrev_b32 v7, 7, v1")
                a.e("buffer_load_dword v12, v7, s[96:99], s69 offen"); ops += ["T"]
            elif i == 3:
                wait_for("X")
                for q in range(8): a.e(f"v_cvt_pk_bf16_f32 v{vX+q}, v{16+2*q}, v{17+2*q}")
                sproc(0, 56, 57, True); sproc(1, 56, 57, True); ops += ["S"]*8
                sdma(44, vSA+2, "16384", 59, 2); ops += ["B"]*8
            elif i == 4:
                a.e("s_cmp_eq_u32 s62, 0"); a.e(f"s_cselect_b32 s74, 0, {128*1024}")
                a.e("s_bfm_b64 vcc, 16, 16")
                for r in range(2): a.e(f"v_cndmask_b32 v{vDD+r}, v{vDD+r}, v{vDD+4+r}, vcc")
                a.e("s_bfm_b64 vcc, 16, 48")
                for r in range(2): a.e(f"v_cndmask_b32 v{vDD+8+r}, v{vDD+8+r}, v{vDD+12+r}, vcc")
                a.e("s_bfm_b64 vcc, 32, 32")
                for r in range(2): a.e(f"v_cndmask_b32 v{vDD+r}, v{vDD+r}, v{vDD+8+r}, vcc")
                a.e("v_lshlrev_b32 v7, 2, v1"); a.e(f"s_add_u32 s20, s63, {WS_UT}"); a.e(f"s_add_u32 s21, s20, {3584*4}")
                a.e(f"buffer_atomic_add_f32 v{vDD}, v7, s[72:75], s20 offen")
                a.e(f"buffer_atomic_add_f32 v{vDD+1}, v7, s[72:75], s21 offen"); ops += ["U"]*2
            elif i == 6:
                wait_for("B")
                sproc(0, 60, 61, False)
                a.e("s_cmp_eq_u32 s62, 0"); a.e(f"s_cselect_b32 s66, {14*MB}, 0")
                sproc(1, 60, 61, False); ops += ["S2"]*8
        if i < 7: wait_for(f"c{i+1}")
        a.e("s_barrier")
        if i + 3 < 8: ops += [f"c{i+3}"]*kv(i+3)
    a.label(f"{n}_hchk")
    a.e("s_barrier")
    a.e(f"v_mov_b32 v7, {STG}"); a.e("ds_read_b128 v[8:11], v7"); a.e("s_waitcnt lgkmcnt(0)")
    a.e("v_or3_b32 v8, v8, v9, v10"); a.e("v_or_b32 v8, v8, v11"); a.e("s_nop 0"); a.e("v_readfirstlane_b32 s20, v8"); a.e("s_nop 3")
    a.e("s_cmp_eq_u32 s20, 0"); a.e(f"s_cbranch_scc1 {n}_hend")
    a.e("s_waitcnt vmcnt(0)")
    a.e("s_mov_b32 s19, 2")
    a.label(f"{n}_hfb")
    a.e("s_barrier")
    for c in range(3): kv(c)
    a.e("s_waitcnt vmcnt(16)"); a.e("s_barrier")
    for i in range(8):
        a.e(f"s_waitcnt vmcnt({8 if i < 6 else 0})"); a.e("s_barrier")
        if i + 3 < 8: kv(i+3)
    a.e("s_sub_u32 s19, s19, 1"); a.e("s_cmp_lg_u32 s19, 0"); a.e(f"s_cbranch_scc1 {n}_hfb")
    a.e(f"s_branch {n}_hchk")
    a.label(f"{n}_hend")
    if hdone: hdone(a)
    else: a.e("s_waitcnt vmcnt(0)"); a.e("s_endpgm")
    a.label(f"{n}_comp")
    vQ, vNM, vS, vP, vO, vL, vONE, vK, vV = 8, 24, 56, 88, 96, 128, 136, 140, 148
    vA, vAn, vQo = 2, 3, 5
    a.e(f"v_bfe_u32 v{vQo}, v1, 4, 1"); a.e(f"v_lshlrev_b32 v{vQo}, 15, v{vQo}")
    a.e("v_lshrrev_b32 v6, 5, v1"); a.e(f"v_lshl_add_u32 v{vQo}, v6, 8, v{vQo}")
    a.e("v_and_b32 v6, 15, v1"); a.e(f"v_lshl_add_u32 v{vQo}, v6, 4, v{vQo}")
    a.e("s_lshl_b32 s7, s5, 2"); a.e("s_add_u32 s7, s7, s3"); a.e("s_lshl_b32 s7, s7, 17")
    a.e("s_lshl_b32 s20, s4, 10"); a.e("s_add_u32 s7, s7, s20"); a.e("s_add_u32 s32, s7, 65536")
    a.e("s_waitcnt lgkmcnt(0)")
    srd(a, 12, 36, 4*MB, WS_Q); srd(a, 24, 36, 4*MB, WS_O)
    def loadq():
        for q in range(2):
            for s in range(2):
                a.e(f"buffer_load_dwordx4 {vr(vQ+8*q+4*s,4)}, v{vQo}, s[12:15], s{32 if q else 7} offen offset:{512*s}")
    if not wait_in: loadq()
    a.e("v_bfe_u32 v6, v1, 2, 1"); a.e("v_bfe_u32 v7, v1, 4, 1"); a.e("v_cmp_eq_u32 vcc, v6, v7")
    a.e("v_mov_b32 v6, 0x3f803f80"); a.e("s_setprio 2")
    a.e(f"v_cndmask_b32 v{vONE}, 0, v6, vcc")
    for i in range(1, 4): a.e(f"v_mov_b32 v{vONE+i}, v{vONE}")
    def zero_state():
        for i in range(32): a.e(f"v_mov_b32 v{vO+i}, 0")
        for i in range(8): a.e(f"v_mov_b32 v{vL+i}, 0")
        for i in range(4): a.e(f"v_mov_b32 v{vP+4+i}, 0")
        for i in range(4): a.e(f"v_mov_b32 v{vV+8+i}, 0")
        a.e(f"v_mov_b32 v{vA}, v{vL16}"); a.e("s_mov_b32 s18, 0")
    zero_state()
    if wait_in:
        a.e("s_barrier"); loadq()
    a.e("s_barrier")
    stamp(a, 1)
    K = lambda s: vr(vK + 4*s, 4)
    V0 = lambda p: vr(vV + 4*p, 4)
    V1 = vr(vV + 8, 4)
    S = lambda b: vr(vS + 16*b, 16)
    O = lambda b: vr(vO + 16*b, 16)
    L = lambda b: vr(vL + 4*b, 4)
    NM = lambda b: vr(vNM + 16*b, 16)
    Q = lambda b, s: vr(vQ + 8*b + 4*s, 4)
    P = lambda s: vr(vP + 4*s, 4)
    rdK = lambda s, areg, off: f"ds_read_b128 {K(s)}, v{areg} offset:{off + 1024*s}"
    for s in range(2): a.e(rdK(s, vA, 0))
    a.e(f"ds_read_b128 {V0(0)}, v{vA} offset:2048")
    a.e("s_waitcnt vmcnt(0) lgkmcnt(0)")
    for b in range(2):
        a.e(f"v_mfma_f32_32x32x16_bf16 {S(b)}, {K(0)}, {Q(b,0)}, 0")
        a.e(f"v_mfma_f32_32x32x16_bf16 {S(b)}, {K(1)}, {Q(b,1)}, {S(b)}")
    a.e("s_nop 7"); a.e("s_nop 1")
    mg = -200.0 if force_fallback else MARGIN
    def setnm(b, src, margin):
        a.e(f"v_mov_b32 v7, v{src}"); a.e("s_nop 1"); a.e(f"v_permlane32_swap_b32 v{src}, v7"); a.e("s_nop 0")
        a.e(f"v_max_f32 v6, v{src}, v7")
        a.e(f"v_sub_f32 v{vNM+16*b}, {hexf(-margin) if margin else 0}, v6")
        for i in range(1, 16): a.e(f"v_mov_b32 v{vNM+16*b+i}, v{vNM+16*b}")
    for b in range(2):
        s0 = vS + 16*b
        a.e(f"v_max3_f32 v6, v{s0}, v{s0+1}, v{s0+2}")
        for i in range(3, 15, 2): a.e(f"v_max3_f32 v6, v6, v{s0+i}, v{s0+i+1}")
        a.e(f"v_max_f32 v6, v6, v{s0+15}")
        setnm(b, 6, mg)
    a.label(f"{n}_havem")
    a.e("s_nop 1")
    a.e(f"v_mfma_f32_32x32x16_bf16 {S(0)}, {K(0)}, {Q(0,0)}, {NM(0)}")
    a.e(f"v_mfma_f32_32x32x16_bf16 {S(0)}, {K(1)}, {Q(0,1)}, {S(0)}")
    a.e("s_mov_b32 s19, 8")
    a.e("s_nop 7"); a.e("s_nop 3")
    a(".p2align 6")
    a.label(f"{n}_loop")
    for ph in range(16):
        t = ph >> 1; b = ph & 1; nb = 1 - b
        E = lambda x, y: [a.e(f"v_exp_f32 v{vS+16*b+i}, v{vS+16*b+i}") for i in range(x, y)]
        C = lambda x, y: [a.e(f"v_cvt_pk_bf16_f32 v{vP+i}, v{vS+16*b+2*i}, v{vS+16*b+2*i+1}") for i in range(x, y)]
        na, no = (vA, (t+1)*4096) if t < 7 else (vAn, 0)
        if b == 1: a.e("s_waitcnt lgkmcnt(0)")
        a.e(f"v_mfma_f32_32x32x16_bf16 {S(nb)}, {K(0)}, {Q(nb,0)}, {NM(nb)}")
        if ph == 14: a.e("s_barrier")
        if b == 0: a.e(rdK(0, na, no))
        if ph == 13:
            a.e(f"s_add_u32 s18, s18, {CH}"); a.e(f"s_and_b32 s18, s18, {NSLOT*CH-1}")
        E(0, 3)
        a.e(f"v_mfma_f32_16x16x32_bf16 {L(nb)}, {vr(vONE,4)}, {P(1)}, {L(nb)}")
        E(3, 5)
        a.e(f"v_mfma_f32_32x32x16_bf16 {O(nb)}, {V1}, {P(1)}, {O(nb)}")
        if b == 0: a.e(f"ds_read_b128 {V1}, v{vA} offset:{t*4096 + 3072}")
        if ph == 13: a.e(f"v_add_u32 v{vAn}, s18, v{vL16}")
        if ph == 15:
            a.e(f"v_mov_b32 v{vA}, v{vAn}")
        E(5, 8); C(0, 2)
        a.e(f"v_mfma_f32_32x32x16_bf16 {S(nb)}, {K(1)}, {Q(nb,1)}, {S(nb)}")
        if b == 0: a.e(rdK(1, na, no))
        if ph == 15:
            a.e("s_sub_u32 s19, s19, 1"); a.e("s_cmp_lg_u32 s19, 0")
        C(2, 4); E(8, 11)
        a.e(f"v_mfma_f32_16x16x32_bf16 {L(b)}, {vr(vONE,4)}, {P(0)}, {L(b)}")
        if b == 0: a.e(f"ds_read_b128 {V0((t+1) & 1)}, v{na} offset:{no + 2048}")
        E(11, 13)
        a.e(f"v_mfma_f32_32x32x16_bf16 {O(b)}, {V0(t & 1)}, {P(0)}, {O(b)}")
        E(13, 16)
        C(4, 8)
    a.e(f"s_cbranch_scc1 {n}_loop")
    a.e("s_nop 0")
    a.e(f"v_mfma_f32_32x32x16_bf16 {O(1)}, {V1}, {P(1)}, {O(1)}")
    a.e(f"v_mfma_f32_16x16x32_bf16 {L(1)}, {vr(vONE,4)}, {P(1)}, {L(1)}")
    stamp(a, 2)
    for b in range(2):
        if b: a.e("s_nop 1")
        a.e(f"v_rcp_f32 v6, v{vL+4*b}")
        a.e(f"v_pk_mul_f32 {vr(vS+2*b,2)}, {vr(vO+16*b,2)}, 0")
        for i in range(2, 16, 2): a.e(f"v_pk_fma_f32 {vr(vS+2*b,2)}, {vr(vO+16*b+i,2)}, 0, {vr(vS+2*b,2)}")
        for i in range(0, 16, 2): a.e(f"v_pk_mul_f32 {vr(vO+16*b+i,2)}, {vr(vO+16*b+i,2)}, v[6:7] op_sel_hi:[1,0]")
        pp = vS + 8 + 8*b
        for i in range(8): a.e(f"v_cvt_pk_bf16_f32 v{pp+i}, v{vO+16*b+2*i}, v{vO+16*b+2*i+1}")
        a.e("s_nop 1")
        for h in range(2):
            a.e(f"v_permlane32_swap_b32 v{pp+4*h}, v{pp+4*h+2}"); a.e(f"v_permlane32_swap_b32 v{pp+4*h+1}, v{pp+4*h+3}")
        for h in range(2):
            a.e(f"buffer_store_dwordx4 {vr(pp+4*h,4)}, v{vQo}, s[24:27], s{32 if b else 7} offen offset:{512*h} sc1")
    a.e(f"v_mov_b32 v6, {hexf(2.0**100)}")
    a.e(f"v_cmp_nle_f32 s[20:21], v{vL}, v6"); a.e(f"v_cmp_nle_f32 vcc, v{vL+4}, v6"); a.e("s_or_b64 s[20:21], s[20:21], vcc")
    a.e(f"v_cmp_u_f32 vcc, v{vS}, v{vS+1}"); a.e("s_or_b64 s[20:21], s[20:21], vcc")
    a.e(f"v_cmp_u_f32 vcc, v{vS+2}, v{vS+3}"); a.e("s_or_b64 s[20:21], s[20:21], vcc")
    a.e("s_cmp_lg_u64 s[20:21], 0"); a.e("s_cselect_b32 s20, 1, 0")
    a.e("s_cmp_eq_u32 s33, 0"); a.e("s_cselect_b32 s20, s20, 0")
    a.e("v_mov_b32 v6, s20"); a.e("s_lshl_b32 s21, s3, 2"); a.e(f"s_add_u32 s21, s21, {STG}"); a.e("v_mov_b32 v7, s21")
    a.e("ds_write_b32 v7, v6"); a.e("s_waitcnt lgkmcnt(0)"); a.e("s_barrier")
    a.e(f"v_mov_b32 v7, {STG}"); a.e(f"ds_read_b128 {vr(vK,4)}, v7"); a.e("s_waitcnt lgkmcnt(0)")
    a.e(f"v_or3_b32 v6, v{vK}, v{vK+1}, v{vK+2}"); a.e(f"v_or_b32 v6, v6, v{vK+3}")
    a.e("s_nop 0"); a.e("v_readfirstlane_b32 s20, v6"); a.e("s_nop 3")
    a.e("s_cmp_eq_u32 s20, 0"); a.e(f"s_cbranch_scc0 {n}_fb")
    stamp(a, 3)
    if done: done(a)
    else:
        stamp_end(a, 3, 36, 3); a.e("s_endpgm")
    a.label(f"{n}_fb")
    a.e("s_mov_b32 s33, 1")
    a.e("s_waitcnt vmcnt(0)")
    a.e("s_barrier")
    a.e(f"v_mov_b32 v{vP}, 0xff800000"); a.e(f"v_mov_b32 v{vP+1}, 0xff800000")
    a.e("s_mov_b32 s18, 0"); a.e("s_mov_b32 s19, 8")
    a.e("s_barrier")
    a.label(f"{n}_mx")
    a.e(f"v_add_u32 v{vA}, s18, v{vL16}")
    for t in range(8):
        for s in range(2): a.e(rdK(s, vA, t*4096))
        a.e("s_waitcnt lgkmcnt(0)")
        for b in range(2):
            a.e(f"v_mfma_f32_32x32x16_bf16 {S(b)}, {K(0)}, {Q(b,0)}, 0")
            a.e(f"v_mfma_f32_32x32x16_bf16 {S(b)}, {K(1)}, {Q(b,1)}, {S(b)}")
        a.e("s_nop 7"); a.e("s_nop 7")
        for b in range(2):
            for i in range(0, 16, 2): a.e(f"v_max3_f32 v{vP+b}, v{vP+b}, v{vS+16*b+i}, v{vS+16*b+i+1}")
    a.e("s_barrier")
    a.e(f"s_add_u32 s18, s18, {CH}"); a.e(f"s_and_b32 s18, s18, {NSLOT*CH-1}")
    a.e("s_sub_u32 s19, s19, 1"); a.e("s_cmp_lg_u32 s19, 0"); a.e(f"s_cbranch_scc1 {n}_mx")
    for b in range(2): setnm(b, vP+b, 0)
    zero_state()
    a.e("s_barrier"); a.e("s_barrier")
    for s in range(2): a.e(rdK(s, vA, 0))
    a.e(f"ds_read_b128 {V0(0)}, v{vA} offset:2048")
    a.e("s_waitcnt lgkmcnt(0)")
    a.e(f"s_branch {n}_havem")
```

```python
from common import *
from gemm import *
import gemm_bench as gb

import os
STF = os.environ.get("STF", " sc1")
POLLF = os.environ.get("POLLF", "sc1")
PBAR = int(os.environ.get("PBAR", "6"))

def prolog(a, name, c, tptr, tbytes, toff, fptr, fbytes, foff, extra_loads, kidx, **lkw):
    kernel_header(a, name)
    a.e("s_cmp_ge_u32 s2, 256"); a.e(f"s_cbranch_scc1 {name}_end")
    stamp_start(a)
    a.e(f"s_load_dwordx2 s[36:37], s[0:1], {D_WS}")
    if tptr != D_WS: a.e(f"s_load_dwordx2 s[28:29], s[0:1], {tptr}")
    if fptr != D_WS: a.e(f"s_load_dwordx2 s[30:31], s[0:1], {fptr}")
    for reg, off in extra_loads: a.e(f"s_load_dwordx2 s[{reg}:{reg+1}], s[0:1], {off}")
    wave_id(a, 3)
    decode_tile(a, c)
    a.e("s_waitcnt lgkmcnt(0)")
    srd(a, 8, 36 if tptr == D_WS else 28, tbytes, toff)
    srd(a, 12, 36 if fptr == D_WS else 30, fbytes, foff)
    a.e("s_cmp_ge_u32 s3, 4"); a.e(f"s_cbranch_scc0 {name}_comp")
    a.e("s_sub_u32 s3, s3, 4")
    base = c.name; fc = gb.fcol(c); c.name = name
    loader(a, c, fc, **lkw)
    a.label(f"{name}_comp")
    c.name = base; fb = gb.fblock(c); cc = gb.colchunk(c); c.name = name
    r = compute_setup(a, c, fb)
    if STAMPS: c.stampP = "s_memtime s[82:83]"
    return r, cc

def fin(a, name, kidx):
    stamp_end(a, kidx, 36, 3)
    a.label(f"{name}_end"); a.e("s_endpgm")

def pack_pair(a, t, x, y):
    a.e(f"v_cvt_pk_bf16_f32 v{t}, v{x}, v{x+1}"); a.e(f"v_cvt_pk_bf16_f32 v{t+1}, v{x+2}, v{x+3}")
    a.e(f"v_cvt_pk_bf16_f32 v{t+2}, v{y}, v{y+1}"); a.e(f"v_cvt_pk_bf16_f32 v{t+3}, v{y+2}, v{y+3}")
def swap_pair(a, t):
    a.e(f"v_permlane16_swap_b32 v{t}, v{t+2}"); a.e(f"v_permlane16_swap_b32 v{t+1}, v{t+3}")

def store_pairs(a, items, tmp, ntmp=4):
    pend = None
    for k, (x, y, pre, st) in enumerate(items):
        t = tmp + 4*(k % ntmp)
        pack_pair(a, t, x, y)
        if pend is not None:
            swap_pair(a, pend[0])
            for p in pend[1]: a.e(p)
            a.e(pend[2](pend[0]))
        pend = (t, pre, st)
    a.e("s_nop 1")
    swap_pair(a, pend[0])
    for p in pend[1]: a.e(p)
    a.e(pend[2](pend[0]))

def lane_chunk_off(a, vd, nchunks):
    a.e(f"v_bfe_u32 v{vd}, v1, 4, 1"); a.e(f"v_mul_u32_u24 v{vd}, {nchunks*256}, v{vd}")
    a.e("v_lshrrev_b32 v3, 5, v1"); a.e(f"v_lshl_add_u32 v{vd}, v3, 8, v{vd}")
    a.e("v_and_b32 v3, 15, v1"); a.e(f"v_lshl_add_u32 v{vd}, v3, 4, v{vd}")

def swap23(a, vd, vt):
    a.e(f"v_and_b32 v{vd}, 19, v1")
    a.e(f"v_bfe_u32 v{vt}, v1, 2, 1"); a.e(f"v_lshl_or_b32 v{vd}, v{vt}, 3, v{vd}")
    a.e(f"v_bfe_u32 v{vt}, v1, 3, 1"); a.e(f"v_lshl_or_b32 v{vd}, v{vt}, 2, v{vd}")

def k_qkv(name):
    c = GemmCfg('qkv', 128, 6, 1024, 3, '2x2', 'frag', 'tr', ldf=6144, groups=(3, False), xm=8, xn=4, MT=16, NT=16,
                swap=[False]*4 + [True]*2)
    a = Asm()
    r, cc = prolog(a, name, c, D_WS, 4*MB, WS_H, A_WQKV, 6*MB, 0, [], 2)
    srd(a, 24, 36, 4*MB, WS_Q); srd(a, 40, 36, 8*MB, WS_KV)
    vq, vk, vv = r.free, r.free+1, r.free+2
    lane_chunk_off(a, vq, 128)
    swap23(a, vk, 3); a.e(f"v_lshlrev_b32 v{vk}, 4, v{vk}")
    a.e("v_lshrrev_b32 v3, 5, v1"); a.e(f"v_lshl_add_u32 v{vk}, v3, 9, v{vk}")
    a.e("v_bfe_u32 v2, v1, 4, 1"); a.e("v_lshl_add_u32 v2, v2, 1, v3")
    a.e("v_and_b32 v3, 15, v1"); a.e("v_lshlrev_b32 v3, 4, v3"); a.e(f"v_lshl_add_u32 v{vv}, v2, 9, v3")
    a.e("s_lshl_b32 s32, s5, 1"); a.e("s_add_u32 s32, s32, s7")
    a.e("s_lshl_b32 s33, s4, 2"); a.e("s_lshl_b32 s20, s6, 1"); a.e("s_add_u32 s33, s33, s20")
    a.e("s_lshl_b32 s34, s33, 16"); a.e("s_lshl_b32 s20, s32, 10"); a.e("s_add_u32 s34, s34, s20")
    a.e("s_lshl_b32 s35, s32, 6"); a.e("s_add_u32 s35, s35, s33"); a.e("s_lshl_b32 s35, s35, 12")
    a.e("s_add_u32 s38, s34, 65536"); a.e("s_add_u32 s39, s35, 4096")
    a.e(f"s_mov_b32 s44, {hexf(QSCALE)}"); a.e(f"s_mov_b32 s45, s44")
    a.e("s_setprio 1")
    compute_loop(a, c, r)
    stamp(a, 2)
    items = []
    acc = lambda i, j: r.acc + (i*6 + j)*4
    for j in (2, 3, 4, 5, 0, 1):
        for p in range(2):
            jj = j & 1
            if j < 2:
                st = (lambda t, p=p, jj=jj: f"buffer_store_dwordx4 {vr(t,4)}, v{vq}, s[24:27], s{38 if p else 34} offen offset:{jj*512}{STF}")
            elif j < 4:
                st = (lambda t, p=p, jj=jj: f"buffer_store_dwordx4 {vr(t,4)}, v{vk}, s[40:43], s{39 if p else 35} offen offset:{jj*1024}{STF}")
            else:
                st = (lambda t, p=p, jj=jj: f"buffer_store_dwordx4 {vr(t,4)}, v{vv}, s[40:43], s{39 if p else 35} offen offset:{2048+jj*256}{STF}")
            items.append((acc(2*p, j), acc(2*p+1, j), [], st))
    for i in range(4):
        for j in range(2):
            for q in range(2):
                x = acc(i, j) + 2*q
                a.e(f"v_pk_mul_f32 {vr(x,2)}, {vr(x,2)}, s[44:45]")
    store_pairs(a, items, r.T[0])
    stamp(a, 3)
    fin(a, name, 2)
    return a.text(), r.free + 3, c.lds

def stats_atomic(a, r, NB, nti, vS, srd_s, vaddr, soff):
    for i in range(nti):
        x0 = r.acc + i*NB*4
        a.e(f"v_pk_mul_f32 {vr(vS+4*i+2,2)}, {vr(x0,2)}, {vr(x0,2)}")
        a.e(f"v_pk_add_f32 {vr(vS+4*i,2)}, {vr(x0,2)}, {vr(x0+2,2)}")
        a.e(f"v_pk_fma_f32 {vr(vS+4*i+2,2)}, {vr(x0+2,2)}, {vr(x0+2,2)}, {vr(vS+4*i+2,2)}")
        for k in range(4, NB*4, 2):
            a.e(f"v_pk_add_f32 {vr(vS+4*i,2)}, {vr(vS+4*i,2)}, {vr(x0+k,2)}")
            a.e(f"v_pk_fma_f32 {vr(vS+4*i+2,2)}, {vr(x0+k,2)}, {vr(x0+k,2)}, {vr(vS+4*i+2,2)}")
    for i in range(nti):
        a.e(f"v_add_f32 v{vS+4*i}, v{vS+4*i}, v{vS+4*i+1}")
        a.e(f"v_add_f32 v{vS+4*i+2}, v{vS+4*i+2}, v{vS+4*i+3}")
    a.e("s_nop 1")
    for i in range(nti): a.e(f"v_permlane16_swap_b32 v{vS+4*i}, v{vS+4*i+2}")
    a.e("s_nop 0")
    for i in range(nti): a.e(f"v_add_f32 v{vS+4*i}, v{vS+4*i}, v{vS+4*i+2}")
    a.e("s_nop 1")
    for i in range(0, nti, 2): a.e(f"v_permlane32_swap_b32 v{vS+4*i}, v{vS+4*i+4}")
    a.e("s_nop 0")
    for i in range(0, nti, 2):
        a.e(f"v_add_f32 v{vS+4*i}, v{vS+4*i}, v{vS+4*i+4}")
        a.e(f"buffer_atomic_add_f32 v{vS+4*i}, v{vaddr}, s[{srd_s}:{srd_s+3}], s{soff} offen offset:{128*i}")

def stat_addr(a, vd):
    a.e(f"v_and_b32 v{vd}, 15, v1"); a.e("v_lshrrev_b32 v3, 5, v1"); a.e(f"v_lshl_add_u32 v{vd}, v3, 4, v{vd}")
    a.e(f"v_lshlrev_b32 v{vd}, 3, v{vd}"); a.e("v_bfe_u32 v3, v1, 4, 1"); a.e(f"v_lshl_add_u32 v{vd}, v3, 2, v{vd}")

def finish_stats(a, s, q, t, n):
    a.e(f"v_mul_f32 v{s}, {hexf(1.0/n)}, v{s}")
    a.e(f"v_mul_f32 v{q}, {hexf(1.0/n)}, v{q}")
    a.e(f"v_fma_f32 v{q}, -v{s}, v{s}, v{q}")
    a.e(f"v_max_f32 v{q}, 0, v{q}")
    a.e(f"v_add_f32 v{q}, {hexf(1e-5)}, v{q}")
    a.e(f"v_rsq_f32 v{t}, v{q}")
    a.e("s_nop 0")
    a.e(f"v_mul_f32_e64 v{q}, -v{s}, v{t}")
    a.e(f"v_mov_b32 v{s}, v{t}")

def k_proj(name):
    c = GemmCfg('woutL', 64, 4, 1024, 6, 'ksplitF', 'frag', 'frag', xm=8, xn=4, MT=32, NT=8)
    a = Asm()
    EB = ((c.nk - c.NS) % c.NS)*c.stage
    def lpre(a):
        srd(a, 24, 32, 4*MB); srd(a, 40, 36, 24576)
        a.e("v_lshrrev_b32 v2, 4, v1"); a.e("v_and_b32 v3, 15, v1")
        a.e("s_lshl_b32 s20, s4, 6"); a.e("s_lshl_b32 s21, s3, 4"); a.e("s_add_u32 s20, s20, s21"); a.e("s_lshl_b32 s20, s20, 11")
        a.e("s_lshl_b32 s21, s5, 8"); a.e("s_add_u32 s20, s20, s21")
        for t in range(4):
            a.e(f"v_add_u32 v4, {4*t}, v2"); a.e("v_xor_b32 v5, v4, v3"); a.e("v_lshlrev_b32 v5, 4, v5")
            a.e("v_lshl_add_u32 v5, v4, 11, v5"); a.e(f"v_add_u32 v{40+t}, s20, v5")
        a.e("v_lshrrev_b32 v4, 5, v1"); a.e("v_lshlrev_b32 v4, 13, v4"); a.e("v_and_b32 v5, 31, v1"); a.e("v_lshl_add_u32 v4, v5, 4, v4")
        a.e("s_lshl_b32 s21, s5, 9"); a.e("s_add_u32 s21, s21, 8192"); a.e("v_add_u32 v44, s21, v4")
    def lextra(a):
        a.e("s_lshl_b32 s20, s3, 12")
        for t in range(4):
            a.e(f"s_add_u32 m0, s20, {EB + 1024*t}"); a.e("s_nop 0")
            a.e(f"buffer_load_dwordx4 v{40+t}, s[24:27], 0 offen lds")
        a.e(f"s_mov_b32 m0, {EB + 16384}"); a.e("s_nop 0")
        a.e("buffer_load_dwordx4 v44, s[40:43], 0 offen lds")
    r, cc = prolog(a, name, c, D_WS, 4*MB, WS_O, D_WS, 2*MB, WS_WO, [(32, A_X)], 4, pre=lpre, extra=(5, lextra))
    srd(a, 40, 36, 128*1024)
    srd(a, 48, 36, 4*MB, WS_X1); srd(a, 52, 36, 4*MB, WS_H2)
    f = r.free
    vX, vGA, vG = f, f+16, f+32
    vo, vs1, vm, vS, vx = f+48, f+49, f+50, f+52, f+60
    a.e("s_lshl_b32 s56, s4, 6"); a.e("s_lshl_b32 s20, s7, 5"); a.e("s_add_u32 s56, s56, s20")
    a.e("s_lshl_b32 s57, s5, 7"); a.e("s_lshl_b32 s20, s6, 6"); a.e("s_add_u32 s57, s57, s20")
    a.e("v_and_b32 v2, 15, v1"); a.e("v_lshrrev_b32 v3, 4, v1")
    a.e("v_lshrrev_b32 v4, 1, v3"); a.e("s_lshl_b32 s20, s6, 3"); a.e("v_or_b32 v4, s20, v4"); a.e("v_xor_b32 v4, v4, v2")
    a.e("v_and_b32 v5, 1, v3"); a.e("v_lshlrev_b32 v5, 3, v5"); a.e("v_lshl_add_u32 v5, v2, 8, v5")
    a.e("s_lshl_b32 s20, s7, 13"); a.e(f"s_add_u32 s20, s20, {EB}"); a.e("v_add_u32 v5, s20, v5")
    for j in range(4):
        a.e(f"v_xor_b32 v6, {2*j}, v4"); a.e(f"v_lshl_add_u32 v{vx+j}, v6, 4, v5")
    a.e("s_lshl_b32 s20, s6, 8"); a.e(f"s_add_u32 s20, s20, {EB + 16384}"); a.e(f"v_lshl_add_u32 v{vm}, v3, 4, s20")
    stat_addr(a, vs1)
    lane_chunk_off(a, vo, 128)
    a.e("s_lshl_b32 s60, s56, 3"); a.e(f"s_add_u32 s60, s60, {WS_ST1}")
    a.e("s_lshl_b32 s62, s56, 11"); a.e("s_lshl_b32 s20, s57, 5"); a.e("s_add_u32 s62, s62, s20")
    a.e("s_setprio 1")
    compute_loop(a, c, r)
    stamp(a, 2)
    for i in range(2):
        for j in range(4):
            a.e(f"ds_read_b64 {vr(vX+(i*4+j)*2,2)}, v{vx+j} offset:{4096*i}")
    for j in range(4):
        a.e(f"ds_read_b128 {vr(vGA+4*j,4)}, v{vm} offset:{64*j}")
        a.e(f"ds_read_b128 {vr(vG+4*j,4)}, v{vm} offset:{512+64*j}")
    ksplit_reduce(a, c, r)
    for i in range(2):
        for j in range(4):
            x = r.acc + (i*4+j)*4; s = vX + (i*4+j)*2
            for h in range(2):
                unpack(a, 2, 3, s+h)
                a.e(f"v_pk_fma_f32 {vr(x+2*h,2)}, {vr(x+2*h,2)}, {vr(vGA+4*j+2*h,2)}, v[2:3]")
    y0 = r.acc + 32
    for i in range(2):
        for j in range(4):
            for h in range(2):
                x = (i*4+j)*4 + 2*h
                a.e(f"v_pk_mul_f32 {vr(y0+x,2)}, {vr(r.acc+x,2)}, {vr(vG+4*j+2*h,2)}")
    items = [(y0 + j*4, y0 + (4+j)*4, [],
              (lambda t, j=j: f"buffer_store_dwordx4 {vr(t,4)}, v{vo}, s[52:55], s62 offen offset:{512*j}{STF}")) for j in range(4)]
    items += [(r.acc + j*4, r.acc + (4+j)*4, [],
              (lambda t, j=j: f"buffer_store_dwordx4 {vr(t,4)}, v{vo}, s[48:51], s62 offen offset:{512*j}{STF}")) for j in range(4)]
    store_pairs(a, items, r.T[0], 8)
    stats_atomic(a, r, 4, 2, vS, 40, vs1, 60)
    stamp(a, 3)
    fin(a, name, 4)
    return a.text(), f + 64, c.lds

def gelu(a, regs, t0, G=4):
    n = len(regs)//2
    for b in range(0, n, G):
        ps = [(regs[2*k], t0 + 2*(k-b)) for k in range(b, min(n, b+G))]
        for x, t in ps: a.e(f"v_pk_mul_f32 {vr(t,2)}, {vr(x,2)}, {vr(x,2)}")
        for x, t in ps: a.e(f"v_pk_fma_f32 {vr(t,2)}, {vr(t,2)}, s[64:65], {vr(t0+2*G,2)}")
        for x, t in ps: a.e(f"v_pk_mul_f32 {vr(t,2)}, {vr(t,2)}, {vr(x,2)}")
        for x, t in ps: a.e(f"v_exp_f32 v{t}, v{t}"); a.e(f"v_exp_f32 v{t+1}, v{t+1}")
        for x, t in ps: a.e(f"v_pk_add_f32 {vr(t,2)}, {vr(t,2)}, 1.0 op_sel_hi:[1,0]")
        for x, t in ps: a.e(f"v_rcp_f32 v{t}, v{t}"); a.e(f"v_rcp_f32 v{t+1}, v{t+1}")
        for x, t in ps: a.e(f"v_pk_mul_f32 {vr(x,2)}, {vr(x,2)}, {vr(t,2)}")

def bp2gb(bp):
    if bp < 4: return True, bp
    if bp < 7: return False, bp - 4
    if bp < 10: return True, bp - 3
    return False, bp - 7

def k_win(name):
    c = GemmCfg('winL', 128, 7, 1024, 3, '2x2', 'frag', 'frag', xm=8, xn=4, MT=16, NT=16)
    a = Asm()
    TB = c.lds
    gbo = lambda bp: (112 if bp2gb(bp)[0] else 0) + bp2gb(bp)[1]
    def fitem(a, t, sd):
        a.e("s_cmp_lt_u32 s3, 2"); a.e(f"s_cselect_b32 s{sd}, {gbo(2*t)}, {gbo(2*t+1)}")
        a.e("s_mul_i32 s22, s5, 7"); a.e(f"s_add_u32 s{sd}, s{sd}, s22")
    def lpre(a):
        srd(a, 40, 36, 128*1024)
        a.e("s_cmp_ge_u32 s3, 2"); a.e(f"s_cbranch_scc1 {name}_lp1")
        a.e(f"s_mul_i32 s20, s3, {3584*4}"); a.e("s_mul_i32 s21, s5, 448"); a.e("s_add_u32 s20, s20, s21"); a.e(f"s_add_u32 s20, s20, {WS_UT}")
        a.e("v_lshlrev_b32 v30, 4, v1")
        a.e(f"v_add_u32 v31, {112*64}, v30")
        for lim, d in ((16, -4*64), (28, (112-3)*64), (40, -7*64)):
            a.e(f"v_cmp_le_u32 vcc, {lim}, v1"); a.e(f"v_add_u32 v29, {d & 0xffffffff}, v30"); a.e("s_nop 0")
            a.e("v_cndmask_b32 v31, v31, v29, vcc")
        a.e("buffer_load_dwordx4 v[32:35], v31, s[40:43], s20 offen")
        a.e(f"s_branch {name}_lp2")
        a.label(f"{name}_lp1")
        a.e("s_lshl_b32 s20, s4, 1"); a.e("s_add_u32 s20, s20, s3"); a.e("s_sub_u32 s20, s20, 2"); a.e("s_lshl_b32 s20, s20, 9")
        a.e(f"s_add_u32 s20, s20, {WS_ST1}")
        a.e("v_lshlrev_b32 v30, 3, v1")
        a.e("buffer_load_dwordx2 v[32:33], v30, s[40:43], s20 offen")
        a.label(f"{name}_lp2")
    def lpost(a):
        a.e("s_cmp_ge_u32 s3, 2"); a.e(f"s_cbranch_scc1 {name}_lq1")
        a.e("s_mul_i32 s20, s3, 896"); a.e(f"s_add_u32 s20, s20, {TB}"); a.e("v_add_u32 v30, s20, v30")
        a.e("s_bfm_b64 exec, 56, 0")
        a.e("ds_write_b128 v30, v[32:35]")
        a.e("s_mov_b64 exec, -1")
        a.e(f"s_branch {name}_lq2")
        a.label(f"{name}_lq1")
        finish_stats(a, 32, 33, 34, 1024)
        a.e("s_lshl_b32 s20, s3, 9"); a.e(f"s_add_u32 s20, s20, {TB + 2048 - 1024}"); a.e("v_add_u32 v30, s20, v30")
        a.e("ds_write_b64 v30, v[32:33]")
        a.label(f"{name}_lq2")
        a.e("s_waitcnt lgkmcnt(0)")
    def lfin(a):
        a.e("s_cmp_ge_u32 s3, 2"); a.e(f"s_cbranch_scc1 {name}_lx")
        srd(a, 44, 36, 32768, WS_ST2)
        a.e("s_lshl_b32 s20, s4, 1"); a.e("s_add_u32 s20, s20, s3"); a.e("s_lshl_b32 s20, s20, 10")
        a.e("v_lshlrev_b32 v30, 4, v1")
        a.e("s_mov_b32 s19, 0x20000")
        a.e("s_barrier")
        a.label(f"{name}_poll")
        a.e(f"buffer_load_dwordx3 v[32:34], v30, s[44:47], s20 offen {POLLF}")
        a.e("s_waitcnt vmcnt(0)")
        a.e(f"v_cmp_gt_f32 vcc, {hexf(31.5)}, v34")
        a.e("s_sub_u32 s19, s19, 1"); a.e("s_cmp_eq_u32 s19, 0")
        a.e(f"s_cbranch_scc1 {name}_pd"); a.e(f"s_cbranch_vccz {name}_pd"); a.e("s_sleep 4"); a.e(f"s_branch {name}_poll")
        a.label(f"{name}_pd")
        finish_stats(a, 32, 33, 34, 1792)
        a.e("s_lshl_b32 s20, s3, 9"); a.e(f"s_add_u32 s20, s20, {TB + 3072}"); a.e("v_lshl_add_u32 v30, v1, 3, s20")
        a.e("ds_write_b64 v30, v[32:33]")
        a.e("s_waitcnt lgkmcnt(0)"); a.e("s_barrier")
        a.label(f"{name}_lx")
    r, cc = prolog(a, name, c, D_WS, 4*MB, WS_H2, D_WS, 1024*3584*2, WS_WIN, [], 5, pre=lpre, postP=lpost, fitem=fitem, lfin=lfin)
    ZB = 2048*1792*2
    srd(a, 24, 36, ZB, WS_Z1); srd(a, 40, 36, ZB, WS_Z2); srd(a, 44, 36, 32768, WS_ST2)
    f = r.free
    vo, vz, vs0, vs1, vu, vst, vpl, vC = f, f+1, f+2, f+3, f+4, f+5, f+6, f+7
    lane_chunk_off(a, vo, 224)
    swap23(a, vz, 3); a.e(f"v_lshlrev_b32 v{vz}, 5, v{vz}")
    a.e("v_lshrrev_b32 v3, 5, v1"); a.e(f"v_lshl_add_u32 v{vz}, v3, 4, v{vz}")
    a.e("v_and_b32 v2, 15, v1"); a.e("v_lshrrev_b32 v3, 4, v1")
    a.e(f"v_lshlrev_b32 v{vpl}, 4, v2")
    a.e(f"v_lshl_add_u32 v{vs0}, v3, 2, v{vpl}"); a.e(f"v_xor_b32 v{vs1}, 8, v{vs0}")
    a.e("v_and_b32 v4, 1, v3"); a.e("v_xor_b32 v4, 1, v4"); a.e(f"v_cvt_f32_u32 v{vC}, v4")
    a.e("s_mul_i32 s20, s7, 448"); a.e(f"s_add_u32 s20, s20, {TB}")
    a.e(f"v_lshl_add_u32 v{vu}, v3, 4, s20")
    a.e("s_lshl_b32 s20, s6, 9"); a.e(f"s_add_u32 s20, s20, {TB+2048}")
    a.e(f"v_lshl_add_u32 v{vst}, v2, 3, s20")
    a.e("s_lshl_b32 s56, s4, 7"); a.e("s_lshl_b32 s20, s6, 6"); a.e("s_add_u32 s56, s56, s20")
    a.e("s_lshl_b32 s60, s56, 4")
    a.e("s_lshr_b32 s21, s56, 4"); a.e("s_mul_i32 s21, s21, 224"); a.e("s_mul_i32 s20, s5, 14"); a.e("s_add_u32 s21, s21, s20")
    a.e("s_lshl_b32 s68, s21, 8"); a.e(f"s_add_u32 s69, s68, {2*224*256}")
    a.e(f"s_mul_i32 s20, s5, {7*65536}"); a.e("s_lshl_b32 s22, s56, 5"); a.e("s_add_u32 s70, s20, s22")
    c1 = -2*0.7978845608028654*1.4426950408889634
    a.e(f"s_mov_b32 s64, {hexf(c1*0.044715)}"); a.e("s_mov_b32 s65, s64")
    a.e("s_setprio 1")
    compute_loop(a, c, r)
    stamp(a, 2)
    t0 = r.T[0]
    vU, vTt, vST = t0 + 16, t0 + 44, t0 + 72
    for i in range(4): a.e(f"ds_read_b64 {vr(vST+2*i,2)}, v{vst} offset:{128*i}")
    for j in range(7):
        a.e(f"ds_read_b128 {vr(vU+4*j,4)}, v{vu} offset:{64*j}")
        a.e(f"ds_read_b128 {vr(vTt+4*j,4)}, v{vu} offset:{896+64*j}")
    a.e(f"v_mov_b32 v{t0+8}, {hexf(c1)}"); a.e(f"v_mov_b32 v{t0+9}, {hexf(c1)}")
    acc = lambda i, j: r.acc + (i*7 + j)*4
    def fold_gelu(j):
        for i in range(4):
            for h in range(2):
                t = t0 + 10 + 2*h
                a.e(f"v_pk_fma_f32 {vr(t,2)}, {vr(vU+4*j+2*h,2)}, {vr(vST+2*i,2)}, {vr(vTt+4*j+2*h,2)} op_sel:[0,1,0] op_sel_hi:[1,1,1]")
            for h in range(2):
                t = t0 + 10 + 2*h; x = acc(i, j) + 2*h
                a.e(f"v_pk_fma_f32 {vr(x,2)}, {vr(x,2)}, {vr(vST+2*i,2)}, {vr(t,2)} op_sel:[0,0,0] op_sel_hi:[1,0,1]")
        regs = []
        for i in range(4): regs += list(range(acc(i, j), acc(i, j)+4))
        gelu(a, regs, t0)
    vS = f + 8
    tp = f + 24
    a.e("s_waitcnt lgkmcnt(0)")
    a.e("s_cmp_eq_u32 s7, 0"); a.e(f"s_cbranch_scc0 {name}_e1")
    for fw in range(2):
        if fw: a.label(f"{name}_e1")
        nz = 4 - fw
        for j in range(nz):
            fold_gelu(j)
            for i in range(4):
                x0 = acc(i, j)
                if j == 0:
                    a.e(f"v_pk_add_f32 {vr(vS+4*i,2)}, {vr(x0,2)}, {vr(x0+2,2)}")
                    a.e(f"v_pk_mul_f32 {vr(vS+4*i+2,2)}, {vr(x0,2)}, {vr(x0,2)}")
                else:
                    a.e(f"v_pk_add_f32 {vr(vS+4*i,2)}, {vr(vS+4*i,2)}, {vr(x0,2)}")
                    a.e(f"v_pk_fma_f32 {vr(vS+4*i+2,2)}, {vr(x0,2)}, {vr(x0,2)}, {vr(vS+4*i+2,2)}")
                    a.e(f"v_pk_add_f32 {vr(vS+4*i,2)}, {vr(vS+4*i,2)}, {vr(x0+2,2)}")
                a.e(f"v_pk_fma_f32 {vr(vS+4*i+2,2)}, {vr(x0+2,2)}, {vr(x0+2,2)}, {vr(vS+4*i+2,2)}")
        for i in range(4):
            a.e(f"v_add_f32 v{vS+4*i}, v{vS+4*i}, v{vS+4*i+1}")
            a.e(f"v_add_f32 v{vS+4*i+2}, v{vS+4*i+2}, v{vS+4*i+3}")
        a.e("s_nop 0")
        for i in range(4): a.e(f"v_permlane16_swap_b32 v{vS+4*i}, v{vS+4*i+2}")
        for i in range(4): a.e(f"v_add_f32 v{vS+4*i}, v{vS+4*i}, v{vS+4*i+2}")
        a.e("s_nop 1")
        for i in (0, 2): a.e(f"v_permlane32_swap_b32 v{vS+4*i}, v{vS+4*i+4}")
        a.e("s_bfm_b64 vcc, 32, 32")
        for i in (0, 2): a.e(f"v_add_f32 v{vS+4*i}, v{vS+4*i}, v{vS+4*i+4}")
        for i in (0, 2):
            a.e(f"v_cndmask_b32 v{vS+4*i+1}, v{vS+4*i}, v{vC}, vcc")
            a.e(f"v_cndmask_b32 v{vS+4*i+2}, v{vC}, v{vS+4*i}, vcc")
        for i in (0, 2):
            a.e(f"buffer_atomic_add_f32 v{vS+4*i+1}, v{vs0}, s[44:47], s60 offen offset:{256*i}")
            a.e(f"buffer_atomic_add_f32 v{vS+4*i+2}, v{vs1}, s[44:47], s60 offen offset:{256*(i+1)}")
        for j in range(nz, 7):
            if j == PBAR: a.e("s_barrier")
            fold_gelu(j)
            lb = bp2gb(7*fw + j)[1]
            items = [(acc(2*p, j), acc(2*p+1, j), [],
                      (lambda t, p=p, lb=lb: f"buffer_store_dwordx4 {vr(t,4)}, v{vo}, s[24:27], s{68+p} offen offset:{512*lb}{STF}")) for p in range(2)]
            store_pairs(a, items, tp + 8*(j & 1), 2)
        vP = t0 + 16
        a.e("s_barrier")
        for i in range(4): a.e(f"ds_read_b64 {vr(vP+4*i,2)}, v{vst} offset:{1024 + 128*i}")
        a.e("s_waitcnt lgkmcnt(0)")
        items = []
        for j in range(nz):
            lb = bp2gb(7*fw + j)[1]
            for i in range(4):
                for h in range(2):
                    x = acc(i, j) + 2*h
                    a.e(f"v_pk_fma_f32 {vr(x,2)}, {vr(x,2)}, {vr(vP+4*i,2)}, {vr(vP+4*i,2)} op_sel:[0,0,1] op_sel_hi:[1,0,1]")
            for p in range(2):
                pre = [f"s_add_u32 s71, s70, {lb*65536}"] if p == 0 else []
                items.append((acc(2*p, j), acc(2*p+1, j), pre,
                              (lambda t, p=p: f"buffer_store_dwordx4 {vr(t,4)}, v{vz}, s[40:43], s71 offen offset:{1024*p}{STF}")))
        store_pairs(a, items, t0 + 32, 8)
        if fw == 0: a.e(f"s_branch {name}_fin")
    a.label(f"{name}_fin")
    stamp(a, 3)
    fin(a, name, 5)
    return a.text(), f + 40, c.lds + 4096

def k_spat(name):
    c = GemmCfg('spat', 128, 7, 2048, 5, 'ksplitT', 'nat', 'trp', ldt=4096, xm=4, xn=8, MT=16, NT=16)
    a = Asm()
    ZB = 2048*1792*2
    EB = ((c.nk - c.NS) % c.NS)*c.stage
    def lpre(a):
        srd(a, 24, 36, ZB, WS_Z1); srd(a, 44, 32, 4096)
        a.e("s_lshl_b32 s20, s4, 3"); a.e("s_lshl_b32 s21, s3, 1"); a.e("s_add_u32 s20, s20, s21"); a.e(f"s_mul_i32 s20, s20, {224*256}")
        a.e("s_mul_i32 s21, s5, 3584"); a.e("s_add_u32 s20, s20, s21")
        a.e("v_lshl_add_u32 v4, v1, 4, s20")
        for t in range(7):
            if t < 3: a.e(f"v_add_u32 v{40+t}, {1024*t}, v4")
            elif t > 3: a.e(f"v_add_u32 v{40+t}, {1024*t + 224*256 - 3584}, v4")
        a.e("v_lshrrev_b32 v5, 5, v1"); a.e(f"v_mul_u32_u24 v5, {224*256 - 3584}, v5"); a.e("v_add3_u32 v43, v4, v5, 0")
        a.e("v_add_u32 v43, 3072, v43")
        a.e("s_lshl_b32 s21, s4, 8"); a.e("v_lshl_add_u32 v47, v1, 4, s21")
    def lextra(a):
        a.e("s_mul_i32 s20, s3, 7168")
        for t in range(7):
            a.e(f"s_add_u32 m0, s20, {EB + 1024*t}"); a.e("s_nop 0")
            a.e(f"buffer_load_dwordx4 v{40+t}, s[24:27], 0 offen lds")
        a.e(f"s_mov_b32 m0, {EB + 28672}"); a.e("s_nop 0")
        a.e("buffer_load_dwordx4 v47, s[44:47], 0 offen lds")
    r, cc = prolog(a, name, c, B_WSP, 8*MB, 0, D_WS, ZB, WS_Z2, [(32, B_BSP)], 6, pre=lpre, extra=(8, lextra))
    srd(a, 40, 36, ZB, WS_U)
    f = r.free
    vZ, vB, vo, vz, vb = f, f+28, f+30, f+31, f+32
    a.e("s_lshl_b32 s56, s4, 7"); a.e("s_lshl_b32 s20, s6, 6"); a.e("s_add_u32 s56, s56, s20")
    a.e("s_lshl_b32 s20, s7, 5"); a.e("s_add_u32 s56, s56, s20")
    a.e("s_lshr_b32 s57, s56, 4"); a.e("s_mul_i32 s57, s57, 224"); a.e("s_mul_i32 s20, s5, 14")
    a.e("s_add_u32 s57, s57, s20"); a.e("s_lshl_b32 s57, s57, 8"); a.e(f"s_add_u32 s58, s57, {224*256}")
    a.e("v_and_b32 v2, 15, v1"); a.e(f"v_lshlrev_b32 v{vz}, 4, v2")
    a.e("v_bfe_u32 v3, v1, 4, 1"); a.e(f"v_lshl_add_u32 v{vz}, v3, 3, v{vz}")
    a.e("v_lshrrev_b32 v3, 5, v1"); a.e(f"v_lshl_add_u32 v{vz}, v3, 8, v{vz}")
    a.e("s_lshl_b32 s20, s6, 2"); a.e("s_lshl_b32 s21, s7, 1"); a.e("s_add_u32 s20, s20, s21")
    a.e("s_mul_i32 s21, s20, 3584"); a.e(f"s_add_u32 s21, s21, {EB}"); a.e(f"v_add_u32 v{vz}, s21, v{vz}")
    a.e("s_lshl_b32 s20, s20, 5"); a.e(f"s_add_u32 s20, s20, {EB + 28672}"); a.e(f"v_lshl_add_u32 v{vb}, v2, 1, s20")
    lane_chunk_off(a, vo, 224)
    a.e("s_setprio 1")
    compute_loop(a, c, r)
    stamp(a, 2)
    for i in range(2):
        for j in range(7):
            a.e(f"ds_read_b64 {vr(vZ+(i*7+j)*2,2)}, v{vz} offset:{3584*i + 512*j}")
    a.e("s_waitcnt lgkmcnt(8)")
    for i in range(2): a.e(f"ds_read_u16 v{vB+i}, v{vb} offset:{32*i}")
    ksplit_reduce(a, c, r)
    for i in range(2): a.e(f"v_lshlrev_b32 v{vB+i}, 16, v{vB+i}")
    for i in range(2):
        for j in range(7):
            x = r.acc + (i*7+j)*4; s = vZ + (i*7+j)*2
            for h in range(2):
                unpack(a, 2, 3, s+h)
                a.e(f"v_pk_add_f32 {vr(x+2*h,2)}, {vr(x+2*h,2)}, {vr(vB,2)} op_sel:[0,{i}] op_sel_hi:[1,{i}]")
                a.e(f"v_pk_mul_f32 {vr(x+2*h,2)}, {vr(x+2*h,2)}, v[2:3]")
    items = [(r.acc + j*4, r.acc + (7+j)*4, [],
              (lambda t, j=j: f"buffer_store_dwordx4 {vr(t,4)}, v{vo}, s[40:43], s57 offen offset:{512*j}{STF}")) for j in range(7)]
    store_pairs(a, items, r.T[0], 8)
    stamp(a, 3)
    fin(a, name, 6)
    return a.text(), f + 33, c.lds

def k_wout(name):
    c = GemmCfg('woutL', 64, 4, 1792, 6, 'ksplitF', 'frag', 'frag', xm=8, xn=4, MT=32, NT=8)
    a = Asm()
    ZB = 2048*1792*2
    EB = ((c.nk - c.NS) % c.NS)*c.stage
    def lpre(a):
        srd(a, 40, 36, 24576); srd(a, 48, 36, 4*MB, WS_X1)
        a.e("s_lshl_b32 s20, s4, 2"); a.e("s_add_u32 s20, s20, s3"); a.e("s_lshl_b32 s20, s20, 15")
        a.e("s_lshl_b32 s21, s5, 12"); a.e("s_add_u32 s20, s20, s21"); a.e("v_lshl_add_u32 v40, v1, 4, s20")
        a.e("s_lshl_b32 s21, s5, 9"); a.e(f"s_add_u32 s21, s21, {5*4096}"); a.e("v_lshl_add_u32 v44, v1, 4, s21")
    def lextra(a):
        a.e("s_lshl_b32 s20, s3, 12"); a.e(f"s_add_u32 m0, s20, {EB}"); a.e("s_nop 0")
        for t in range(4):
            a.e(f"buffer_load_dwordx4 v40, s[48:51], 0 offen offset:{1024*t} lds")
        a.e(f"s_mov_b32 m0, {EB + 16384}"); a.e("s_nop 0")
        a.e("buffer_load_dwordx4 v44, s[40:43], 0 offen lds")
    r, cc = prolog(a, name, c, D_WS, ZB, WS_U, D_WS, 1792*2048, WS_WOUT, [(32, D_OUT)], 7, pre=lpre, extra=(5, lextra))
    srd(a, 24, 32, 4*MB)
    f = r.free
    vX, vG, vo, vx, vm = f, f+16, f+32, f+33, f+34
    a.e("s_lshl_b32 s56, s4, 6"); a.e("s_lshl_b32 s20, s7, 5"); a.e("s_add_u32 s56, s56, s20")
    a.e("s_lshl_b32 s57, s5, 7"); a.e("s_lshl_b32 s20, s6, 6"); a.e("s_add_u32 s57, s57, s20")
    a.e("s_lshl_b32 s62, s56, 11"); a.e("s_lshl_b32 s20, s57, 5"); a.e("s_add_u32 s60, s62, s20"); a.e("s_add_u32 s61, s60, 32768")
    a.e("s_lshl_b32 s20, s57, 1"); a.e("s_add_u32 s62, s62, s20"); a.e("s_add_u32 s63, s62, 32768")
    a.e("v_and_b32 v2, 15, v1"); a.e(f"v_lshlrev_b32 v{vx}, 4, v2")
    a.e("v_bfe_u32 v3, v1, 4, 1"); a.e(f"v_lshl_add_u32 v{vx}, v3, 3, v{vx}")
    a.e(f"v_lshlrev_b32 v{vo}, 11, v2"); a.e(f"v_lshl_add_u32 v{vo}, v3, 5, v{vo}")
    a.e("v_lshrrev_b32 v3, 5, v1"); a.e(f"v_lshl_add_u32 v{vx}, v3, 8, v{vx}"); a.e(f"v_lshl_add_u32 v{vo}, v3, 4, v{vo}")
    a.e("s_lshl_b32 s20, s7, 13"); a.e("s_lshl_b32 s21, s6, 11"); a.e("s_add_u32 s20, s20, s21"); a.e(f"s_add_u32 s20, s20, {EB}")
    a.e(f"v_add_u32 v{vx}, s20, v{vx}")
    a.e("v_lshrrev_b32 v3, 4, v1"); a.e("s_lshl_b32 s20, s6, 8"); a.e(f"s_add_u32 s20, s20, {EB + 16384}"); a.e(f"v_lshl_add_u32 v{vm}, v3, 4, s20")
    a.e("s_setprio 1")
    compute_loop(a, c, r)
    stamp(a, 2)
    for i in range(2):
        for j in range(4):
            a.e(f"ds_read_b64 {vr(vX+(i*4+j)*2,2)}, v{vx} offset:{4096*i + 512*j}")
    for j in range(4):
        a.e(f"ds_read_b128 {vr(vG+4*j,4)}, v{vm} offset:{64*j}")
    ksplit_reduce(a, c, r)
    for i in range(2):
        for j in range(4):
            x = r.acc + (i*4+j)*4; s = vX + (i*4+j)*2
            for h in range(2):
                unpack(a, 2, 3, s+h)
                a.e(f"v_pk_fma_f32 {vr(x+2*h,2)}, {vr(x+2*h,2)}, {vr(vG+4*j+2*h,2)}, v[2:3]")
    items = []
    for i in range(2):
        for jp in range(2):
            items.append((r.acc + (i*4+2*jp)*4, r.acc + (i*4+2*jp+1)*4, [],
                          (lambda t, i=i, jp=jp: f"buffer_store_dwordx4 {vr(t,4)}, v{vo}, s[24:27], s{62+i} offen offset:{64*jp}")))
    store_pairs(a, items, r.T[0])
    stamp(a, 3)
    fin(a, name, 7)
    return a.text(), f + 35, c.lds
```

```python
from common import *

def k_mod(name):
    a = Asm(); kernel_header(a, name)
    a.e("s_cmp_ge_u32 s2, 256"); a.e(f"s_cbranch_scc1 {name}_end")
    stamp_start(a)
    a.e(f"s_load_dwordx4 s[28:31], s[0:1], {IN_C}")
    a.e(f"s_load_dwordx4 s[32:35], s[0:1], {A_X}")
    a.e(f"s_load_dwordx2 s[36:37], s[0:1], {D_WS}")
    wave_id(a, 3)
    a.e("v_and_b32 v1, 63, v0")
    a.e("s_and_b32 s4, s2, 15"); a.e("s_lshr_b32 s5, s2, 4")
    a.e("s_lshl_b32 s6, s5, 3"); a.e("s_add_u32 s6, s6, s3"); a.e("s_lshl_b32 s6, s6, 3")
    a.e("s_mul_i32 s20, s6, 12288"); a.e("s_mul_i32 s21, s4, 768"); a.e("s_add_u32 s20, s20, s21")
    a.e("v_mul_u32_u24 v4, 12, v1")
    a.e("v_and_b32 v5, 7, v1"); a.e("v_lshlrev_b32 v5, 1, v5"); a.e("s_lshl_b32 s7, s6, 1")
    a.e("v_lshlrev_b32 v2, 4, v1")
    a.e("s_lshl_b32 s22, s2, 3"); a.e("s_add_u32 s22, s22, s3")
    a.e("s_lshl_b32 s26, s22, 11")
    a.e("s_waitcnt lgkmcnt(0)")
    srd(a, 8, 28, 2048); srd(a, 12, 30, 1024*6144*2)
    a.e("buffer_load_ushort v6, v5, s[8:11], s7 offen")
    for i in range(8):
        a.e(f"buffer_load_dwordx3 {vr(16+4*i,3)}, v4, s[12:15], s20 offen")
        if i < 7: a.e("s_add_u32 s20, s20, 12288")
    srd(a, 40, 32, 4*MB)
    a.e("buffer_load_dwordx4 v[8:11], v2, s[40:43], s26 offen")
    a.e("buffer_load_dwordx4 v[12:15], v2, s[40:43], s26 offen offset:1024")
    srd(a, 44, 34, 6*MB); srd(a, 16, 36, 1*MB)
    a.e("v_lshlrev_b32 v3, 7, v1"); a.e("s_mul_i32 s23, s22, 3072")
    a.e("s_bfm_b64 exec, 24, 0")
    a.e("buffer_load_dword v7, v3, s[44:47], s23 offen")
    a.e("s_bfm_b64 exec, 16, 0")
    a.e("v_mov_b32 v48, 0"); a.e("v_lshlrev_b32 v49, 2, v1"); a.e("s_lshl_b32 s23, s22, 6"); a.e(f"s_add_u32 s23, s23, {WS_ST1}")
    a.e("buffer_store_dword v48, v49, s[16:19], s23 offen")
    a.e("s_mov_b64 exec, -1")
    stamp(a, 1)
    a.e("s_waitcnt vmcnt(12)")
    a.e("v_lshlrev_b32 v6, 16, v6")
    a.e(f"v_mul_f32 v50, {hexf(-1.4426950408889634)}, v6")
    a.e("v_exp_f32 v50, v50"); a.e("s_nop 0")
    a.e("v_add_f32 v50, 1.0, v50"); a.e("v_rcp_f32 v50, v50"); a.e("s_nop 0")
    a.e("v_mul_f32 v6, v6, v50")
    rnd_bf16(a, 6, 6)
    a.e("s_nop 0")
    for i in range(8): a.e(f"v_readlane_b32 s{48+i}, v6, {i}")
    for k in range(6): a.e(f"v_mov_b32 v{56+k}, 0")
    for i in range(8):
        a.e(f"s_waitcnt vmcnt({4+7-i})")
        for q in range(3):
            unpack(a, 50, 51, 16+4*i+q)
            a.e(f"v_fmac_f32 v{56+2*q}, s{48+i}, v50")
            a.e(f"v_fmac_f32 v{57+2*q}, s{48+i}, v51")
    a.e("v_mul_u32_u24 v4, 24, v1"); a.e("s_mul_i32 s21, s3, 1536"); a.e("v_add_u32 v4, s21, v4")
    for q in range(3): a.e(f"ds_write_b64 v4, {vr(56+2*q,2)} offset:{8*q}")
    stamp(a, 2)
    a.e("s_waitcnt vmcnt(2)")
    for i in range(8): unpack(a, 16+2*i, 17+2*i, 8+i)
    a.e("v_add_f32 v4, v16, v17")
    for i in range(2, 16): a.e(f"v_add_f32 v4, v4, v{16+i}")
    row16_sum(a, [4]); a.e("s_nop 0"); xrow_sum(a, [4], [5])
    a.e(f"v_mul_f32 v4, {hexf(1/1024)}, v4")
    for i in range(16): a.e(f"v_sub_f32 v{16+i}, v{16+i}, v4")
    a.e("v_mul_f32 v8, v16, v16")
    for i in range(1, 16): a.e(f"v_fmac_f32 v8, v{16+i}, v{16+i}")
    row16_sum(a, [8]); a.e("s_nop 0"); xrow_sum(a, [8], [5])
    a.e(f"v_mov_b32 v5, {hexf(1e-5)}")
    a.e(f"v_fmac_f32 v5, {hexf(1/1024)}, v8")
    a.e("v_rsq_f32 v8, v5"); a.e("s_nop 0")
    a.e("v_mul_f32_e64 v9, -v4, v8")
    a.e("s_lshl_b32 s23, s22, 3"); a.e(f"s_add_u32 s23, s23, {WS_ST0}")
    a.e("v_mov_b32 v10, 0")
    a.e("s_mov_b64 exec, 1")
    a.e("buffer_store_dwordx2 v[8:9], v10, s[16:19], s23 offen")
    a.e("s_mov_b64 exec, -1")
    a.e("s_waitcnt lgkmcnt(0)"); a.e("s_barrier")
    a.e("s_cmp_ge_u32 s3, 6"); a.e(f"s_cbranch_scc1 {name}_fin")
    a.e("v_lshlrev_b32 v6, 2, v0")
    for w in range(8): a.e(f"ds_read_b32 v{8+w}, v6 offset:{1536*w}")
    a.e("s_mul_i32 s21, s5, 24576"); a.e("s_mul_i32 s20, s4, 1536"); a.e("s_add_u32 s21, s21, s20"); a.e(f"s_add_u32 s21, s21, {WS_MP}")
    a.e("s_waitcnt lgkmcnt(0)")
    for w in range(1, 8): a.e(f"v_add_f32 v8, v8, v{8+w}")
    a.e("buffer_store_dword v8, v6, s[16:19], s21 offen")
    a.label(f"{name}_fin")
    stamp_end(a, 0, 36, 3)
    a.label(f"{name}_end"); a.e("s_endpgm")
    return a.text(), 64, 12288

def k_ln1(name):
    a = Asm(); kernel_header(a, name)
    a.e("s_cmp_ge_u32 s2, 256"); a.e(f"s_cbranch_scc1 {name}_end")
    stamp_start(a)
    a.e(f"s_load_dwordx2 s[28:29], s[0:1], {A_X}")
    a.e(f"s_load_dwordx2 s[36:37], s[0:1], {D_WS}")
    wave_id(a, 3)
    a.e("v_and_b32 v1, 63, v0")
    a.e("s_and_b32 s4, s2, 15"); a.e("s_lshr_b32 s5, s2, 4")
    a.e("s_lshl_b32 s6, s5, 3"); a.e("s_add_u32 s6, s6, s3")
    a.e("v_and_b32 v2, 15, v1"); a.e("v_lshrrev_b32 v3, 4, v1")
    a.e("v_lshlrev_b32 v4, 11, v2"); a.e("v_lshl_add_u32 v4, v3, 4, v4")
    a.e("s_lshl_b32 s20, s6, 15"); a.e("s_lshl_b32 s21, s4, 7"); a.e("s_add_u32 s20, s20, s21")
    a.e("v_lshlrev_b32 v5, 3, v2"); a.e("s_lshl_b32 s22, s6, 7"); a.e(f"s_add_u32 s22, s22, {WS_ST0}")
    a.e("s_lshl_b32 s7, s4, 6"); a.e("s_lshl_b32 s23, s3, 10"); a.e("s_add_u32 s7, s7, s23")
    a.e("s_lshl_b32 s23, s2, 4"); a.e("s_add_u32 s23, s23, 2048")
    a.e("s_cmp_eq_u32 s3, 2"); a.e("s_cselect_b32 s7, s23, s7"); a.e("s_lshl_b32 s24, s7, 2")
    a.e("v_lshlrev_b32 v6, 2, v1")
    a.e("s_waitcnt lgkmcnt(0)")
    srd(a, 8, 28, 4*MB); srd(a, 12, 36, 1*MB); srd(a, 16, 36, 4*MB, WS_H)
    a.e("s_cmp_ge_u32 s3, 3"); a.e(f"s_cbranch_scc1 {name}_nop")
    a.e(f"s_add_u32 s25, s24, {WS_MP}")
    for p in range(16):
        a.e(f"buffer_load_dword v{32+p}, v6, s[12:15], s25 offen")
        if p < 15: a.e("s_add_u32 s25, s25, 24576")
    a.label(f"{name}_nop")
    a.e("buffer_load_dwordx4 v[8:11], v4, s[8:11], s20 offen")
    a.e("buffer_load_dwordx4 v[12:15], v4, s[8:11], s20 offen offset:64")
    a.e("buffer_load_dwordx2 v[48:49], v5, s[12:15], s22 offen")
    a.e("s_cmp_ge_u32 s3, 3"); a.e(f"s_cbranch_scc1 {name}_bar")
    a.e("s_waitcnt vmcnt(3)")
    for p in range(1, 16): a.e(f"v_add_f32 v32, v32, v{32+p}")
    rnd_bf16(a, 32, 32)
    a.e("s_lshr_b32 s25, s7, 10"); a.e("s_cmp_eq_u32 s25, 1"); a.e("s_cselect_b32 s26, 1, 0")
    a.e("s_cmp_eq_u32 s25, 4"); a.e("s_cselect_b32 s26, 1, s26"); a.e("s_cmp_eq_u32 s26, 0")
    a.e(f"s_cbranch_scc1 {name}_st")
    a.e("v_add_f32 v32, 1.0, v32"); rnd_bf16(a, 32, 32)
    a.label(f"{name}_st")
    a.e("s_cmp_eq_u32 s3, 2"); a.e(f"s_cbranch_scc1 {name}_g")
    a.e("s_lshl_b32 s25, s3, 8"); a.e("v_add_u32 v7, s25, v6")
    a.e("ds_write_b32 v7, v32"); a.e(f"s_branch {name}_bar")
    a.label(f"{name}_g")
    a.e("s_mov_b64 exec, 0xffff")
    a.e("buffer_store_dword v32, v6, s[12:15], s24 offen")
    a.e("s_mov_b64 exec, -1")
    a.label(f"{name}_bar")
    a.e("v_lshlrev_b32 v7, 5, v3")
    a.e("s_waitcnt lgkmcnt(0)"); a.e("s_barrier")
    for i in range(2):
        for q in range(2):
            a.e(f"ds_read_b128 {vr(32+8*i+4*q,4)}, v7 offset:{128*i+16*q}")
            a.e(f"ds_read_b128 {vr(52+8*i+4*q,4)}, v7 offset:{256+128*i+16*q}")
    a.e("s_waitcnt vmcnt(0)")
    for i in range(8): unpack(a, 16+2*i, 17+2*i, 8+i)
    for i in range(16): a.e(f"v_fma_f32 v{16+i}, v{16+i}, v48, v49")
    a.e("s_waitcnt lgkmcnt(0)")
    for i in range(16): a.e(f"v_fma_f32 v{16+i}, v{16+i}, v{52+i}, v{32+i}")
    for i in range(8): a.e(f"v_cvt_pk_bf16_f32 v{8+i}, v{16+2*i}, v{17+2*i}")
    a.e("v_lshlrev_b32 v5, 4, v1")
    a.e("s_lshl_b32 s20, s6, 15"); a.e("s_lshl_b32 s21, s4, 11"); a.e("s_add_u32 s20, s20, s21")
    a.e("buffer_store_dwordx4 v[8:11], v5, s[16:19], s20 offen sc1")
    a.e("buffer_store_dwordx4 v[12:15], v5, s[16:19], s20 offen offset:1024 sc1")
    stamp_end(a, 1, 36, 3)
    a.label(f"{name}_end"); a.e("s_endpgm")
    return a.text(), 68, 512
```

```python
from asmlib import *
A_X, A_WQKV, A_WO, B_X, B_WIN, B_WSP, B_BSP, B_WOUT, IN_C, W_MOD, D_OUT, D_DBG, D_WS = [8*i for i in range(13)]
MB = 1 << 20
WS_MOD   = 0
WS_ST1   = 64*1024
WS_UT    = 80*1024
WS_ST2   = 112*1024
WS_FLG   = 68*MB
FSTR = 4352
WS_ST0   = 224*1024
WS_MP    = 256*1024
WS_STAMP = 1*MB
WS_H     = 2*MB
WS_Q     = 6*MB
WS_KV    = 10*MB
WS_O     = 18*MB
WS_H2    = 22*MB
WS_X1    = 26*MB
import os
REUSE = os.environ.get('REUSE', '0') == '1'
WS_Z1    = 2*MB if REUSE else 44*MB
WS_Z2    = 10*MB if REUSE else 52*MB
WS_U     = 18*MB if REUSE else 60*MB
WS_WO    = 30*MB
WS_WIN   = 32*MB
WS_WOUT  = 40*MB
SENT = 0xffffffff
QSCALE = 0.17677669529663687 * 1.4426950408889634
import struct
def f2u(x): return struct.unpack('<I', struct.pack('<f', x))[0]
def hexf(x): return hex(f2u(x))

STAMPS = False
def stamp(a, slot):
    if STAMPS: a.e(f"s_memtime s[{80+2*slot}:{81+2*slot}]")
def stamp_start(a):
    if STAMPS:
        stamp(a, 0); a.e("s_memrealtime s[92:93]"); a.e("s_getreg_b32 s94, hwreg(HW_REG_XCC_ID)")
        for i in (1,2,3): a.e(f"s_mov_b32 s{80+2*i}, 0")
def stamp_end(a, kidx, wsreg, wave_s, nw=8):
    if not STAMPS: return
    stamp(a, 4); a.e("s_memrealtime s[90:91]"); a.e("s_waitcnt lgkmcnt(0)")
    a.e("s_mov_b64 exec, -1")
    srd(a, 76, wsreg, 65536, WS_STAMP + kidx*65536)
    a.e("s_lshl_b32 s75, s2, 3"); a.e(f"s_add_u32 s75, s75, s{wave_s}"); a.e("s_lshl_b32 s75, s75, 5")
    for i in range(8): a.e(f"v_mov_b32 v{2+i}, s{80+2*i}")
    a.e("v_mov_b32 v10, s75")
    a.e("v_and_b32 v11, 63, v0"); a.e("v_cmp_eq_u32 vcc, 0, v11"); a.e("s_and_saveexec_b64 s[74:75], vcc")
    a.e("buffer_store_dwordx4 v[2:5], v10, s[76:79], 0 offen")
    a.e("buffer_store_dwordx4 v[6:9], v10, s[76:79], 0 offen offset:16")

def wave_id(a, sdst, vtmp=1):
    a.e(f"v_lshrrev_b32 v{vtmp}, 6, v0"); a.e("s_nop 0"); a.e(f"v_readfirstlane_b32 s{sdst}, v{vtmp}")

def xrow_sum(a, regs, tmps):
    for op in ("v_permlane16_swap_b32", "v_permlane32_swap_b32"):
        for r, t in zip(regs, tmps): a.e(f"v_mov_b32 v{t}, v{r}")
        if len(regs) < 3: a.e("s_nop 1")
        for r, t in zip(regs, tmps): a.e(f"{op} v{r}, v{t}")
        a.e("s_nop 0")
        for r, t in zip(regs, tmps): a.e(f"v_add_f32 v{r}, v{r}, v{t}")

def row16_sum(a, regs):
    for m in ("quad_perm:[1,0,3,2]", "quad_perm:[2,3,0,1]", "row_half_mirror", "row_mirror"):
        a.e("s_nop 1")
        for r in regs: a.e(f"v_add_f32_dpp v{r}, v{r}, v{r} {m} row_mask:0xf bank_mask:0xf")

def rnd_bf16(a, dst, src):
    a.e(f"v_cvt_pk_bf16_f32 v{dst}, v{src}, v{src}")
    a.e(f"v_and_b32 v{dst}, 0xffff0000, v{dst}")

def unpack(a, lo, hi, src):
    a.e(f"v_lshlrev_b32 v{lo}, 16, v{src}")
    a.e(f"v_and_b32 v{hi}, 0xffff0000, v{src}")

def prefetch(a, srd_s, nbytes, vaddr, vtmp, slice_reg, nslices, step=128, dst=None):
    per = nbytes // nslices
    n = (per + 64*step - 1) // (64*step)
    a.e(f"s_mul_i32 s23, s{slice_reg}, {per}")
    for i in range(n):
        a.e(f"buffer_load_dword v{vtmp}, v{vaddr}, s[{srd_s}:{srd_s+3}], s23 offen")
        if i + 1 < n: a.e(f"s_add_u32 s23, s23, {64*step}")

P_X, P_WQKV, P_WO, P_WIN, P_WSP, P_BSP, P_WOUT, P_OUT = 76, 78, 80, 84, 86, 88, 90, 92
FL_H, FL_Q, FL_O, FL_S, FL_P, FL_W, FL_U = 0, 16, 32, 40, 48, 64, 80
PSLEEP = int(os.environ.get('PSLEEP', '4'))
POLLF = os.environ.get("POLLF", "sc1")
def mstamp(a, idx):
    if not STAMPS: return
    a.e("s_memrealtime s[94:95]"); a.e("s_waitcnt lgkmcnt(0)"); a.e(f"v_writelane_b32 v255, s94, {idx}")
FMODE = os.environ.get('FMODE', 'B')
def flag_off(a, base, sgrp, sidx, mode=None):
    mode = mode or FMODE
    a.e(f"s_add_u32 s20, s{sgrp}, {base}"); a.e(f"s_mul_i32 s20, s20, {FSTR}")
    if sidx is not None and mode != 'C':
        a.e(f"s_lshl_b32 s{sidx}, s{sidx}, {2 if mode == 'A' else 7}"); a.e(f"s_add_u32 s20, s20, s{sidx}")
def flag_set(a, soff, mode=None):
    mode = mode or FMODE
    a.e("v_mov_b32 v2, 1"); a.e("v_mov_b32 v3, 0")
    a.e("s_mov_b64 exec, 1")
    if mode == 'C': a.e(f"buffer_atomic_add v2, v3, s[96:99], s{soff} offen")
    else: a.e(f"buffer_store_dword v2, v3, s[96:99], s{soff} offen sc1")
    a.e("s_mov_b64 exec, -1")
def poll(a, lbl, soff, n, mode=None, nslot=1):
    mode = mode or FMODE
    a.e("v_and_b32 v2, 63, v0")
    if mode == 'C':
        a.e(f"v_mul_u32_u24 v2, {FSTR}, v2"); a.e(f"s_bfm_b64 exec, {nslot}, 0")
    else:
        a.e(f"v_lshlrev_b32 v2, {2 if mode == 'A' else 7}, v2"); a.e(f"s_bfm_b64 exec, {n}, 0")
    a.e("s_mov_b32 s19, 0x8000")
    a.label(lbl)
    a.e(f"buffer_load_dword v240, v2, s[96:99], s{soff} offen {POLLF}")
    a.e("s_waitcnt vmcnt(0)")
    a.e(f"v_cmp_ne_u32 vcc, {n if mode == 'C' else 1}, v240")
    a.e("s_sub_u32 s19, s19, 1"); a.e("s_cmp_eq_u32 s19, 0")
    a.e(f"s_cbranch_scc1 {lbl}_d"); a.e(f"s_cbranch_vccz {lbl}_d"); a.e(f"s_sleep {PSLEEP}"); a.e(f"s_branch {lbl}")
    a.label(f"{lbl}_d")
    a.e("s_mov_b64 exec, -1")
def wg_signal(a, lbl, off_fn):
    a.e("s_waitcnt vmcnt(0)"); a.e("s_barrier")
    a.e("s_cmp_eq_u32 s3, 0"); a.e(f"s_cbranch_scc0 {lbl}")
    off_fn(a); flag_set(a, 20)
    a.label(lbl)

def poll256(a, lbl, base):
    a.e("v_and_b32 v2, 31, v0"); a.e("v_lshlrev_b32 v2, 7, v2"); a.e("v_bfe_u32 v3, v0, 5, 1"); a.e(f"v_mul_u32_u24 v3, {FSTR}, v3")
    a.e("v_add_u32 v2, v2, v3")
    a.e("s_mov_b32 s19, 0x8000")
    a.label(lbl)
    for i in range(4):
        a.e(f"s_mov_b32 s20, {(base + 2*i)*FSTR}")
        a.e(f"buffer_load_dword v{240+i}, v2, s[96:99], s20 offen {POLLF}")
    a.e("s_waitcnt vmcnt(0)")
    a.e("v_and_b32 v240, v240, v241"); a.e("v_and_b32 v242, v242, v243"); a.e("v_and_b32 v240, v240, v242")
    a.e("v_cmp_ne_u32 vcc, 1, v240")
    a.e("s_sub_u32 s19, s19, 1"); a.e("s_cmp_eq_u32 s19, 0")
    a.e(f"s_cbranch_scc1 {lbl}_d"); a.e(f"s_cbranch_vccz {lbl}_d"); a.e(f"s_sleep {PSLEEP}"); a.e(f"s_branch {lbl}")
    a.label(f"{lbl}_d")
```

```python
from asmlib import *

class GemmCfg:
    def __init__(s, name, TM, NB, K, NS, mode, tmode, fmode, ldt=None, ldf=None,
                 groups=None, swap=None, xm=None, xn=None, MT=None, NT=None):
        s.name = name; s.TM = TM; s.NB = NB; s.K = K; s.NS = NS
        s.mode = mode
        s.tmode = tmode
        s.fmode = fmode
        s.ldt = ldt; s.ldf = ldf
        s.groups = groups
        s.swap = swap or [False]*NB
        s.xm = xm; s.xn = xn
        s.MT = MT; s.NT = NT
        s.nT = TM // 8
        if fmode == 'tr':
            full, half = groups
            s.nF = full*8 + (4 if half else 0)
        else:
            s.nF = NB*2*(1 if mode == 'ksplitT' else 2)
        s.stage = (s.nT + s.nF)*1024
        s.nk = K // 64
        s.lds = s.stage*NS
        s.ksplit = mode != '2x2'

V_ACC = 8

def decode_tile(a, c):
    import math
    rx = c.MT // c.xm
    lrx = int(math.log2(rx)); lxm = int(math.log2(c.xm))
    a.e("s_and_b32 s20, s2, 7")
    a.e("s_lshr_b32 s21, s2, 3")
    a.e(f"s_and_b32 s4, s20, {rx-1}")
    a.e(f"s_lshl_b32 s4, s4, {lxm}")
    a.e(f"s_and_b32 s22, s21, {c.xm-1}")
    a.e("s_add_u32 s4, s4, s22")
    a.e(f"s_lshr_b32 s5, s20, {lrx}")
    a.e(f"s_mul_i32 s5, s5, {c.xn}")
    a.e(f"s_lshr_b32 s22, s21, {lxm}")
    a.e("s_add_u32 s5, s5, s22")

def loader(a, c, fcol_bytes, pre=None, tail=None, postP=None, xf=None, fitem=None, extra=None, lfin=None, mega=None):
    n = c.name
    vL = 1
    a.e(f"v_and_b32 v{vL}, 63, v0")
    nTi = c.nT // 4
    vT0 = 8
    vF0 = vT0 + nTi
    if c.tmode == 'frag':
        kb = c.K // 32
        a.e(f"s_mul_i32 s20, s4, {c.TM//16}")
        a.e("s_lshr_b32 s21, s3, 1")
        a.e("s_add_u32 s20, s20, s21")
        a.e(f"s_mul_i32 s20, s20, {kb*1024}")
        a.e("s_and_b32 s21, s3, 1")
        a.e("s_lshl_b32 s21, s21, 10")
        a.e("s_add_u32 s20, s20, s21")
        a.e(f"v_lshlrev_b32 v2, 4, v{vL}")
        a.e(f"v_add_u32 v{vT0}, s20, v2")
        for t in range(1, nTi):
            a.e(f"v_add_u32 v{vT0+t}, {t*2*kb*1024}, v{vT0}")
        dT = 2048
    else:
        a.e(f"v_lshrrev_b32 v2, 4, v{vL}")
        a.e("s_and_b32 s21, s3, 1")
        a.e("s_lshl_b32 s21, s21, 2")
        a.e("v_or_b32 v2, s21, v2")
        a.e(f"v_and_b32 v3, 7, v{vL}")
        a.e("v_xor_b32 v2, v2, v3")
        a.e("v_lshlrev_b32 v2, 4, v2")
        a.e(f"v_lshrrev_b32 v3, 3, v{vL}")
        a.e(f"s_mul_i32 s20, s4, {c.TM}")
        a.e("s_lshl_b32 s21, s3, 3")
        a.e("s_add_u32 s20, s20, s21")
        a.e("v_add_u32 v3, s20, v3")
        a.e(f"s_mov_b32 s21, {c.ldt}")
        a.e("v_mul_lo_u32 v3, v3, s21")
        a.e(f"v_add_u32 v{vT0}, v2, v3")
        for t in range(1, nTi):
            a.e(f"v_add_u32 v{vT0+t}, {t*32*c.ldt}, v{vT0}")
        dT = 128
    if c.fmode == 'tr':
        full, half = c.groups
        a.e(f"v_bfe_u32 v2, v{vL}, 4, 1")
        a.e("s_and_b32 s21, s3, 1")
        a.e("s_lshl_b32 s21, s21, 1")
        a.e("v_or_b32 v2, s21, v2")
        a.e(f"v_bfe_u32 v3, v{vL}, 1, 2")
        a.e("v_xor_b32 v2, v2, v3")
        a.e("v_lshlrev_b32 v2, 5, v2")
        a.e(f"v_and_b32 v3, 1, v{vL}")
        a.e("v_lshl_add_u32 v2, v3, 4, v2")
        a.e(f"v_lshrrev_b32 v3, 3, v{vL}")
        a.e("s_lshl_b32 s21, s3, 3")
        a.e("v_add_u32 v3, s21, v3")
        a.e(f"s_mov_b32 s21, {c.ldf}")
        a.e("v_mul_lo_u32 v3, v3, s21")
        a.e("v_add_u32 v2, v2, v3")
        for G in range(full):
            fcol_bytes(a, G, 20)
            a.e(f"v_add_u32 v{vF0+2*G}, s20, v2")
            a.e(f"v_add_u32 v{vF0+2*G+1}, {32*c.ldf}, v{vF0+2*G}")
        nFi = [2*full + (1 if half else 0)]*4
        if half:
            a.e(f"v_bfe_u32 v2, v{vL}, 1, 1")
            a.e(f"v_lshrrev_b32 v3, 5, v{vL}")
            a.e("v_xor_b32 v2, v2, v3")
            a.e("v_lshlrev_b32 v2, 5, v2")
            a.e(f"v_and_b32 v3, 1, v{vL}")
            a.e("v_lshl_add_u32 v2, v3, 4, v2")
            a.e(f"v_lshrrev_b32 v3, 2, v{vL}")
            a.e("s_lshl_b32 s21, s3, 4")
            a.e("v_add_u32 v3, s21, v3")
            a.e(f"s_mov_b32 s21, {c.ldf}")
            a.e("v_mul_lo_u32 v3, v3, s21")
            a.e("v_add_u32 v2, v2, v3")
            fcol_bytes(a, 'H', 20)
            a.e(f"v_add_u32 v{vF0+2*full}, s20, v2")
        dF = 64*c.ldf
    else:
        kb = c.K // 32
        fcol_bytes(a, 0, 20)
        a.e("s_lshr_b32 s21, s3, 1")
        a.e("s_add_u32 s20, s20, s21")
        a.e(f"s_mul_i32 s20, s20, {kb*1024}")
        a.e("s_and_b32 s21, s3, 1")
        a.e("s_lshl_b32 s21, s21, 10")
        a.e("s_add_u32 s20, s20, s21")
        a.e(f"v_lshlrev_b32 v2, 4, v{vL}")
        a.e(f"v_add_u32 v{vF0}, s20, v2")
        mx = (c.nF + 3)//4
        for t in range(1, mx):
            a.e(f"v_add_u32 v{vF0+t}, {t*2*kb*1024}, v{vF0}")
        if fitem:
            for t in range(mx):
                fitem(a, t, 20)
                a.e(f"s_mul_i32 s20, s20, {kb*1024}"); a.e("s_add_u32 s20, s20, s21")
                a.e(f"v_add_u32 v{vF0+t}, s20, v2")
        nFi = [len(range(w, c.nF, 4)) for w in range(4)]
        dF = 2048
    a.e("s_mov_b32 s16, 0")
    a.e("s_mov_b32 s17, 0")
    a.e("s_lshl_b32 s18, s3, 10")
    a.e(f"s_add_u32 s23, s18, {c.lds}")
    if pre: pre(a)
    M = mega
    sc = lambda side: " sc1" if side != M['indep'] else ""
    def iss(side, nf, slot_s, k_s):
        if side == 'T':
            for t in range(nTi):
                a.e(f"s_add_u32 m0, s{slot_s}, {t*4096}"); a.e("s_nop 0")
                a.e(f"buffer_load_dwordx4 v{vT0+t}, s[8:11], s{k_s} offen{sc('T')} lds")
            a.e(f"s_add_u32 s{k_s}, s{k_s}, {dT}")
            return nTi
        for t in range(nf):
            a.e(f"s_add_u32 m0, s{slot_s}, {(c.nT + 4*t)*1024}"); a.e("s_nop 0")
            a.e(f"buffer_load_dwordx4 v{vF0+t}, s[12:15], s{k_s} offen{sc('F')} lds")
        a.e(f"s_add_u32 s{k_s}, s{k_s}, {dF}")
        return nf
    def adv():
        a.e(f"s_add_u32 s18, s18, {c.stage}"); a.e("s_cmp_ge_u32 s18, s23")
        a.e(f"s_cselect_b32 s20, {c.lds}, 0"); a.e("s_sub_u32 s18, s18, s20")
    variants = sorted(set(nFi), reverse=True)
    for vi, nf in enumerate(variants):
        if len(variants) > 1 and vi == 0:
            a.e(f"s_cmp_ge_u32 s3, {nFi.count(nf)}"); a.e(f"s_cbranch_scc1 {n}_ld_v1")
        if vi == 1: a.label(f"{n}_ld_v1")
        ops = []
        def wait_stage(st):
            last = max(i for i, t in enumerate(ops) if t == st)
            a.e(f"s_waitcnt vmcnt({min(63, len(ops)-1-last)})")
        ks = {'T': 16, 'F': 17}
        ind = M['indep']; dep = 'T' if ind == 'F' else 'F'
        if M.get('pre_indep'): M['pre_indep'](a, vi)
        for st in range(c.NS):
            a.e(f"s_add_u32 s22, s18, {st*c.stage}")
            ops += [st]*iss(ind, nf, 22, ks[ind])
        M['mid'](a, vi)
        if M.get('post_dep'): ops += [0]*M['post_dep'](a)
        for st in range(c.NS):
            a.e(f"s_add_u32 s22, s18, {st*c.stage}")
            ops += [st]*iss(dep, nf, 22, ks[dep])
        wait_stage(0); a.e("s_barrier")
        if postP: postP(a)
        per = nTi + nf
        npeel = c.NS - 2
        for i in range(npeel):
            wait_stage(i+1); a.e("s_barrier")
            ops += [i+c.NS]*(iss('T', nf, 18, 16) + iss('F', nf, 18, 17)); adv()
        a.e(f"s_mov_b32 s19, {c.nk - c.NS - npeel}")
        a.label(f"{n}_ld_loop{vi}")
        a.e(f"s_waitcnt vmcnt({per*(c.NS-2)})"); a.e("s_barrier")
        iss('T', nf, 18, 16); iss('F', nf, 18, 17); adv()
        a.e("s_sub_u32 s19, s19, 1"); a.e("s_cmp_lg_u32 s19, 0"); a.e(f"s_cbranch_scc1 {n}_ld_loop{vi}")
        for i in range(c.nk - c.NS, c.nk):
            rem = c.nk - 1 - (i + 1); idx = i - (c.nk - c.NS)
            E = extra[0] if (extra and idx >= 1) else 0
            if rem >= 0: a.e(f"s_waitcnt vmcnt({per*rem + E})")
            elif extra: a.e("s_waitcnt vmcnt(0)")
            if rem < 0 and M.get('lastbar'): M['lastbar'](a)
            a.e("s_barrier")
            if extra and idx == 0: extra[1](a)
        if len(variants) > 1 and vi == 0: a.e(f"s_branch {n}_ld_join")
    if len(variants) > 1: a.label(f"{n}_ld_join")
    if lfin: lfin(a)

class Regs: pass

def compute_setup(a, c, fblock):
    r = Regs()
    NB = c.NB
    r.acc = V_ACC
    nacc = 4*NB*4
    r.T = [r.acc + nacc, r.acc + nacc + 16 + NB*4]
    r.F = [r.T[0] + 16, r.T[1] + 16]
    nxt = r.T[1] + 16 + NB*4
    r.lane = 1
    a.e("v_and_b32 v1, 63, v0")
    if c.mode == '2x2':
        a.e("s_and_b32 s6, s3, 1")
        a.e("s_lshr_b32 s7, s3, 1")
    elif c.mode == 'ksplitT':
        a.e("s_and_b32 s6, s3, 1")
        a.e("s_lshr_b32 s7, s3, 1")
    else:
        a.e("s_and_b32 s6, s3, 1")
        a.e("s_lshr_b32 s7, s3, 1")
    r.Tb = nxt; r.Tc = nxt + 1; nxt += 2
    if c.tmode == 'frag':
        a.e(f"v_lshlrev_b32 v{r.Tb}, 4, v1")
        if c.mode != 'ksplitF':
            a.e("s_lshl_b32 s20, s6, 13")
            a.e(f"v_add_u32 v{r.Tb}, s20, v{r.Tb}")
        if c.ksplit:
            a.e("s_lshl_b32 s20, s7, 10")
            a.e(f"v_add_u32 v{r.Tb}, s20, v{r.Tb}")
        r.t_off = lambda i, sub: i*2048 + sub*1024
    else:
        assert c.ksplit
        a.e("v_and_b32 v2, 15, v1")
        a.e("v_lshrrev_b32 v3, 4, v1")
        a.e("s_lshl_b32 s20, s7, 2")
        a.e("v_or_b32 v3, s20, v3")
        a.e("v_lshrrev_b32 v4, 1, v2")
        a.e("v_xor_b32 v3, v3, v4")
        a.e("v_lshlrev_b32 v3, 4, v3")
        a.e(f"v_lshl_add_u32 v{r.Tb}, v2, 7, v3")
        if c.mode == 'ksplitT':
            a.e("s_lshl_b32 s20, s6, 13")
            a.e(f"v_add_u32 v{r.Tb}, s20, v{r.Tb}")
        r.t_off = lambda i, sub: i*2048
    fbase = c.nT*1024
    if c.fmode == 'tr':
        r.Fb = nxt; r.Fc = nxt + NB; nxt += 2*NB
        a.e("v_lshrrev_b32 v2, 4, v1")
        a.e("v_bfe_u32 v3, v1, 2, 2")
        a.e("v_lshl_add_u32 v4, v2, 3, v3")
        a.e("v_and_b32 v5, 3, v1")
        a.e("v_lshlrev_b32 v5, 3, v5")
        a.e("v_and_b32 v2, 1, v2")
        a.e("v_lshrrev_b32 v3, 1, v3")
        a.e("v_lshl_or_b32 v3, v2, 1, v3")
        r.fhalf = []
        for j in range(NB):
            half = fblock(a, j)
            r.fhalf.append(half)
            a.e(f"v_xor_b32 v6, s21, v{2 if half else 3}")
            a.e("v_lshl_add_u32 v6, v6, 5, v5")
            a.e(f"v_lshl_add_u32 v6, v4, {6 if half else 7}, v6")
            a.e(f"s_add_u32 s20, s20, {fbase}")
            if c.ksplit:
                a.e(f"s_lshl_b32 s22, s7, {11 if half else 12}")
                a.e("s_add_u32 s20, s20, s22")
            a.e(f"v_add_u32 v{r.Fb+j}, s20, v6")
        r.nFa = NB
    else:
        r.Fb = nxt; r.Fc = nxt + 1; nxt += 2
        if c.fmode == 'trp':
            a.e("v_bfe_u32 v2, v1, 2, 3")
            a.e("v_lshrrev_b32 v3, 5, v1")
            a.e("v_lshl_add_u32 v2, v3, 4, v2")
            a.e("v_and_b32 v3, 3, v1")
            a.e("v_lshlrev_b32 v3, 3, v3")
            a.e(f"v_lshl_add_u32 v{r.Fb}, v2, 5, v3")
        else:
            a.e(f"v_lshlrev_b32 v{r.Fb}, 4, v1")
        a.e(f"s_mov_b32 s20, {fbase}")
        if c.ksplit:
            a.e("s_lshl_b32 s22, s7, 10")
            a.e("s_add_u32 s20, s20, s22")
        if c.mode != 'ksplitT':
            a.e(f"s_mul_i32 s22, s{7 if c.mode == '2x2' else 6}, {NB*2048}")
            a.e("s_add_u32 s20, s20, s22")
        a.e(f"v_add_u32 v{r.Fb}, s20, v{r.Fb}")
        r.nFa = 1
    r.free = nxt
    for i in range(nacc):
        a.e(f"v_mov_b32 v{r.acc+i}, 0")
    return r

def reads(c, r, buf, sub):
    out = []
    tl = []
    for i in range(4):
        tl.append(f"ds_read_b128 {vr(r.T[buf]+4*i,4)}, v{r.Tc} offset:{r.t_off(i,sub)}")
    fl = []
    for j in range(c.NB):
        if c.fmode == 'tr':
            h = r.fhalf[j]
            for q in range(2):
                off = sub*(2048 if h else 4096) + q*(256 if h else 512)
                fl.append(f"ds_read_b64_tr_b16 {vr(r.F[buf]+4*j+2*q,2)}, v{r.Fc+j} offset:{off}")
        elif c.fmode == 'trp':
            for q in range(2):
                fl.append(f"ds_read_b64_tr_b16 {vr(r.F[buf]+4*j+2*q,2)}, v{r.Fc} offset:{j*2048+sub*1024+q*256}")
        else:
            fl.append(f"ds_read_b128 {vr(r.F[buf]+4*j,4)}, v{r.Fc} offset:{j*2048+sub*1024}")
    return tl + fl

def mfmas(c, r, buf):
    out = []
    for j in range(c.NB):
        for i in range(4):
            d = vr(r.acc + (i*c.NB + j)*4, 4)
            t = vr(r.T[buf]+4*i, 4); f = vr(r.F[buf]+4*j, 4)
            if c.swap[j]:
                out.append(f"v_mfma_f32_16x16x32_bf16 {d}, {t}, {f}, {d}")
            else:
                out.append(f"v_mfma_f32_16x16x32_bf16 {d}, {f}, {t}, {d}")
    return out

def setslot(c, r):
    o = [f"v_add_u32 v{r.Tc}, s18, v{r.Tb}"]
    for j in range(r.nFa):
        o.append(f"v_add_u32 v{r.Fc+j}, s18, v{r.Fb+j}")
    return o

def advslot(c):
    return [f"s_add_u32 s18, s18, {c.stage}", f"s_cmp_ge_u32 s18, {c.lds}",
            "s_cselect_b32 s18, 0, s18"]

def compute_loop(a, c, r, nomfma=False, noread=False, afterP=None):
    n = c.name
    mf = (lambda b: []) if nomfma else (lambda b: mfmas(c, r, b))
    rd = (lambda b, s: []) if noread else (lambda b, s: reads(c, r, b, s))
    a.e("s_mov_b32 s18, 0")
    for x in setslot(c, r): a.e(x)
    a.e("s_barrier")
    if getattr(c, 'stampP', None): c.stampP(a)
    for x in rd(0, 0): a.e(x)
    if afterP: afterP()
    if not c.ksplit:
        a.e(f"s_mov_b32 s19, {c.nk}")
        a.e("s_waitcnt lgkmcnt(0)")
        a(".p2align 6")
        a.label(f"{n}_c_loop")
        interleave(a, mf(0), rd(1, 1) + advslot(c) + setslot(c, r))
        a.e("s_waitcnt lgkmcnt(0)")
        a.e("s_barrier")
        interleave(a, mf(1), rd(0, 0) + ["s_sub_u32 s19, s19, 1", "s_cmp_lg_u32 s19, 0"])
        a.e("s_waitcnt lgkmcnt(0)")
        a.e(f"s_cbranch_scc1 {n}_c_loop")
    else:
        assert c.nk % 2 == 0
        a.e(f"s_mov_b32 s19, {c.nk//2}")
        for x in advslot(c) + setslot(c, r): a.e(x)
        a(".p2align 6")
        a.label(f"{n}_c_loop")
        for b in range(2):
            a.e("s_waitcnt lgkmcnt(0)")
            a.e("s_barrier")
            extra = advslot(c) + setslot(c, r)
            if b == 1: extra += ["s_sub_u32 s19, s19, 1", "s_cmp_lg_u32 s19, 0"]
            interleave(a, mf(b), rd(1-b, 0) + extra)
        a.e(f"s_cbranch_scc1 {n}_c_loop")
        a.e("s_waitcnt lgkmcnt(0)")
    a.e("s_nop 7")
    a.e("s_nop 7")

def ksplit_reduce(a, c, r):
    NB = c.NB
    n = c.name
    sz = 2*NB*1024
    a.e(f"s_mul_i32 s20, s3, {sz}")
    a.e("v_lshlrev_b32 v2, 4, v1")
    a.e("v_add_u32 v3, s20, v2")
    a.e("s_xor_b32 s21, s3, 2")
    a.e(f"s_mul_i32 s21, s21, {sz}")
    a.e("v_add_u32 v4, s21, v2")
    a.e("s_cmp_eq_u32 s7, 0")
    a.e(f"s_cbranch_scc0 {n}_red_k1")
    for x in range(2*NB):
        a.e(f"ds_write_b128 v3, {vr(r.acc + (2*NB + x)*4, 4)} offset:{x*1024}")
    a.e(f"s_branch {n}_red_j")
    a.label(f"{n}_red_k1")
    for x in range(2*NB):
        a.e(f"ds_write_b128 v3, {vr(r.acc + x*4, 4)} offset:{x*1024}")
    a.e("s_nop 1")
    for x in range(2*NB*4):
        a.e(f"v_mov_b32 v{r.acc + x}, v{r.acc + 2*NB*4 + x}")
    a.label(f"{n}_red_j")
    a.e("s_waitcnt lgkmcnt(0)")
    a.e("s_barrier")
    base = r.acc + 2*NB*4
    for x in range(2*NB):
        a.e(f"ds_read_b128 {vr(base + x*4, 4)}, v4 offset:{x*1024}")
    for x in range(2*NB):
        a.e(f"s_waitcnt lgkmcnt({min(15, 2*NB-1-x)})")
        if x == 2*NB-1: a.e("s_barrier")
        for q in range(0, 4, 2):
            a.e(f"v_pk_add_f32 {vr(r.acc + x*4 + q, 2)}, {vr(r.acc + x*4 + q, 2)}, {vr(base + x*4 + q, 2)}")
```

```python
from common import *

MARGIN = 40.0
NSLOT = 4
CH = 32768
FLG = 163840 - 16
STG = NSLOT*CH

def k_attn(aL, aC, n, force_fallback=False, side=True):
    KI = 2
    for a in (aL, aC):
        attn_common(a)
    attn_helper(aL, n, side)
    attn_compute(aC, n, force_fallback, KI)
    return 168

def attn_common(a):
    a.e("s_and_b32 s4, s2, 7"); a.e("s_lshl_b32 s4, s4, 2"); a.e("s_lshr_b32 s20, s2, 6"); a.e("s_add_u32 s4, s4, s20")
    a.e("s_bfe_u32 s5, s2, 0x30003")
    a.e("v_and_b32 v1, 63, v0")
    vL16 = 4
    a.e(f"v_lshlrev_b32 v{vL16}, 4, v1")
    a.e("s_mov_b32 s33, 0")

def attn_helper(a, n, side):
    vL16 = 4
    a.e("s_mov_b32 s30, s3")
    vD = 5
    a.e("s_lshl_b32 s6, s30, 13"); a.e(f"v_add_u32 v{vD}, s6, v{vL16}"); a.e(f"v_add_u32 v{vD+1}, 4096, v{vD}")
    a.e("s_lshl_b32 s21, s4, 18")
    srd(a, 8, 36, 262144, WS_KV); a.e("s_add_u32 s8, s8, s21"); a.e("s_addc_u32 s9, s9, 0")
    def kv(c):
        a.e(f"s_mov_b32 s16, {c*CH}")
        for h in range(2):
            a.e(f"s_add_u32 m0, s6, {(c % NSLOT)*CH + 4096*h}"); a.e("s_nop 0")
            for i in range(4):
                a.e(f"buffer_load_dwordx4 v{vD+h}, s[8:11], s16 offen offset:{1024*i} sc1 lds")
        return 8
    vSF, vX, vDD, vSA, vSR = 32, 64, 72, 88, 92
    ops = []
    def wait_for(tag):
        last = max(i for i, t in enumerate(ops) if t == tag)
        a.e(f"s_waitcnt vmcnt({min(63, len(ops) - 1 - last)})")
    if side:
        a.e("s_lshl_b32 s22, s2, 2"); a.e("s_add_u32 s22, s22, s30")
        a.e("s_lshr_b32 s38, s4, 1")
        a.e("s_and_b32 s39, s4, 1"); a.e("s_lshl_b32 s20, s5, 1"); a.e("s_add_u32 s39, s39, s20"); a.e("s_lshl_b32 s39, s39, 2"); a.e("s_add_u32 s39, s39, s30")
        a.e("s_mul_i32 s31, s38, 56"); a.e("s_add_u32 s31, s31, s39")
        a.e("s_lshl_b32 s23, s38, 3"); a.e("s_add_u32 s23, s23, s39"); a.e("s_sub_u32 s23, s23, 56")
        a.e("s_cmp_lt_u32 s5, 7"); a.e("s_cselect_b32 s62, 1, 0"); a.e("s_cselect_b32 s31, s31, s23")
        a.e("s_cselect_b32 s40, s84, s80"); a.e("s_cselect_b32 s41, s85, s81")
        a.e(f"s_cselect_b32 s42, {1024*7168}, {2*MB}"); a.e("s_mov_b32 s43, 0x20000")
        a.e("s_cselect_b32 s44, s90, s80"); a.e("s_cselect_b32 s45, s91, s81")
        a.e(f"s_cselect_b32 s46, {1792*2048}, {2*MB}"); a.e("s_mov_b32 s47, 0x20000")
        a.e("s_cselect_b32 s54, 7168, 2048")
        a.e(f"s_cselect_b32 s56, {WS_WIN-WS_WO}, 0"); a.e(f"s_cselect_b32 s60, {WS_WOUT-WS_WO}, 0")
        a.e(f"s_cselect_b32 s61, {56*1024}, 32768")
        a.e("s_lshr_b32 s32, s31, 4"); a.e("s_and_b32 s31, s31, 15")
        a.e("s_lshl_b32 s23, s32, 2"); a.e("s_add_u32 s34, s23, 2"); a.e("s_lshl_b32 s21, s38, 1")
        a.e("s_cmp_lt_u32 s5, 7"); a.e("s_cselect_b32 s20, s39, s31"); a.e("s_cselect_b32 s21, s21, s23"); a.e("s_cselect_b32 s32, s32, s34")
        a.e("s_lshl_b32 s63, s20, 8"); a.e("s_lshl_b32 s68, s21, 7")
        a.e("s_mul_i32 s55, s21, s54"); a.e("s_lshl_b32 s55, s55, 5"); a.e("s_lshl_b32 s23, s20, 7"); a.e("s_add_u32 s55, s55, s23")
        a.e("s_add_u32 s23, s23, s21"); a.e("s_lshl_b32 s23, s23, 10"); a.e("s_add_u32 s56, s56, s23")
        a.e("s_mov_b32 s57, 32768")
        a.e("s_lshl_b32 s59, s32, 16"); a.e("s_lshl_b32 s23, s31, 7"); a.e("s_add_u32 s59, s59, s23")
        a.e("s_mul_i32 s23, s31, s61"); a.e("s_lshl_b32 s23, s23, 2"); a.e("s_add_u32 s60, s60, s23")
        a.e("s_lshl_b32 s23, s32, 10"); a.e("s_add_u32 s60, s60, s23")
        a.e("s_lshl_b32 s69, s22, 13")
        srd(a, 64, 36, 14*MB, WS_WO); srd(a, 72, 36, 128*1024); srd(a, 12, P_WSP, 8*MB)
        a.e("v_and_b32 v8, 1, v1"); a.e("v_sub_u32 v8, 4, v8"); a.e("v_lshlrev_b32 v8, 12, v8")
        a.e("v_lshrrev_b32 v7, 4, v1"); a.e("v_lshl_add_u32 v10, v7, 5, v8")
        a.e("v_bfe_u32 v8, v1, 2, 2"); a.e("v_lshl_add_u32 v8, v7, 3, v8"); a.e("v_lshlrev_b32 v8, 7, v8")
        a.e("v_and_b32 v9, 3, v1"); a.e("v_lshl_add_u32 v8, v9, 3, v8")
        a.e(f"s_add_u32 s20, s6, {STG}"); a.e("v_add_u32 v8, s20, v8")
        a.e("v_bfe_u32 v9, v1, 3, 2")
        for b in range(4):
            a.e(f"v_xor_b32 v7, {b}, v9"); a.e(f"v_lshl_add_u32 v{vSR+b}, v7, 5, v8")
        a.e("v_bfe_u32 v8, v1, 4, 1"); a.e("v_bfe_u32 v7, v1, 1, 2"); a.e("v_xor_b32 v8, v8, v7")
        a.e("v_and_b32 v7, 1, v1"); a.e("v_lshlrev_b32 v7, 4, v7"); a.e("v_lshl_add_u32 v8, v8, 5, v7")
        a.e("v_xor_b32 v9, 64, v8"); a.e("v_lshrrev_b32 v7, 3, v1"); a.e("v_mul_lo_u32 v11, v7, s54")
        a.e(f"v_add_u32 v{vSA}, v8, v11"); a.e(f"v_add_u32 v{vSA+1}, v9, v11")
        a.e(f"v_lshl_add_u32 v{vSA+2}, v7, 11, v8"); a.e(f"v_lshl_add_u32 v{vSA+3}, v7, 11, v9")
    def sdma(srd_s, va, ld8, off_s, nt):
        a.e(f"s_mov_b32 s21, s{off_s}")
        for jj in range(4*nt):
            a.e(f"s_add_u32 m0, s6, {STG + 1024*jj}")
            if jj: a.e(f"s_add_u32 s21, s21, {ld8}")
            else: a.e("s_nop 0")
            a.e(f"buffer_load_dwordx4 v{va+(jj&1)}, s[{srd_s}:{srd_s+3}], s21 offen lds")
    def sproc(k, off_s, str_s, mf):
        for b in range(4):
            for q in range(2):
                a.e(f"ds_read_b64_tr_b16 {vr(vSF+16*k+4*b+2*q,2)}, v{vSR+b} offset:{4096*k + 512*q}")
        a.e(f"s_add_u32 s20, s{off_s}, {1024*k}")
        a.e("s_waitcnt lgkmcnt(0)")
        for b in range(4):
            a.e(f"buffer_store_dwordx4 {vr(vSF+16*k+4*b,4)}, v{vL16}, s[64:67], s20 offen sc1")
            if b < 3: a.e(f"s_add_u32 s20, s20, s{str_s}")
            if mf:
                cc = "0" if k == 0 else vr(vDD+4*b, 4)
                a.e(f"v_mfma_f32_16x16x32_bf16 {vr(vDD+4*b,4)}, {vr(vX+4*k,4)}, {vr(vSF+16*k+4*b,4)}, {cc}")
    a.e("s_barrier"); a.e("s_barrier")
    for c in range(3): ops += [f"c{c}"]*kv(c)
    wait_for("c0"); a.e("s_barrier")
    for i in range(8):
        if side:
            if i == 0:
                a.e("s_lshl_b32 s35, s54, 3")
                sdma(40, vSA, "s35", 55, 2); ops += ["A"]*8
                for k in range(2):
                    for h in range(2):
                        a.e(f"buffer_load_dwordx4 {vr(16+8*k+4*h,4)}, v10, s[72:75], s68 offen offset:{128*k+16*h}")
                ops += ["X"]*4
            elif i == 1:
                a.e("v_lshlrev_b32 v7, 7, v1")
                a.e("buffer_load_dword v12, v7, s[12:15], s69 offen"); ops += ["T"]
            elif i == 2:
                wait_for("X")
                a.e("v_and_b32 v7, 1, v1"); a.e("v_xor_b32 v7, 1, v7"); a.e("v_cvt_f32_u32 v7, v7")
                for q in range(16):
                    rnd_bf16(a, 16+q, 16+q); a.e(f"v_add_f32 v{16+q}, v{16+q}, v7")
                for q in range(8): a.e(f"v_cvt_pk_bf16_f32 v{vX+q}, v{16+2*q}, v{17+2*q}")
                sproc(0, 56, 57, True); sproc(1, 56, 57, True); ops += ["S"]*8
                sdma(44, vSA+2, "16384", 59, 2); ops += ["B"]*8
            elif i == 3:
                a.e("s_cmp_eq_u32 s62, 0"); a.e(f"s_cselect_b32 s74, 0, {128*1024}")
                a.e("s_bfm_b64 vcc, 16, 16")
                for r in range(2): a.e(f"v_cndmask_b32 v{vDD+r}, v{vDD+r}, v{vDD+4+r}, vcc")
                a.e("s_bfm_b64 vcc, 16, 48")
                for r in range(2): a.e(f"v_cndmask_b32 v{vDD+8+r}, v{vDD+8+r}, v{vDD+12+r}, vcc")
                a.e("s_bfm_b64 vcc, 32, 32")
                for r in range(2): a.e(f"v_cndmask_b32 v{vDD+r}, v{vDD+r}, v{vDD+8+r}, vcc")
                a.e("v_lshlrev_b32 v7, 2, v1"); a.e(f"s_add_u32 s20, s63, {WS_UT}"); a.e(f"s_add_u32 s21, s20, {3584*4}")
                a.e(f"buffer_atomic_add_f32 v{vDD}, v7, s[72:75], s20 offen")
                a.e(f"buffer_atomic_add_f32 v{vDD+1}, v7, s[72:75], s21 offen"); ops += ["U"]*2
            elif i == 4:
                wait_for("B")
                sproc(0, 60, 61, False)
                a.e("s_cmp_eq_u32 s62, 0"); a.e(f"s_cselect_b32 s66, {14*MB}, 0")
                sproc(1, 60, 61, False); ops += ["S2"]*8
            elif i == 5:
                a.e("s_waitcnt vmcnt(0)")
            elif i == 6:
                a.e("s_cmp_eq_u32 s3, 0"); a.e(f"s_cbranch_scc0 {n}_ns")
                a.e("s_mov_b32 s21, s4"); flag_off(a, FL_S, 5, 21, 'B'); flag_set(a, 20, 'B')
                a.label(f"{n}_ns")
        if i < 7: wait_for(f"c{i+1}")
        a.e("s_barrier")
        if i + 3 < 8: ops += [f"c{i+3}"]*kv(i+3)
    if side:
        a.e("s_cmp_eq_u32 s3, 0"); a.e(f"s_cbranch_scc0 {n}_hchk")
        a.e(f"s_mov_b32 s20, {(FL_S+7)*FSTR}")
        poll(a, f"{n}_sp", 20, 32, 'B')
    a.label(f"{n}_hchk")
    a.e("s_barrier")
    a.e(f"v_mov_b32 v7, {FLG}"); a.e("ds_read_b128 v[8:11], v7"); a.e("s_waitcnt lgkmcnt(0)")
    a.e("v_or3_b32 v8, v8, v9, v10"); a.e("v_or_b32 v8, v8, v11"); a.e("s_nop 0"); a.e("v_readfirstlane_b32 s20, v8"); a.e("s_nop 3")
    a.e("s_cmp_eq_u32 s20, 0"); a.e(f"s_cbranch_scc1 {n}_hend")
    a.e("s_waitcnt vmcnt(0)")
    a.e("s_mov_b32 s19, 2")
    a.label(f"{n}_hfb")
    a.e("s_barrier")
    for c in range(3): kv(c)
    a.e("s_waitcnt vmcnt(16)"); a.e("s_barrier")
    for i in range(8):
        a.e(f"s_waitcnt vmcnt({8 if i < 6 else 0})"); a.e("s_barrier")
        if i + 3 < 8: kv(i+3)
    a.e("s_sub_u32 s19, s19, 1"); a.e("s_cmp_lg_u32 s19, 0"); a.e(f"s_cbranch_scc1 {n}_hfb")
    a.e(f"s_branch {n}_hchk")
    a.label(f"{n}_hend")

def attn_compute(a, n, force_fallback, KI):
    vL16 = 4
    a.e("s_cmp_eq_u32 s3, 0"); a.e(f"s_cbranch_scc0 {n}_np")
    a.e("s_lshr_b32 s20, s4, 1"); flag_off(a, FL_Q, 20, None)
    poll(a, f"{n}_dp", 20, 16)
    a.label(f"{n}_np")
    a.e("s_barrier")
    vQ, vNM, vS, vP, vO, vL, vONE, vK, vV = 8, 24, 56, 88, 96, 128, 136, 140, 148
    vA, vAn, vQo = 2, 3, 5
    a.e(f"v_bfe_u32 v{vQo}, v1, 4, 1"); a.e(f"v_lshlrev_b32 v{vQo}, 15, v{vQo}")
    a.e("v_lshrrev_b32 v6, 5, v1"); a.e(f"v_lshl_add_u32 v{vQo}, v6, 8, v{vQo}")
    a.e("v_and_b32 v6, 15, v1"); a.e(f"v_lshl_add_u32 v{vQo}, v6, 4, v{vQo}")
    a.e("s_lshl_b32 s7, s5, 2"); a.e("s_add_u32 s7, s7, s3"); a.e("s_lshl_b32 s7, s7, 17")
    a.e("s_lshl_b32 s20, s4, 10"); a.e("s_add_u32 s7, s7, s20"); a.e("s_add_u32 s32, s7, 65536")
    srd(a, 12, 36, 4*MB, WS_Q); srd(a, 24, 36, 4*MB, WS_O)
    def loadq():
        for q in range(2):
            for s in range(2):
                a.e(f"buffer_load_dwordx4 {vr(vQ+8*q+4*s,4)}, v{vQo}, s[12:15], s{32 if q else 7} offen offset:{512*s} sc1")
    loadq()
    a.e("v_bfe_u32 v6, v1, 2, 1"); a.e("v_bfe_u32 v7, v1, 4, 1"); a.e("v_cmp_eq_u32 vcc, v6, v7")
    a.e("v_mov_b32 v6, 0x3f803f80"); a.e("s_setprio 2")
    a.e(f"v_cndmask_b32 v{vONE}, 0, v6, vcc")
    for i in range(1, 4): a.e(f"v_mov_b32 v{vONE+i}, v{vONE}")
    def zero_state():
        for i in range(32): a.e(f"v_mov_b32 v{vO+i}, 0")
        for i in range(8): a.e(f"v_mov_b32 v{vL+i}, 0")
        for i in range(4): a.e(f"v_mov_b32 v{vP+4+i}, 0")
        for i in range(4): a.e(f"v_mov_b32 v{vV+8+i}, 0")
        a.e(f"v_mov_b32 v{vA}, v{vL16}"); a.e("s_mov_b32 s18, 0")
    zero_state()
    a.e("s_barrier")
    mstamp(a, 3*KI)
    K = lambda s: vr(vK + 4*s, 4)
    V0 = lambda p: vr(vV + 4*p, 4)
    V1 = vr(vV + 8, 4)
    S = lambda b: vr(vS + 16*b, 16)
    O = lambda b: vr(vO + 16*b, 16)
    L = lambda b: vr(vL + 4*b, 4)
    NM = lambda b: vr(vNM + 16*b, 16)
    Q = lambda b, s: vr(vQ + 8*b + 4*s, 4)
    P = lambda s: vr(vP + 4*s, 4)
    rdK = lambda s, areg, off: f"ds_read_b128 {K(s)}, v{areg} offset:{off + 1024*s}"
    for s in range(2): a.e(rdK(s, vA, 0))
    a.e(f"ds_read_b128 {V0(0)}, v{vA} offset:2048")
    a.e("s_waitcnt vmcnt(0) lgkmcnt(0)")
    for b in range(2):
        a.e(f"v_mfma_f32_32x32x16_bf16 {S(b)}, {K(0)}, {Q(b,0)}, 0")
        a.e(f"v_mfma_f32_32x32x16_bf16 {S(b)}, {K(1)}, {Q(b,1)}, {S(b)}")
    a.e("s_nop 7"); a.e("s_nop 1")
    mg = -200.0 if force_fallback else MARGIN
    def setnm(b, src, margin):
        a.e(f"v_mov_b32 v7, v{src}"); a.e("s_nop 1"); a.e(f"v_permlane32_swap_b32 v{src}, v7"); a.e("s_nop 0")
        a.e(f"v_max_f32 v6, v{src}, v7")
        a.e(f"v_sub_f32 v{vNM+16*b}, {hexf(-margin) if margin else 0}, v6")
        for i in range(1, 16): a.e(f"v_mov_b32 v{vNM+16*b+i}, v{vNM+16*b}")
    for b in range(2):
        s0 = vS + 16*b
        a.e(f"v_max3_f32 v6, v{s0}, v{s0+1}, v{s0+2}")
        for i in range(3, 15, 2): a.e(f"v_max3_f32 v6, v6, v{s0+i}, v{s0+i+1}")
        a.e(f"v_max_f32 v6, v6, v{s0+15}")
        setnm(b, 6, mg)
    a.label(f"{n}_havem")
    a.e("s_nop 1")
    a.e(f"v_mfma_f32_32x32x16_bf16 {S(0)}, {K(0)}, {Q(0,0)}, {NM(0)}")
    a.e(f"v_mfma_f32_32x32x16_bf16 {S(0)}, {K(1)}, {Q(0,1)}, {S(0)}")
    a.e("s_mov_b32 s19, 8")
    a.e("s_nop 7"); a.e("s_nop 3")
    a(".p2align 6")
    a.label(f"{n}_loop")
    for ph in range(16):
        t = ph >> 1; b = ph & 1; nb = 1 - b
        E = lambda x, y: [a.e(f"v_exp_f32 v{vS+16*b+i}, v{vS+16*b+i}") for i in range(x, y)]
        C = lambda x, y: [a.e(f"v_cvt_pk_bf16_f32 v{vP+i}, v{vS+16*b+2*i}, v{vS+16*b+2*i+1}") for i in range(x, y)]
        na, no = (vA, (t+1)*4096) if t < 7 else (vAn, 0)
        if b == 1: a.e("s_waitcnt lgkmcnt(0)")
        a.e(f"v_mfma_f32_32x32x16_bf16 {S(nb)}, {K(0)}, {Q(nb,0)}, {NM(nb)}")
        if ph == 14: a.e("s_barrier")
        if b == 0: a.e(rdK(0, na, no))
        if ph == 13:
            a.e(f"s_add_u32 s18, s18, {CH}"); a.e(f"s_and_b32 s18, s18, {NSLOT*CH-1}")
        E(0, 3)
        a.e(f"v_mfma_f32_16x16x32_bf16 {L(nb)}, {vr(vONE,4)}, {P(1)}, {L(nb)}")
        E(3, 5)
        a.e(f"v_mfma_f32_32x32x16_bf16 {O(nb)}, {V1}, {P(1)}, {O(nb)}")
        if b == 0: a.e(f"ds_read_b128 {V1}, v{vA} offset:{t*4096 + 3072}")
        if ph == 13: a.e(f"v_add_u32 v{vAn}, s18, v{vL16}")
        if ph == 15:
            a.e(f"v_mov_b32 v{vA}, v{vAn}")
        E(5, 8); C(0, 2)
        a.e(f"v_mfma_f32_32x32x16_bf16 {S(nb)}, {K(1)}, {Q(nb,1)}, {S(nb)}")
        if b == 0: a.e(rdK(1, na, no))
        if ph == 15:
            a.e("s_sub_u32 s19, s19, 1"); a.e("s_cmp_lg_u32 s19, 0")
        C(2, 4); E(8, 11)
        a.e(f"v_mfma_f32_16x16x32_bf16 {L(b)}, {vr(vONE,4)}, {P(0)}, {L(b)}")
        if b == 0: a.e(f"ds_read_b128 {V0((t+1) & 1)}, v{na} offset:{no + 2048}")
        E(11, 13)
        a.e(f"v_mfma_f32_32x32x16_bf16 {O(b)}, {V0(t & 1)}, {P(0)}, {O(b)}")
        E(13, 16)
        C(4, 8)
    a.e(f"s_cbranch_scc1 {n}_loop")
    a.e("s_nop 0")
    a.e(f"v_mfma_f32_32x32x16_bf16 {O(1)}, {V1}, {P(1)}, {O(1)}")
    a.e(f"v_mfma_f32_16x16x32_bf16 {L(1)}, {vr(vONE,4)}, {P(1)}, {L(1)}")
    mstamp(a, 3*KI+1)
    for b in range(2):
        if b: a.e("s_nop 1")
        a.e(f"v_rcp_f32 v6, v{vL+4*b}")
        a.e(f"v_pk_mul_f32 {vr(vS+2*b,2)}, {vr(vO+16*b,2)}, 0")
        for i in range(2, 16, 2): a.e(f"v_pk_fma_f32 {vr(vS+2*b,2)}, {vr(vO+16*b+i,2)}, 0, {vr(vS+2*b,2)}")
        for i in range(0, 16, 2): a.e(f"v_pk_mul_f32 {vr(vO+16*b+i,2)}, {vr(vO+16*b+i,2)}, v[6:7] op_sel_hi:[1,0]")
        pp = vS + 8 + 8*b
        for i in range(8): a.e(f"v_cvt_pk_bf16_f32 v{pp+i}, v{vO+16*b+2*i}, v{vO+16*b+2*i+1}")
        a.e("s_nop 1")
        for h in range(2):
            a.e(f"v_permlane32_swap_b32 v{pp+4*h}, v{pp+4*h+2}"); a.e(f"v_permlane32_swap_b32 v{pp+4*h+1}, v{pp+4*h+3}")
        for h in range(2):
            a.e(f"buffer_store_dwordx4 {vr(pp+4*h,4)}, v{vQo}, s[24:27], s{32 if b else 7} offen offset:{512*h} sc1")
    a.e(f"v_mov_b32 v6, {hexf(2.0**100)}")
    a.e(f"v_cmp_nle_f32 s[20:21], v{vL}, v6"); a.e(f"v_cmp_nle_f32 vcc, v{vL+4}, v6"); a.e("s_or_b64 s[20:21], s[20:21], vcc")
    a.e(f"v_cmp_u_f32 vcc, v{vS}, v{vS+1}"); a.e("s_or_b64 s[20:21], s[20:21], vcc")
    a.e(f"v_cmp_u_f32 vcc, v{vS+2}, v{vS+3}"); a.e("s_or_b64 s[20:21], s[20:21], vcc")
    a.e("s_cmp_lg_u64 s[20:21], 0"); a.e("s_cselect_b32 s20, 1, 0")
    a.e("s_cmp_eq_u32 s33, 0"); a.e("s_cselect_b32 s20, s20, 0")
    a.e("v_mov_b32 v6, s20"); a.e("s_lshl_b32 s21, s3, 2"); a.e(f"s_add_u32 s21, s21, {FLG}"); a.e("v_mov_b32 v7, s21")
    a.e("ds_write_b32 v7, v6"); a.e("s_waitcnt lgkmcnt(0)"); a.e("s_barrier")
    a.e(f"v_mov_b32 v7, {FLG}"); a.e(f"ds_read_b128 {vr(vK,4)}, v7"); a.e("s_waitcnt lgkmcnt(0)")
    a.e(f"v_or3_b32 v6, v{vK}, v{vK+1}, v{vK+2}"); a.e(f"v_or_b32 v6, v6, v{vK+3}")
    a.e("s_nop 0"); a.e("v_readfirstlane_b32 s20, v6"); a.e("s_nop 3")
    a.e("s_cmp_eq_u32 s20, 0"); a.e(f"s_cbranch_scc1 {n}_ok")
    a.label(f"{n}_fb")
    a.e("s_mov_b32 s33, 1")
    a.e("s_waitcnt vmcnt(0)")
    a.e("s_barrier")
    a.e(f"v_mov_b32 v{vP}, 0xff800000"); a.e(f"v_mov_b32 v{vP+1}, 0xff800000")
    a.e("s_mov_b32 s18, 0"); a.e("s_mov_b32 s19, 8")
    a.e("s_barrier")
    a.label(f"{n}_mx")
    a.e(f"v_add_u32 v{vA}, s18, v{vL16}")
    for t in range(8):
        for s in range(2): a.e(rdK(s, vA, t*4096))
        a.e("s_waitcnt lgkmcnt(0)")
        for b in range(2):
            a.e(f"v_mfma_f32_32x32x16_bf16 {S(b)}, {K(0)}, {Q(b,0)}, 0")
            a.e(f"v_mfma_f32_32x32x16_bf16 {S(b)}, {K(1)}, {Q(b,1)}, {S(b)}")
        a.e("s_nop 7"); a.e("s_nop 7")
        for b in range(2):
            for i in range(0, 16, 2): a.e(f"v_max3_f32 v{vP+b}, v{vP+b}, v{vS+16*b+i}, v{vS+16*b+i+1}")
    a.e("s_barrier")
    a.e(f"s_add_u32 s18, s18, {CH}"); a.e(f"s_and_b32 s18, s18, {NSLOT*CH-1}")
    a.e("s_sub_u32 s19, s19, 1"); a.e("s_cmp_lg_u32 s19, 0"); a.e(f"s_cbranch_scc1 {n}_mx")
    for b in range(2): setnm(b, vP+b, 0)
    zero_state()
    a.e("s_barrier"); a.e("s_barrier")
    for s in range(2): a.e(rdK(s, vA, 0))
    a.e(f"ds_read_b128 {V0(0)}, v{vA} offset:2048")
    a.e("s_waitcnt lgkmcnt(0)")
    a.e(f"s_branch {n}_havem")
    a.label(f"{n}_ok")
    def so(a): a.e("s_mov_b32 s21, s4"); flag_off(a, FL_O, 5, 21)
    wg_signal(a, f"{n}_sig", so)
    mstamp(a, 3*KI+2)
```

```python
from common import *
from gemm import *
import gemm_bench as gb

import os
STF = os.environ.get("STF", " sc1")
QTOUCH = int(os.environ.get("QTOUCH", "0"))
LATE = int(os.environ.get("LATE", "1"))
PBAR = int(os.environ.get("PBAR", "6"))

def prolog(aL, a, name, c, tptr, tbytes, toff, fptr, fbytes, foff, kidx, **lkw):
    decode_tile(aL, c)
    srd(aL, 8, tptr, tbytes, toff); srd(aL, 12, fptr, fbytes, foff)
    base = c.name; fc = gb.fcol(c); c.name = name
    loader(aL, c, fc, **lkw)
    decode_tile(a, c)
    lkw['mega']['cpoll'](a)
    c.name = base; fb = gb.fblock(c); cc = gb.colchunk(c); c.name = name
    r = compute_setup(a, c, fb)
    c.stampP = lambda a: mstamp(a, 3*kidx)
    return r, cc

def P0(a, vi): a.e("s_barrier"); a.e("s_barrier")
def cpoll(name, off_fn, ndw):
    def f(a):
        a.e("s_cmp_eq_u32 s3, 0"); a.e(f"s_cbranch_scc0 {name}_np")
        off_fn(a)
        poll(a, f"{name}_dp", 20, 16*ndw)
        a.label(f"{name}_np")
        a.e("s_barrier")
    return f

def fin(a, kidx, off_fn):
    if off_fn:
        wg_signal(a, f"sig_{kidx}", off_fn)
    mstamp(a, 3*kidx + 2)

def pack_pair(a, t, x, y):
    a.e(f"v_cvt_pk_bf16_f32 v{t}, v{x}, v{x+1}"); a.e(f"v_cvt_pk_bf16_f32 v{t+1}, v{x+2}, v{x+3}")
    a.e(f"v_cvt_pk_bf16_f32 v{t+2}, v{y}, v{y+1}"); a.e(f"v_cvt_pk_bf16_f32 v{t+3}, v{y+2}, v{y+3}")
def swap_pair(a, t):
    a.e(f"v_permlane16_swap_b32 v{t}, v{t+2}"); a.e(f"v_permlane16_swap_b32 v{t+1}, v{t+3}")

def store_pairs(a, items, tmp, ntmp=4):
    pend = None
    for k, (x, y, pre, st) in enumerate(items):
        t = tmp + 4*(k % ntmp)
        pack_pair(a, t, x, y)
        if pend is not None:
            swap_pair(a, pend[0])
            for p in pend[1]: a.e(p)
            a.e(pend[2](pend[0]))
        pend = (t, pre, st)
    a.e("s_nop 1")
    swap_pair(a, pend[0])
    for p in pend[1]: a.e(p)
    a.e(pend[2](pend[0]))

def lane_chunk_off(a, vd, nchunks):
    a.e(f"v_bfe_u32 v{vd}, v1, 4, 1"); a.e(f"v_mul_u32_u24 v{vd}, {nchunks*256}, v{vd}")
    a.e("v_lshrrev_b32 v3, 5, v1"); a.e(f"v_lshl_add_u32 v{vd}, v3, 8, v{vd}")
    a.e("v_and_b32 v3, 15, v1"); a.e(f"v_lshl_add_u32 v{vd}, v3, 4, v{vd}")

def swap23(a, vd, vt):
    a.e(f"v_and_b32 v{vd}, 19, v1")
    a.e(f"v_bfe_u32 v{vt}, v1, 2, 1"); a.e(f"v_lshl_or_b32 v{vd}, v{vt}, 3, v{vd}")
    a.e(f"v_bfe_u32 v{vt}, v1, 3, 1"); a.e(f"v_lshl_or_b32 v{vd}, v{vt}, 2, v{vd}")

def k_qkv(aL, a, name):
    KI = 1
    c = GemmCfg('qkv', 128, 6, 1024, 3, '2x2', 'frag', 'tr', ldf=6144, groups=(3, False), xm=8, xn=4, MT=16, NT=16,
                swap=[False]*4 + [True]*2)
    def off(a): flag_off(a, FL_H, 4, None)
    def mid(a, vi):
        if QTOUCH:
            a.e("s_lshl_b32 s20, s2, 2"); a.e("s_add_u32 s20, s20, s3"); a.e("s_mul_i32 s20, s20, 6144")
            a.e("v_lshlrev_b32 v2, 7, v1"); a.e("s_bfm_b64 exec, 48, 0")
            a.e("buffer_load_dword v60, v2, s[12:15], s20 offen"); a.e("s_mov_b64 exec, -1")
        if LATE: a.e("s_barrier")
        srd(a, 40, 30, 1024*6144*2); srd(a, 44, 28, 2048); srd(a, 48, 36, 24576)
        a.e("s_lshl_b32 s20, s4, 2"); a.e("s_add_u32 s20, s20, s3"); a.e("s_lshl_b32 s20, s20, 4")
        a.e("s_lshl_b32 s21, s20, 1"); a.e("v_and_b32 v2, 15, v1"); a.e("v_lshlrev_b32 v3, 1, v2")
        a.e("buffer_load_ushort v61, v3, s[44:47], s21 offen")
        a.e("s_mul_i32 s20, s20, 12288"); a.e("s_lshl_b32 s21, s5, 7"); a.e("s_add_u32 s20, s20, s21"); a.e("s_add_u32 s20, s20, 4096")
        a.e("v_lshrrev_b32 v3, 4, v1"); a.e("v_lshlrev_b32 v62, 11, v3"); a.e("v_lshl_add_u32 v62, v2, 3, v62")
        for i in range(16):
            a.e(f"buffer_load_dwordx2 {vr(64+2*i,2)}, v62, s[40:43], s20 offen")
            if i < 15: a.e("s_add_u32 s20, s20, 12288")
        if not LATE: a.e("s_barrier")
        P0(a, vi)
    GB = 40960
    def lgemv2(a):
        a.e("s_lshl_b32 s20, s3, 8"); a.e(f"s_add_u32 s20, s20, {GB}"); a.e("v_lshl_add_u32 v2, v1, 2, s20")
        for w in range(4): a.e(f"ds_read_b32 v{56+w}, v2 offset:{1024*w}")
        a.e("s_lshl_b32 s20, s3, 12"); a.e("s_lshl_b32 s21, s5, 8"); a.e("s_add_u32 s20, s20, s21"); a.e("s_add_u32 s20, s20, 8192")
        a.e("v_lshlrev_b32 v2, 2, v1")
        a.e("s_waitcnt lgkmcnt(0)")
        a.e("v_add_f32 v56, v56, v57"); a.e("v_add_f32 v58, v58, v59"); a.e("v_add_f32 v56, v56, v58")
        a.e("buffer_atomic_add_f32 v56, v2, s[48:51], s20 offen")
    def lgemv(a):
        a.e("v_lshlrev_b32 v61, 16, v61")
        a.e(f"v_mul_f32 v2, {hexf(-1.4426950408889634)}, v61")
        a.e("v_exp_f32 v2, v2"); a.e("s_nop 0"); a.e("v_add_f32 v2, 1.0, v2"); a.e("v_rcp_f32 v2, v2"); a.e("s_nop 0")
        a.e("v_mul_f32 v61, v61, v2"); rnd_bf16(a, 61, 61)
        for k in range(4): a.e(f"v_mov_b32 v{56+k}, 0")
        for i in range(16):
            a.e(f"v_readlane_b32 s20, v61, {i}")
            unpack(a, 2, 3, 64+2*i); unpack(a, 4, 5, 65+2*i)
            for k in range(4): a.e(f"v_fmac_f32 v{56+k}, s20, v{2+k}")
        a.e("s_lshl_b32 s20, s3, 10"); a.e(f"s_add_u32 s20, s20, {GB}"); a.e("v_lshl_add_u32 v2, v1, 4, s20")
        a.e("ds_write_b128 v2, v[56:59]"); a.e("s_waitcnt lgkmcnt(0)")
    def lfin(a): a.e("s_waitcnt vmcnt(0)")
    r, cc = prolog(aL, a, name, c, 36, 4*MB, WS_H, P_WQKV, 6*MB, 0, KI, extra=(0, lgemv), lfin=lfin, mega=dict(indep='F', mid=mid, lastbar=lgemv2, cpoll=cpoll(name, off, 1)))
    srd(a, 24, 36, 4*MB, WS_Q); srd(a, 40, 36, 8*MB, WS_KV)
    vq, vk, vv = r.free, r.free+1, r.free+2
    lane_chunk_off(a, vq, 128)
    swap23(a, vk, 3); a.e(f"v_lshlrev_b32 v{vk}, 4, v{vk}")
    a.e("v_lshrrev_b32 v3, 5, v1"); a.e(f"v_lshl_add_u32 v{vk}, v3, 9, v{vk}")
    a.e("v_bfe_u32 v2, v1, 4, 1"); a.e("v_lshl_add_u32 v2, v2, 1, v3")
    a.e("v_and_b32 v3, 15, v1"); a.e("v_lshlrev_b32 v3, 4, v3"); a.e(f"v_lshl_add_u32 v{vv}, v2, 9, v3")
    a.e("s_lshl_b32 s32, s5, 1"); a.e("s_add_u32 s32, s32, s7")
    a.e("s_lshl_b32 s33, s4, 2"); a.e("s_lshl_b32 s20, s6, 1"); a.e("s_add_u32 s33, s33, s20")
    a.e("s_lshl_b32 s34, s33, 16"); a.e("s_lshl_b32 s20, s32, 10"); a.e("s_add_u32 s34, s34, s20")
    a.e("s_lshl_b32 s35, s32, 6"); a.e("s_add_u32 s35, s35, s33"); a.e("s_lshl_b32 s35, s35, 12")
    a.e("s_add_u32 s38, s34, 65536"); a.e("s_add_u32 s39, s35, 4096")
    a.e(f"s_mov_b32 s44, {hexf(QSCALE)}"); a.e(f"s_mov_b32 s45, s44")
    a.e("s_setprio 1")
    compute_loop(a, c, r)
    mstamp(a, 3*KI + 1)
    items = []
    acc = lambda i, j: r.acc + (i*6 + j)*4
    for j in (2, 3, 4, 5, 0, 1):
        for p in range(2):
            jj = j & 1
            if j < 2:
                st = (lambda t, p=p, jj=jj: f"buffer_store_dwordx4 {vr(t,4)}, v{vq}, s[24:27], s{38 if p else 34} offen offset:{jj*512}{STF}")
            elif j < 4:
                st = (lambda t, p=p, jj=jj: f"buffer_store_dwordx4 {vr(t,4)}, v{vk}, s[40:43], s{39 if p else 35} offen offset:{jj*1024}{STF}")
            else:
                st = (lambda t, p=p, jj=jj: f"buffer_store_dwordx4 {vr(t,4)}, v{vv}, s[40:43], s{39 if p else 35} offen offset:{2048+jj*256}{STF}")
            items.append((acc(2*p, j), acc(2*p+1, j), [], st))
    for i in range(4):
        for j in range(2):
            for q in range(2):
                x = acc(i, j) + 2*q
                a.e(f"v_pk_mul_f32 {vr(x,2)}, {vr(x,2)}, s[44:45]")
    store_pairs(a, items, r.T[0])
    def so(a):
        a.e("s_mov_b32 s21, s4")
        flag_off(a, FL_Q, 5, 21)
    fin(a, KI, so)
    return r.free + 3

def stats_atomic(a, r, NB, nti, vS, srd_s, vaddr, soff):
    for i in range(nti):
        x0 = r.acc + i*NB*4
        a.e(f"v_pk_mul_f32 {vr(vS+4*i+2,2)}, {vr(x0,2)}, {vr(x0,2)}")
        a.e(f"v_pk_add_f32 {vr(vS+4*i,2)}, {vr(x0,2)}, {vr(x0+2,2)}")
        a.e(f"v_pk_fma_f32 {vr(vS+4*i+2,2)}, {vr(x0+2,2)}, {vr(x0+2,2)}, {vr(vS+4*i+2,2)}")
        for k in range(4, NB*4, 2):
            a.e(f"v_pk_add_f32 {vr(vS+4*i,2)}, {vr(vS+4*i,2)}, {vr(x0+k,2)}")
            a.e(f"v_pk_fma_f32 {vr(vS+4*i+2,2)}, {vr(x0+k,2)}, {vr(x0+k,2)}, {vr(vS+4*i+2,2)}")
    for i in range(nti):
        a.e(f"v_add_f32 v{vS+4*i}, v{vS+4*i}, v{vS+4*i+1}")
        a.e(f"v_add_f32 v{vS+4*i+2}, v{vS+4*i+2}, v{vS+4*i+3}")
    a.e("s_nop 1")
    for i in range(nti): a.e(f"v_permlane16_swap_b32 v{vS+4*i}, v{vS+4*i+2}")
    a.e("s_nop 0")
    for i in range(nti): a.e(f"v_add_f32 v{vS+4*i}, v{vS+4*i}, v{vS+4*i+2}")
    a.e("s_nop 1")
    for i in range(0, nti, 2): a.e(f"v_permlane32_swap_b32 v{vS+4*i}, v{vS+4*i+4}")
    a.e("s_nop 0")
    for i in range(0, nti, 2):
        a.e(f"v_add_f32 v{vS+4*i}, v{vS+4*i}, v{vS+4*i+4}")
        a.e(f"buffer_atomic_add_f32 v{vS+4*i}, v{vaddr}, s[{srd_s}:{srd_s+3}], s{soff} offen offset:{128*i}")

def stat_addr(a, vd):
    a.e(f"v_and_b32 v{vd}, 15, v1"); a.e("v_lshrrev_b32 v3, 5, v1"); a.e(f"v_lshl_add_u32 v{vd}, v3, 4, v{vd}")
    a.e(f"v_lshlrev_b32 v{vd}, 3, v{vd}"); a.e("v_bfe_u32 v3, v1, 4, 1"); a.e(f"v_lshl_add_u32 v{vd}, v3, 2, v{vd}")

def finish_stats(a, s, q, t, n):
    a.e(f"v_mul_f32 v{s}, {hexf(1.0/n)}, v{s}")
    a.e(f"v_mul_f32 v{q}, {hexf(1.0/n)}, v{q}")
    a.e(f"v_fma_f32 v{q}, -v{s}, v{s}, v{q}")
    a.e(f"v_max_f32 v{q}, 0, v{q}")
    a.e(f"v_add_f32 v{q}, {hexf(1e-5)}, v{q}")
    a.e(f"v_rsq_f32 v{t}, v{q}")
    a.e("s_nop 0")
    a.e(f"v_mul_f32_e64 v{q}, -v{s}, v{t}")
    a.e(f"v_mov_b32 v{s}, v{t}")

def k_proj(aL, a, name):
    KI = 3
    c = GemmCfg('woutL', 64, 4, 1024, 6, 'ksplitF', 'frag', 'frag', xm=8, xn=4, MT=32, NT=8)
    EB = ((c.nk - c.NS) % c.NS)*c.stage
    def lpre(a):
        srd(a, 24, P_X, 4*MB); srd(a, 40, 36, 24576)
        a.e("v_lshrrev_b32 v2, 4, v1"); a.e("v_and_b32 v3, 15, v1")
        a.e("s_lshl_b32 s20, s4, 6"); a.e("s_lshl_b32 s21, s3, 4"); a.e("s_add_u32 s20, s20, s21"); a.e("s_lshl_b32 s20, s20, 11")
        a.e("s_lshl_b32 s21, s5, 8"); a.e("s_add_u32 s20, s20, s21")
        for t in range(4):
            a.e(f"v_add_u32 v4, {4*t}, v2"); a.e("v_xor_b32 v5, v4, v3"); a.e("v_lshlrev_b32 v5, 4, v5")
            a.e("v_lshl_add_u32 v5, v4, 11, v5"); a.e(f"v_add_u32 v{40+t}, s20, v5")
        a.e("v_lshrrev_b32 v4, 5, v1"); a.e("v_lshlrev_b32 v4, 13, v4"); a.e("v_and_b32 v5, 31, v1"); a.e("v_lshl_add_u32 v4, v5, 4, v4")
        a.e("s_lshl_b32 s21, s5, 9"); a.e("s_add_u32 s21, s21, 8192"); a.e("v_add_u32 v44, s21, v4")
    def lextra(a):
        a.e("s_lshl_b32 s20, s3, 12")
        for t in range(4):
            a.e(f"s_add_u32 m0, s20, {EB + 1024*t}"); a.e("s_nop 0")
            a.e(f"buffer_load_dwordx4 v{40+t}, s[24:27], 0 offen lds")
        a.e("buffer_load_dwordx4 v[48:51], v44, s[40:43], 0 offen")
    def lastbar(a):
        a.e("v_lshrrev_b32 v2, 5, v1"); a.e("v_cvt_f32_u32 v2, v2")
        for k in range(4):
            rnd_bf16(a, 48+k, 48+k); a.e(f"v_add_f32 v{48+k}, v{48+k}, v2"); rnd_bf16(a, 48+k, 48+k)
        a.e(f"v_lshlrev_b32 v2, 4, v1"); a.e(f"v_add_u32 v2, {EB + 16384}, v2")
        a.e("ds_write_b128 v2, v[48:51]"); a.e("s_waitcnt lgkmcnt(0)")
    def off(a): a.e("s_lshr_b32 s20, s4, 2"); flag_off(a, FL_O, 20, None)
    def lfin(a): a.e("s_barrier"); a.e("s_barrier")
    cp0 = cpoll(name, off, 2)
    def cp(a):
        a.e("s_cmp_eq_u32 s3, 1"); a.e(f"s_cbranch_scc0 {name}_ns")
        poll256(a, f"{name}_sp", FL_S)
        a.label(f"{name}_ns")
        cp0(a)
    r, cc = prolog(aL, a, name, c, 36, 4*MB, WS_O, 36, 2*MB, WS_WO, KI, pre=lpre, extra=(5, lextra), lfin=lfin,
                   mega=dict(indep='F', mid=P0, cpoll=cp, lastbar=lastbar))
    srd(a, 40, 36, 128*1024)
    srd(a, 48, 36, 4*MB, WS_X1); srd(a, 52, 36, 4*MB, WS_H2)
    f = r.free
    vX, vGA, vG = f, f+16, f+32
    vo, vs1, vm, vS, vx = f+48, f+49, f+50, f+52, f+60
    a.e("s_lshl_b32 s56, s4, 6"); a.e("s_lshl_b32 s20, s7, 5"); a.e("s_add_u32 s56, s56, s20")
    a.e("s_lshl_b32 s57, s5, 7"); a.e("s_lshl_b32 s20, s6, 6"); a.e("s_add_u32 s57, s57, s20")
    a.e("v_and_b32 v2, 15, v1"); a.e("v_lshrrev_b32 v3, 4, v1")
    a.e("v_lshrrev_b32 v4, 1, v3"); a.e("s_lshl_b32 s20, s6, 3"); a.e("v_or_b32 v4, s20, v4"); a.e("v_xor_b32 v4, v4, v2")
    a.e("v_and_b32 v5, 1, v3"); a.e("v_lshlrev_b32 v5, 3, v5"); a.e("v_lshl_add_u32 v5, v2, 8, v5")
    a.e("s_lshl_b32 s20, s7, 13"); a.e(f"s_add_u32 s20, s20, {EB}"); a.e("v_add_u32 v5, s20, v5")
    for j in range(4):
        a.e(f"v_xor_b32 v6, {2*j}, v4"); a.e(f"v_lshl_add_u32 v{vx+j}, v6, 4, v5")
    a.e("s_lshl_b32 s20, s6, 8"); a.e(f"s_add_u32 s20, s20, {EB + 16384}"); a.e(f"v_lshl_add_u32 v{vm}, v3, 4, s20")
    stat_addr(a, vs1)
    lane_chunk_off(a, vo, 128)
    a.e("s_lshl_b32 s60, s56, 3"); a.e(f"s_add_u32 s60, s60, {WS_ST1}")
    a.e("s_lshl_b32 s62, s56, 11"); a.e("s_lshl_b32 s20, s57, 5"); a.e("s_add_u32 s62, s62, s20")
    a.e("s_setprio 1")
    compute_loop(a, c, r)
    mstamp(a, 3*KI + 1)
    for i in range(2):
        for j in range(4):
            a.e(f"ds_read_b64 {vr(vX+(i*4+j)*2,2)}, v{vx+j} offset:{4096*i}")
    for j in range(4):
        a.e(f"ds_read_b128 {vr(vGA+4*j,4)}, v{vm} offset:{64*j}")
        a.e(f"ds_read_b128 {vr(vG+4*j,4)}, v{vm} offset:{512+64*j}")
    ksplit_reduce(a, c, r)
    for i in range(2):
        for j in range(4):
            x = r.acc + (i*4+j)*4; s = vX + (i*4+j)*2
            for h in range(2):
                unpack(a, 2, 3, s+h)
                a.e(f"v_pk_fma_f32 {vr(x+2*h,2)}, {vr(x+2*h,2)}, {vr(vGA+4*j+2*h,2)}, v[2:3]")
    stats_atomic(a, r, 4, 2, vS, 40, vs1, 60)
    y0 = r.acc + 32
    for i in range(2):
        for j in range(4):
            for h in range(2):
                x = (i*4+j)*4 + 2*h
                a.e(f"v_pk_mul_f32 {vr(y0+x,2)}, {vr(r.acc+x,2)}, {vr(vG+4*j+2*h,2)}")
    items = [(y0 + j*4, y0 + (4+j)*4, [],
              (lambda t, j=j: f"buffer_store_dwordx4 {vr(t,4)}, v{vo}, s[52:55], s62 offen offset:{512*j}{STF}")) for j in range(4)]
    items += [(r.acc + j*4, r.acc + (4+j)*4, [],
              (lambda t, j=j: f"buffer_store_dwordx4 {vr(t,4)}, v{vo}, s[48:51], s62 offen offset:{512*j}{STF}")) for j in range(4)]
    store_pairs(a, items, r.T[0], 8)
    def so(a):
        a.e("s_and_b32 s21, s4, 1"); a.e("s_lshl_b32 s21, s21, 3"); a.e("s_add_u32 s21, s21, s5"); a.e("s_lshr_b32 s22, s4, 1")
        flag_off(a, FL_P, 22, 21)
    fin(a, KI, so)
    return f + 64

def gelu(a, regs, t0, G=4):
    n = len(regs)//2
    for b in range(0, n, G):
        ps = [(regs[2*k], t0 + 2*(k-b)) for k in range(b, min(n, b+G))]
        for x, t in ps: a.e(f"v_pk_mul_f32 {vr(t,2)}, {vr(x,2)}, {vr(x,2)}")
        for x, t in ps: a.e(f"v_pk_fma_f32 {vr(t,2)}, {vr(t,2)}, s[64:65], {vr(t0+2*G,2)}")
        for x, t in ps: a.e(f"v_pk_mul_f32 {vr(t,2)}, {vr(t,2)}, {vr(x,2)}")
        for x, t in ps: a.e(f"v_exp_f32 v{t}, v{t}"); a.e(f"v_exp_f32 v{t+1}, v{t+1}")
        for x, t in ps: a.e(f"v_pk_add_f32 {vr(t,2)}, {vr(t,2)}, 1.0 op_sel_hi:[1,0]")
        for x, t in ps: a.e(f"v_rcp_f32 v{t}, v{t}"); a.e(f"v_rcp_f32 v{t+1}, v{t+1}")
        for x, t in ps: a.e(f"v_pk_mul_f32 {vr(x,2)}, {vr(x,2)}, {vr(t,2)}")

def bp2gb(bp):
    if bp < 4: return True, bp
    if bp < 7: return False, bp - 4
    if bp < 10: return True, bp - 3
    return False, bp - 7

def k_win(aL, a, name):
    KI = 4
    c = GemmCfg('winL', 128, 7, 1024, 3, '2x2', 'frag', 'frag', xm=8, xn=4, MT=16, NT=16)
    TB = c.lds
    gbo = lambda bp: (112 if bp2gb(bp)[0] else 0) + bp2gb(bp)[1]
    def fitem(a, t, sd):
        a.e("s_cmp_lt_u32 s3, 2"); a.e(f"s_cselect_b32 s{sd}, {gbo(2*t)}, {gbo(2*t+1)}")
        a.e("s_mul_i32 s22, s5, 7"); a.e(f"s_add_u32 s{sd}, s{sd}, s22")
    def lpre(a):
        srd(a, 40, 36, 128*1024)
        a.e("s_cmp_ge_u32 s3, 2"); a.e(f"s_cbranch_scc1 {name}_lp1")
        a.e(f"s_mul_i32 s20, s3, {3584*4}"); a.e("s_mul_i32 s21, s5, 448"); a.e("s_add_u32 s20, s20, s21"); a.e(f"s_add_u32 s20, s20, {WS_UT}")
        a.e("v_lshlrev_b32 v30, 4, v1")
        a.e(f"v_add_u32 v31, {112*64}, v30")
        for lim, d in ((16, -4*64), (28, (112-3)*64), (40, -7*64)):
            a.e(f"v_cmp_le_u32 vcc, {lim}, v1"); a.e(f"v_add_u32 v29, {d & 0xffffffff}, v30"); a.e("s_nop 0")
            a.e("v_cndmask_b32 v31, v31, v29, vcc")
        a.e("buffer_load_dwordx4 v[32:35], v31, s[40:43], s20 offen")
        a.e(f"s_branch {name}_lp2")
        a.label(f"{name}_lp1")
        a.e("s_lshl_b32 s20, s4, 1"); a.e("s_add_u32 s20, s20, s3"); a.e("s_sub_u32 s20, s20, 2"); a.e("s_lshl_b32 s20, s20, 9")
        a.e(f"s_add_u32 s20, s20, {WS_ST1}")
        a.e("v_lshlrev_b32 v30, 3, v1")
        a.e("buffer_load_dwordx2 v[32:33], v30, s[40:43], s20 offen")
        a.label(f"{name}_lp2")
        return 1
    def lpost(a):
        a.e("s_cmp_ge_u32 s3, 2"); a.e(f"s_cbranch_scc1 {name}_lq1")
        a.e("s_mul_i32 s20, s3, 896"); a.e(f"s_add_u32 s20, s20, {TB}"); a.e("v_add_u32 v30, s20, v30")
        a.e("s_bfm_b64 exec, 56, 0")
        a.e("ds_write_b128 v30, v[32:35]")
        a.e("s_mov_b64 exec, -1")
        a.e(f"s_branch {name}_lq2")
        a.label(f"{name}_lq1")
        finish_stats(a, 32, 33, 34, 1024)
        a.e("s_lshl_b32 s20, s3, 9"); a.e(f"s_add_u32 s20, s20, {TB + 2048 - 1024}"); a.e("v_add_u32 v30, s20, v30")
        a.e("ds_write_b64 v30, v[32:33]")
        a.label(f"{name}_lq2")
        a.e("s_waitcnt lgkmcnt(0)")
    def lfin(a):
        a.e("s_barrier")
        a.e("s_cmp_ge_u32 s3, 2"); a.e(f"s_cbranch_scc1 {name}_lx")
        srd(a, 44, 36, 32768, WS_ST2)
        a.e("s_lshl_b32 s20, s4, 1"); a.e("s_add_u32 s20, s20, s3"); a.e("s_lshl_b32 s20, s20, 10")
        a.e("v_lshlrev_b32 v30, 4, v1")
        a.e("s_mov_b32 s19, 0x8000")
        a.label(f"{name}_poll")
        a.e(f"buffer_load_dwordx3 v[32:34], v30, s[44:47], s20 offen {POLLF}")
        a.e("s_waitcnt vmcnt(0)")
        a.e(f"v_cmp_gt_f32 vcc, {hexf(31.5)}, v34")
        a.e("s_sub_u32 s19, s19, 1"); a.e("s_cmp_eq_u32 s19, 0")
        a.e(f"s_cbranch_scc1 {name}_pd"); a.e(f"s_cbranch_vccz {name}_pd"); a.e("s_sleep 4"); a.e(f"s_branch {name}_poll")
        a.label(f"{name}_pd")
        finish_stats(a, 32, 33, 34, 1792)
        a.e("s_lshl_b32 s20, s3, 9"); a.e(f"s_add_u32 s20, s20, {TB + 3072}"); a.e("v_lshl_add_u32 v30, v1, 3, s20")
        a.e("ds_write_b64 v30, v[32:33]")
        a.e("s_waitcnt lgkmcnt(0)")
        a.label(f"{name}_lx")
        a.e("s_barrier"); a.e("s_barrier")
    def off(a): flag_off(a, FL_P, 4, None)
    r, cc = prolog(aL, a, name, c, 36, 4*MB, WS_H2, 36, 1024*3584*2, WS_WIN, KI, postP=lpost, fitem=fitem, lfin=lfin,
                   mega=dict(indep='F', mid=P0, cpoll=cpoll(name, off, 1), post_dep=lpre))
    ZB = 2048*1792*2
    srd(a, 24, 36, ZB, WS_Z1); srd(a, 40, 36, ZB, WS_Z2); srd(a, 44, 36, 32768, WS_ST2)
    f = r.free
    vo, vz, vs0, vs1, vu, vst, vpl, vC = f, f+1, f+2, f+3, f+4, f+5, f+6, f+7
    lane_chunk_off(a, vo, 224)
    swap23(a, vz, 3); a.e(f"v_lshlrev_b32 v{vz}, 5, v{vz}")
    a.e("v_lshrrev_b32 v3, 5, v1"); a.e(f"v_lshl_add_u32 v{vz}, v3, 4, v{vz}")
    a.e("v_and_b32 v2, 15, v1"); a.e("v_lshrrev_b32 v3, 4, v1")
    a.e(f"v_lshlrev_b32 v{vpl}, 4, v2")
    a.e(f"v_lshl_add_u32 v{vs0}, v3, 2, v{vpl}"); a.e(f"v_xor_b32 v{vs1}, 8, v{vs0}")
    a.e("v_and_b32 v4, 1, v3"); a.e("v_xor_b32 v4, 1, v4"); a.e(f"v_cvt_f32_u32 v{vC}, v4")
    a.e("s_mul_i32 s20, s7, 448"); a.e(f"s_add_u32 s20, s20, {TB}")
    a.e(f"v_lshl_add_u32 v{vu}, v3, 4, s20")
    a.e("s_lshl_b32 s20, s6, 9"); a.e(f"s_add_u32 s20, s20, {TB+2048}")
    a.e(f"v_lshl_add_u32 v{vst}, v2, 3, s20")
    a.e("s_lshl_b32 s56, s4, 7"); a.e("s_lshl_b32 s20, s6, 6"); a.e("s_add_u32 s56, s56, s20")
    a.e("s_lshl_b32 s60, s56, 4")
    a.e("s_lshr_b32 s21, s56, 4"); a.e("s_mul_i32 s21, s21, 224"); a.e("s_mul_i32 s20, s5, 14"); a.e("s_add_u32 s21, s21, s20")
    a.e("s_lshl_b32 s68, s21, 8"); a.e(f"s_add_u32 s69, s68, {2*224*256}")
    a.e(f"s_mul_i32 s20, s5, {7*65536}"); a.e("s_lshl_b32 s22, s56, 5"); a.e("s_add_u32 s70, s20, s22")
    c1 = -2*0.7978845608028654*1.4426950408889634
    a.e(f"s_mov_b32 s64, {hexf(c1*0.044715)}"); a.e("s_mov_b32 s65, s64")
    a.e("s_setprio 1")
    compute_loop(a, c, r)
    mstamp(a, 3*KI + 1)
    t0 = r.T[0]
    vU, vTt, vST = t0 + 16, t0 + 44, t0 + 72
    for i in range(4): a.e(f"ds_read_b64 {vr(vST+2*i,2)}, v{vst} offset:{128*i}")
    for j in range(7):
        a.e(f"ds_read_b128 {vr(vU+4*j,4)}, v{vu} offset:{64*j}")
        a.e(f"ds_read_b128 {vr(vTt+4*j,4)}, v{vu} offset:{896+64*j}")
    a.e(f"v_mov_b32 v{t0+8}, {hexf(c1)}"); a.e(f"v_mov_b32 v{t0+9}, {hexf(c1)}")
    acc = lambda i, j: r.acc + (i*7 + j)*4
    def fold_gelu(j):
        for i in range(4):
            for h in range(2):
                t = t0 + 10 + 2*h
                a.e(f"v_pk_fma_f32 {vr(t,2)}, {vr(vU+4*j+2*h,2)}, {vr(vST+2*i,2)}, {vr(vTt+4*j+2*h,2)} op_sel:[0,1,0] op_sel_hi:[1,1,1]")
            for h in range(2):
                t = t0 + 10 + 2*h; x = acc(i, j) + 2*h
                a.e(f"v_pk_fma_f32 {vr(x,2)}, {vr(x,2)}, {vr(vST+2*i,2)}, {vr(t,2)} op_sel:[0,0,0] op_sel_hi:[1,0,1]")
        regs = []
        for i in range(4): regs += list(range(acc(i, j), acc(i, j)+4))
        gelu(a, regs, t0)
    vS = f + 8
    tp = f + 24
    a.e("s_waitcnt lgkmcnt(0)")
    a.e("s_cmp_eq_u32 s7, 0"); a.e(f"s_cbranch_scc0 {name}_e1")
    for fw in range(2):
        if fw: a.label(f"{name}_e1")
        nz = 4 - fw
        for j in range(nz):
            fold_gelu(j)
            for i in range(4):
                x0 = acc(i, j)
                if j == 0:
                    a.e(f"v_pk_add_f32 {vr(vS+4*i,2)}, {vr(x0,2)}, {vr(x0+2,2)}")
                    a.e(f"v_pk_mul_f32 {vr(vS+4*i+2,2)}, {vr(x0,2)}, {vr(x0,2)}")
                else:
                    a.e(f"v_pk_add_f32 {vr(vS+4*i,2)}, {vr(vS+4*i,2)}, {vr(x0,2)}")
                    a.e(f"v_pk_fma_f32 {vr(vS+4*i+2,2)}, {vr(x0,2)}, {vr(x0,2)}, {vr(vS+4*i+2,2)}")
                    a.e(f"v_pk_add_f32 {vr(vS+4*i,2)}, {vr(vS+4*i,2)}, {vr(x0+2,2)}")
                a.e(f"v_pk_fma_f32 {vr(vS+4*i+2,2)}, {vr(x0+2,2)}, {vr(x0+2,2)}, {vr(vS+4*i+2,2)}")
        for i in range(4):
            a.e(f"v_add_f32 v{vS+4*i}, v{vS+4*i}, v{vS+4*i+1}")
            a.e(f"v_add_f32 v{vS+4*i+2}, v{vS+4*i+2}, v{vS+4*i+3}")
        a.e("s_nop 0")
        for i in range(4): a.e(f"v_permlane16_swap_b32 v{vS+4*i}, v{vS+4*i+2}")
        for i in range(4): a.e(f"v_add_f32 v{vS+4*i}, v{vS+4*i}, v{vS+4*i+2}")
        a.e("s_nop 1")
        for i in (0, 2): a.e(f"v_permlane32_swap_b32 v{vS+4*i}, v{vS+4*i+4}")
        a.e("s_bfm_b64 vcc, 32, 32")
        for i in (0, 2): a.e(f"v_add_f32 v{vS+4*i}, v{vS+4*i}, v{vS+4*i+4}")
        for i in (0, 2):
            a.e(f"v_cndmask_b32 v{vS+4*i+1}, v{vS+4*i}, v{vC}, vcc")
            a.e(f"v_cndmask_b32 v{vS+4*i+2}, v{vC}, v{vS+4*i}, vcc")
        for i in (0, 2):
            a.e(f"buffer_atomic_add_f32 v{vS+4*i+1}, v{vs0}, s[44:47], s60 offen offset:{256*i}")
            a.e(f"buffer_atomic_add_f32 v{vS+4*i+2}, v{vs1}, s[44:47], s60 offen offset:{256*(i+1)}")
        for j in range(nz, 7):
            if j == PBAR: a.e("s_barrier")
            fold_gelu(j)
            lb = bp2gb(7*fw + j)[1]
            items = [(acc(2*p, j), acc(2*p+1, j), [],
                      (lambda t, p=p, lb=lb: f"buffer_store_dwordx4 {vr(t,4)}, v{vo}, s[24:27], s{68+p} offen offset:{512*lb}{STF}")) for p in range(2)]
            store_pairs(a, items, tp + 8*(j & 1), 2)
        vP = t0 + 16
        a.e("s_barrier")
        for i in range(4): a.e(f"ds_read_b64 {vr(vP+4*i,2)}, v{vst} offset:{1024 + 128*i}")
        a.e("s_waitcnt lgkmcnt(0)"); a.e("s_barrier")
        items = []
        for j in range(nz):
            lb = bp2gb(7*fw + j)[1]
            for i in range(4):
                for h in range(2):
                    x = acc(i, j) + 2*h
                    a.e(f"v_pk_fma_f32 {vr(x,2)}, {vr(x,2)}, {vr(vP+4*i,2)}, {vr(vP+4*i,2)} op_sel:[0,0,1] op_sel_hi:[1,0,1]")
            for p in range(2):
                pre = [f"s_add_u32 s71, s70, {lb*65536}"] if p == 0 else []
                items.append((acc(2*p, j), acc(2*p+1, j), pre,
                              (lambda t, p=p: f"buffer_store_dwordx4 {vr(t,4)}, v{vz}, s[40:43], s71 offen offset:{1024*p}{STF}")))
        store_pairs(a, items, t0 + 32, 8)
        if fw == 0: a.e(f"s_branch {name}_fin")
    a.label(f"{name}_fin")
    def so(a):
        a.e("s_mov_b32 s21, s4")
        flag_off(a, FL_W, 5, 21)
    fin(a, KI, so)
    return f + 40

def k_spat(aL, a, name):
    KI = 5
    c = GemmCfg('spat', 128, 7, 2048, 5, 'ksplitT', 'nat', 'trp', ldt=4096, xm=4, xn=8, MT=16, NT=16)
    ZB = 2048*1792*2
    EB = ((c.nk - c.NS) % c.NS)*c.stage
    def lpre(a):
        srd(a, 24, 36, ZB, WS_Z1); srd(a, 44, P_BSP, 4096)
        a.e("s_lshl_b32 s20, s4, 3"); a.e("s_lshl_b32 s21, s3, 1"); a.e("s_add_u32 s20, s20, s21"); a.e(f"s_mul_i32 s20, s20, {224*256}")
        a.e("s_mul_i32 s21, s5, 3584"); a.e("s_add_u32 s20, s20, s21")
        a.e("v_lshl_add_u32 v4, v1, 4, s20")
        for t in range(7):
            if t < 3: a.e(f"v_add_u32 v{40+t}, {1024*t}, v4")
            elif t > 3: a.e(f"v_add_u32 v{40+t}, {1024*t + 224*256 - 3584}, v4")
        a.e("v_lshrrev_b32 v5, 5, v1"); a.e(f"v_mul_u32_u24 v5, {224*256 - 3584}, v5"); a.e("v_add3_u32 v43, v4, v5, 0")
        a.e("v_add_u32 v43, 3072, v43")
        a.e("s_lshl_b32 s21, s4, 8"); a.e("v_lshl_add_u32 v47, v1, 4, s21")
    def lextra(a):
        a.e("s_mul_i32 s20, s3, 7168")
        for t in range(7):
            a.e(f"s_add_u32 m0, s20, {EB + 1024*t}"); a.e("s_nop 0")
            a.e(f"buffer_load_dwordx4 v{40+t}, s[24:27], 0 offen lds")
        a.e(f"s_mov_b32 m0, {EB + 28672}"); a.e("s_nop 0")
        a.e("buffer_load_dwordx4 v47, s[44:47], 0 offen lds")
    def off(a): flag_off(a, FL_W, 5, None)
    def lfin(a): a.e("s_barrier"); a.e("s_barrier")
    r, cc = prolog(aL, a, name, c, P_WSP, 8*MB, 0, 36, ZB, WS_Z2, KI, pre=lpre, extra=(8, lextra), lfin=lfin,
                   mega=dict(indep='T', mid=P0, cpoll=cpoll(name, off, 1)))
    srd(a, 40, 36, ZB, WS_U)
    f = r.free
    vZ, vB, vo, vz, vb = f, f+28, f+30, f+31, f+32
    a.e("s_lshl_b32 s56, s4, 7"); a.e("s_lshl_b32 s20, s6, 6"); a.e("s_add_u32 s56, s56, s20")
    a.e("s_lshl_b32 s20, s7, 5"); a.e("s_add_u32 s56, s56, s20")
    a.e("s_lshr_b32 s57, s56, 4"); a.e("s_mul_i32 s57, s57, 224"); a.e("s_mul_i32 s20, s5, 14")
    a.e("s_add_u32 s57, s57, s20"); a.e("s_lshl_b32 s57, s57, 8"); a.e(f"s_add_u32 s58, s57, {224*256}")
    a.e("v_and_b32 v2, 15, v1"); a.e(f"v_lshlrev_b32 v{vz}, 4, v2")
    a.e("v_bfe_u32 v3, v1, 4, 1"); a.e(f"v_lshl_add_u32 v{vz}, v3, 3, v{vz}")
    a.e("v_lshrrev_b32 v3, 5, v1"); a.e(f"v_lshl_add_u32 v{vz}, v3, 8, v{vz}")
    a.e("s_lshl_b32 s20, s6, 2"); a.e("s_lshl_b32 s21, s7, 1"); a.e("s_add_u32 s20, s20, s21")
    a.e("s_mul_i32 s21, s20, 3584"); a.e(f"s_add_u32 s21, s21, {EB}"); a.e(f"v_add_u32 v{vz}, s21, v{vz}")
    a.e("s_lshl_b32 s20, s20, 5"); a.e(f"s_add_u32 s20, s20, {EB + 28672}"); a.e(f"v_lshl_add_u32 v{vb}, v2, 1, s20")
    lane_chunk_off(a, vo, 224)
    a.e("s_setprio 1")
    compute_loop(a, c, r)
    mstamp(a, 3*KI + 1)
    for i in range(2):
        for j in range(7):
            a.e(f"ds_read_b64 {vr(vZ+(i*7+j)*2,2)}, v{vz} offset:{3584*i + 512*j}")
    a.e("s_waitcnt lgkmcnt(8)")
    for i in range(2): a.e(f"ds_read_u16 v{vB+i}, v{vb} offset:{32*i}")
    ksplit_reduce(a, c, r)
    for i in range(2): a.e(f"v_lshlrev_b32 v{vB+i}, 16, v{vB+i}")
    for i in range(2):
        for j in range(7):
            x = r.acc + (i*7+j)*4; s = vZ + (i*7+j)*2
            for h in range(2):
                unpack(a, 2, 3, s+h)
                a.e(f"v_pk_add_f32 {vr(x+2*h,2)}, {vr(x+2*h,2)}, {vr(vB,2)} op_sel:[0,{i}] op_sel_hi:[1,{i}]")
                a.e(f"v_pk_mul_f32 {vr(x+2*h,2)}, {vr(x+2*h,2)}, v[2:3]")
    items = [(r.acc + j*4, r.acc + (7+j)*4, [],
              (lambda t, j=j: f"buffer_store_dwordx4 {vr(t,4)}, v{vo}, s[40:43], s57 offen offset:{512*j}{STF}")) for j in range(7)]
    store_pairs(a, items, r.T[0], 8)
    def so(a):
        a.e("s_mov_b32 s21, s5")
        flag_off(a, FL_U, 4, 21)
    fin(a, KI, so)
    return f + 33

def k_wout(aL, a, name):
    KI = 6
    c = GemmCfg('woutL', 64, 4, 1792, 6, 'ksplitF', 'frag', 'frag', xm=8, xn=4, MT=32, NT=8)
    ZB = 2048*1792*2
    EB = ((c.nk - c.NS) % c.NS)*c.stage
    def lpre(a):
        srd(a, 40, 36, 24576); srd(a, 48, 36, 4*MB, WS_X1)
        a.e("s_lshl_b32 s20, s4, 2"); a.e("s_add_u32 s20, s20, s3"); a.e("s_lshl_b32 s20, s20, 15")
        a.e("s_lshl_b32 s21, s5, 12"); a.e("s_add_u32 s20, s20, s21"); a.e("v_lshl_add_u32 v40, v1, 4, s20")
        a.e("s_lshl_b32 s21, s5, 9"); a.e(f"s_add_u32 s21, s21, {5*4096}"); a.e("v_lshl_add_u32 v44, v1, 4, s21")
    def lextra(a):
        a.e("s_lshl_b32 s20, s3, 12"); a.e(f"s_add_u32 m0, s20, {EB}"); a.e("s_nop 0")
        for t in range(4):
            a.e(f"buffer_load_dwordx4 v40, s[48:51], 0 offen offset:{1024*t} lds")
        a.e("buffer_load_dwordx4 v[48:51], v44, s[40:43], 0 offen")
    def lastbar(a):
        for k in range(4): rnd_bf16(a, 48+k, 48+k)
        a.e(f"v_lshlrev_b32 v2, 4, v1"); a.e(f"v_add_u32 v2, {EB + 16384}, v2")
        a.e("ds_write_b128 v2, v[48:51]"); a.e("s_waitcnt lgkmcnt(0)")
    def off(a): a.e("s_lshr_b32 s20, s4, 1"); flag_off(a, FL_U, 20, None)
    r, cc = prolog(aL, a, name, c, 36, ZB, WS_U, 36, 1792*2048, WS_WOUT, KI, pre=lpre, extra=(5, lextra),
                   mega=dict(indep='F', mid=P0, cpoll=cpoll(name, off, 1), lastbar=lastbar))
    srd(a, 24, P_OUT, 4*MB)
    f = r.free
    vX, vG, vo, vx, vm = f, f+16, f+32, f+33, f+34
    a.e("s_lshl_b32 s56, s4, 6"); a.e("s_lshl_b32 s20, s7, 5"); a.e("s_add_u32 s56, s56, s20")
    a.e("s_lshl_b32 s57, s5, 7"); a.e("s_lshl_b32 s20, s6, 6"); a.e("s_add_u32 s57, s57, s20")
    a.e("s_lshl_b32 s62, s56, 11"); a.e("s_lshl_b32 s20, s57, 5"); a.e("s_add_u32 s60, s62, s20"); a.e("s_add_u32 s61, s60, 32768")
    a.e("s_lshl_b32 s20, s57, 1"); a.e("s_add_u32 s62, s62, s20"); a.e("s_add_u32 s63, s62, 32768")
    a.e("v_and_b32 v2, 15, v1"); a.e(f"v_lshlrev_b32 v{vx}, 4, v2")
    a.e("v_bfe_u32 v3, v1, 4, 1"); a.e(f"v_lshl_add_u32 v{vx}, v3, 3, v{vx}")
    a.e(f"v_lshlrev_b32 v{vo}, 11, v2"); a.e(f"v_lshl_add_u32 v{vo}, v3, 5, v{vo}")
    a.e("v_lshrrev_b32 v3, 5, v1"); a.e(f"v_lshl_add_u32 v{vx}, v3, 8, v{vx}"); a.e(f"v_lshl_add_u32 v{vo}, v3, 4, v{vo}")
    a.e("s_lshl_b32 s20, s7, 13"); a.e("s_lshl_b32 s21, s6, 11"); a.e("s_add_u32 s20, s20, s21"); a.e(f"s_add_u32 s20, s20, {EB}")
    a.e(f"v_add_u32 v{vx}, s20, v{vx}")
    a.e("v_lshrrev_b32 v3, 4, v1"); a.e("s_lshl_b32 s20, s6, 8"); a.e(f"s_add_u32 s20, s20, {EB + 16384}"); a.e(f"v_lshl_add_u32 v{vm}, v3, 4, s20")
    a.e("s_setprio 1")
    compute_loop(a, c, r)
    mstamp(a, 3*KI + 1)
    for i in range(2):
        for j in range(4):
            a.e(f"ds_read_b64 {vr(vX+(i*4+j)*2,2)}, v{vx} offset:{4096*i + 512*j}")
    for j in range(4):
        a.e(f"ds_read_b128 {vr(vG+4*j,4)}, v{vm} offset:{64*j}")
    ksplit_reduce(a, c, r)
    for i in range(2):
        for j in range(4):
            x = r.acc + (i*4+j)*4; s = vX + (i*4+j)*2
            for h in range(2):
                unpack(a, 2, 3, s+h)
                a.e(f"v_pk_fma_f32 {vr(x+2*h,2)}, {vr(x+2*h,2)}, {vr(vG+4*j+2*h,2)}, v[2:3]")
    items = []
    for i in range(2):
        for jp in range(2):
            items.append((r.acc + (i*4+2*jp)*4, r.acc + (i*4+2*jp+1)*4, [],
                          (lambda t, i=i, jp=jp: f"buffer_store_dwordx4 {vr(t,4)}, v{vo}, s[24:27], s{62+i} offen offset:{64*jp}")))
    store_pairs(a, items, r.T[0])
    if STAMPS: a.e("s_waitcnt vmcnt(0)")
    fin(a, KI, None)
    return f + 35
```

```python
from common import *
K1TOUCH = int(os.environ.get('K1TOUCH', '1'))

def k_mod(name):
    a = Asm(); kernel_header(a, name)
    a.e("s_cmp_ge_u32 s2, 256"); a.e(f"s_cbranch_scc1 {name}_end")
    stamp_start(a)
    a.e(f"s_load_dwordx4 s[28:31], s[0:1], {IN_C}")
    a.e(f"s_load_dwordx4 s[32:35], s[0:1], {A_X}")
    a.e(f"s_load_dwordx2 s[36:37], s[0:1], {D_WS}")
    wave_id(a, 3)
    a.e("v_and_b32 v1, 63, v0")
    a.e("s_and_b32 s4, s2, 15"); a.e("s_lshr_b32 s5, s2, 4")
    a.e("s_lshl_b32 s6, s5, 3"); a.e("s_add_u32 s6, s6, s3"); a.e("s_lshl_b32 s6, s6, 3")
    a.e("s_mul_i32 s20, s6, 12288"); a.e("s_lshl_b32 s21, s4, 8"); a.e("s_add_u32 s20, s20, s21")
    a.e("v_lshrrev_b32 v3, 5, v1"); a.e("v_mul_u32_u24 v4, 12288, v3"); a.e("v_and_b32 v5, 31, v1"); a.e("v_lshl_add_u32 v4, v5, 3, v4")
    a.e("v_lshlrev_b32 v5, 1, v3"); a.e("s_lshl_b32 s7, s6, 1")
    a.e("v_lshlrev_b32 v2, 4, v1")
    a.e("s_lshl_b32 s22, s2, 3"); a.e("s_add_u32 s22, s22, s3")
    a.e("s_lshl_b32 s26, s22, 11")
    a.e("s_waitcnt lgkmcnt(0)")
    srd(a, 12, 30, 1024*6144*2)
    for i in range(4):
        a.e(f"buffer_load_dwordx2 {vr(16+2*i,2)}, v4, s[12:15], s20 offen")
        if i < 3: a.e("s_add_u32 s20, s20, 24576")
    srd(a, 40, 32, 4*MB); srd(a, 8, 28, 2048)
    a.e("buffer_load_dwordx4 v[8:11], v2, s[40:43], s26 offen")
    a.e("buffer_load_dwordx4 v[12:15], v2, s[40:43], s26 offen offset:1024")
    for i in range(4): a.e(f"buffer_load_ushort v{24+i}, v5, s[8:11], s7 offen offset:{4*i}")
    srd(a, 16, 36, 70*MB)
    a.e("v_mov_b32 v48, 0"); a.e("v_lshlrev_b32 v49, 2, v1"); a.e("v_lshlrev_b32 v50, 7, v1")
    a.e("s_lshl_b32 s23, s22, 6"); a.e(f"s_add_u32 s24, s23, {WS_ST1}"); a.e(f"s_sub_u32 s23, s23, {1280*64 - 8192}")
    a.e("s_cmp_lt_u32 s22, 1280"); a.e("s_cselect_b32 s23, s24, s23")
    a.e("s_sub_u32 s24, s22, 1536"); a.e(f"s_mul_i32 s25, s24, {FSTR}"); a.e(f"s_add_u32 s25, s25, {WS_FLG}")
    a.e("s_cmp_lt_u32 s24, 128"); a.e(f"s_cselect_b32 s25, s25, {70*MB}")
    a.e("s_cmp_lt_u32 s22, 1536"); a.e("s_cselect_b32 s23, s23, s25"); a.e("s_cselect_b64 vcc, -1, 0"); a.e("s_cselect_b32 s24, 16, 32")
    a.e("v_cndmask_b32 v49, v50, v49, vcc")
    a.e("s_bfm_b64 exec, s24, 0")
    a.e("buffer_store_dword v48, v49, s[16:19], s23 offen")
    a.e("s_mov_b64 exec, -1")
    stamp(a, 1)
    a.e("s_waitcnt vmcnt(1)")
    for i in range(4):
        r = 24+i
        a.e(f"v_lshlrev_b32 v{r}, 16, v{r}")
        a.e(f"v_mul_f32 v50, {hexf(-1.4426950408889634)}, v{r}")
        a.e("v_exp_f32 v50, v50"); a.e("s_nop 0")
        a.e("v_add_f32 v50, 1.0, v50"); a.e("v_rcp_f32 v50, v50"); a.e("s_nop 0")
        a.e(f"v_mul_f32 v{r}, v{r}, v50")
        rnd_bf16(a, r, r)
    for k in range(4): a.e(f"v_mov_b32 v{56+k}, 0")
    for i in range(4):
        for q in range(2):
            unpack(a, 50, 51, 16+2*i+q)
            a.e(f"v_fmac_f32 v{56+2*q}, v{24+i}, v50")
            a.e(f"v_fmac_f32 v{57+2*q}, v{24+i}, v51")
    a.e("s_lshl_b32 s21, s3, 10"); a.e("v_add_u32 v4, s21, v2")
    a.e("ds_write_b128 v4, v[56:59]")
    stamp(a, 2)
    if K1TOUCH:
        srd(a, 44, 34, 6*MB)
        a.e("v_lshlrev_b32 v52, 7, v1"); a.e("s_mul_i32 s23, s22, 3072")
        a.e("s_bfm_b64 exec, 24, 0")
        a.e("buffer_load_dword v53, v52, s[44:47], s23 offen")
        if K1TOUCH > 1:
            a.e("s_lshr_b32 s23, s22, 1"); a.e("s_mul_i32 s23, s23, 12288"); a.e("s_and_b32 s24, s22, 1"); a.e("s_lshl_b32 s24, s24, 12")
            a.e("s_add_u32 s23, s23, s24"); a.e("s_add_u32 s23, s23, 4096")
            a.e("s_bfm_b64 exec, 32, 0")
            a.e("buffer_load_dword v54, v52, s[12:15], s23 offen")
        a.e("s_mov_b64 exec, -1")
    for i in range(8): unpack(a, 16+2*i, 17+2*i, 8+i)
    a.e("v_add_f32 v4, v16, v17")
    for i in range(2, 16): a.e(f"v_add_f32 v4, v4, v{16+i}")
    row16_sum(a, [4]); a.e("s_nop 0"); xrow_sum(a, [4], [5])
    a.e(f"v_mul_f32 v4, {hexf(1/1024)}, v4")
    for i in range(16): a.e(f"v_sub_f32 v{16+i}, v{16+i}, v4")
    a.e("v_mul_f32 v8, v16, v16")
    for i in range(1, 16): a.e(f"v_fmac_f32 v8, v{16+i}, v{16+i}")
    row16_sum(a, [8]); a.e("s_nop 0"); xrow_sum(a, [8], [5])
    a.e(f"v_mov_b32 v5, {hexf(1e-5)}")
    a.e(f"v_fmac_f32 v5, {hexf(1/1024)}, v8")
    a.e("v_rsq_f32 v8, v5"); a.e("s_nop 0")
    a.e("v_mul_f32_e64 v9, -v4, v8")
    a.e("s_lshl_b32 s23, s22, 3"); a.e(f"s_add_u32 s23, s23, {WS_ST0}")
    a.e("v_mov_b32 v10, 0")
    a.e("s_mov_b64 exec, 1")
    a.e("buffer_store_dwordx2 v[8:9], v10, s[16:19], s23 offen")
    a.e("s_mov_b64 exec, -1")
    a.e("s_waitcnt lgkmcnt(0)"); a.e("s_barrier")
    a.e("s_cmp_ge_u32 s3, 2"); a.e(f"s_cbranch_scc1 {name}_fin")
    a.e("v_lshlrev_b32 v6, 2, v0")
    for w in range(16): a.e(f"ds_read_b32 v{8+w}, v6 offset:{512*w}")
    a.e("s_lshl_b32 s21, s5, 13"); a.e("s_lshl_b32 s20, s4, 9"); a.e("s_add_u32 s21, s21, s20"); a.e(f"s_add_u32 s21, s21, {WS_MP}")
    a.e("s_waitcnt lgkmcnt(0)")
    for w in range(1, 16): a.e(f"v_add_f32 v8, v8, v{8+w}")
    a.e("buffer_store_dword v8, v6, s[16:19], s21 offen")
    a.label(f"{name}_fin")
    stamp_end(a, 0, 36, 3)
    a.label(f"{name}_end"); a.e("s_endpgm")
    return a.text(), 64, 8192
```

```python
from common import *
import k_gemm, k_attn

LNT = 122880

def ln1(a, n):
    a.e("v_and_b32 v1, 63, v0")
    a.e("s_and_b32 s4, s2, 15"); a.e("s_lshr_b32 s5, s2, 4")
    a.e("s_lshl_b32 s6, s5, 2"); a.e("s_add_u32 s6, s6, s3"); a.e("s_lshl_b32 s6, s6, 1")
    a.e("v_and_b32 v2, 15, v1"); a.e("v_lshrrev_b32 v3, 4, v1")
    a.e("v_lshlrev_b32 v4, 11, v2"); a.e("v_lshl_add_u32 v4, v3, 4, v4")
    a.e("s_lshl_b32 s20, s6, 15"); a.e("s_lshl_b32 s21, s4, 7"); a.e("s_add_u32 s20, s20, s21"); a.e("s_add_u32 s21, s20, 32768")
    a.e("v_lshlrev_b32 v5, 3, v2"); a.e("s_lshl_b32 s22, s6, 7"); a.e(f"s_add_u32 s22, s22, {WS_ST0}")
    a.e("s_lshl_b32 s7, s4, 6"); a.e("s_lshl_b32 s23, s3, 10"); a.e("s_add_u32 s7, s7, s23")
    a.e("s_lshl_b32 s24, s7, 2")
    a.e("v_lshlrev_b32 v6, 2, v1")
    srd(a, 8, P_X, 4*MB); srd(a, 12, 36, 1*MB); srd(a, 16, 36, 4*MB, WS_H)
    a.e("s_cmp_ge_u32 s3, 2"); a.e(f"s_cbranch_scc1 {n}_nop")
    a.e(f"s_add_u32 s25, s24, {WS_MP}")
    for p in range(16):
        a.e(f"buffer_load_dword v{32+p}, v6, s[12:15], s25 offen")
        if p < 15: a.e("s_add_u32 s25, s25, 8192")
    a.label(f"{n}_nop")
    for b in range(2):
        a.e(f"buffer_load_dwordx4 {vr(8+8*b,4)}, v4, s[8:11], s{20+b} offen")
        a.e(f"buffer_load_dwordx4 {vr(12+8*b,4)}, v4, s[8:11], s{20+b} offen offset:64")
        a.e(f"buffer_load_dwordx2 {vr(48+2*b,2)}, v5, s[12:15], s22 offen offset:{128*b}")
    a.e("s_cmp_ge_u32 s3, 2"); a.e(f"s_cbranch_scc1 {n}_bar")
    a.e("s_waitcnt vmcnt(6)")
    for p in range(1, 16): a.e(f"v_add_f32 v32, v32, v{32+p}")
    rnd_bf16(a, 32, 32)
    a.e("s_cmp_eq_u32 s3, 0"); a.e(f"s_cbranch_scc1 {n}_st")
    a.e("v_add_f32 v32, 1.0, v32"); rnd_bf16(a, 32, 32)
    a.label(f"{n}_st")
    a.e("s_lshl_b32 s25, s3, 8"); a.e(f"s_add_u32 s25, s25, {LNT}"); a.e("v_add_u32 v7, s25, v6")
    a.e("ds_write_b32 v7, v32")
    a.label(f"{n}_bar")
    a.e(f"v_lshlrev_b32 v7, 5, v3"); a.e(f"v_add_u32 v7, {LNT}, v7")
    a.e("s_waitcnt lgkmcnt(0)"); a.e("s_barrier")
    for i in range(2):
        for q in range(2):
            a.e(f"ds_read_b128 {vr(32+8*i+4*q,4)}, v7 offset:{128*i+16*q}")
            a.e(f"ds_read_b128 {vr(52+8*i+4*q,4)}, v7 offset:{256+128*i+16*q}")
    a.e("v_lshlrev_b32 v5, 4, v1")
    a.e("s_lshl_b32 s20, s6, 15"); a.e("s_lshl_b32 s21, s4, 11"); a.e("s_add_u32 s20, s20, s21"); a.e("s_add_u32 s21, s20, 32768")
    a.e("s_waitcnt vmcnt(0) lgkmcnt(0)")
    for b in range(2):
        u = 72
        for i in range(8): unpack(a, u+2*i, u+1+2*i, 8+8*b+i)
        for i in range(0, 16, 2):
            a.e(f"v_pk_fma_f32 {vr(u+i,2)}, {vr(u+i,2)}, {vr(48+2*b,2)}, {vr(48+2*b,2)} op_sel:[0,0,1] op_sel_hi:[1,0,1]")
        for i in range(0, 16, 2):
            a.e(f"v_pk_fma_f32 {vr(u+i,2)}, {vr(u+i,2)}, {vr(52+i,2)}, {vr(32+i,2)}")
        for i in range(8): a.e(f"v_cvt_pk_bf16_f32 v{88+8*b+i}, v{u+2*i}, v{u+1+2*i}")
        a.e(f"buffer_store_dwordx4 {vr(88+8*b,4)}, v5, s[16:19], s{20+b} offen sc1")
        a.e(f"buffer_store_dwordx4 {vr(92+8*b,4)}, v5, s[16:19], s{20+b} offen offset:1024 sc1")
    def so(a): a.e("s_mov_b32 s21, s4"); flag_off(a, FL_H, 5, 21)
    wg_signal(a, f"{n}_sig", so)
    mstamp(a, 2)

def k_mega(name, force_fallback=False):
    a = Asm(); aL = Asm(); aC = Asm()
    kernel_header(a, name)
    a.e("s_cmp_ge_u32 s2, 256"); a.e(f"s_cbranch_scc0 {name}_go"); a.e("s_endpgm")
    a.label(f"{name}_go")
    a.e("s_load_dwordx16 s[76:91], s[0:1], 0")
    a.e(f"s_load_dwordx2 s[92:93], s[0:1], {D_OUT}")
    a.e(f"s_load_dwordx2 s[36:37], s[0:1], {D_WS}")
    a.e(f"s_load_dwordx4 s[28:31], s[0:1], {IN_C}")
    wave_id(a, 3)
    if STAMPS: a.e("v_mov_b32 v255, 0")
    mstamp(a, 0)
    a.e("s_waitcnt lgkmcnt(0)")
    srd(a, 96, 36, 128*FSTR, WS_FLG)
    a.e("s_cmp_ge_u32 s3, 4"); a.e(f"s_cbranch_scc0 {name}_comp")
    a.e("s_sub_u32 s3, s3, 4")
    ln1(aC, name + "_ln")
    vg = [104]
    vg.append(k_gemm.k_qkv(aL, aC, name + "_q"))
    vg.append(k_attn.k_attn(aL, aC, name + "_a", force_fallback))
    vg.append(k_gemm.k_proj(aL, aC, name + "_p"))
    vg.append(k_gemm.k_win(aL, aC, name + "_w"))
    vg.append(k_gemm.k_spat(aL, aC, name + "_s"))
    vg.append(k_gemm.k_wout(aL, aC, name + "_o"))
    aL.e("s_endpgm")
    if STAMPS:
        srd(aC, 8, 36, 1 << 19, WS_STAMP + 65536)
        aC.e("s_getreg_b32 s20, hwreg(HW_REG_XCC_ID)"); aC.e("v_writelane_b32 v255, s20, 31")
        aC.e("s_lshl_b32 s20, s2, 2"); aC.e("s_add_u32 s20, s20, s3"); aC.e("s_lshl_b32 s20, s20, 7")
        aC.e("v_and_b32 v2, 63, v0"); aC.e("v_lshlrev_b32 v2, 2, v2"); aC.e("s_bfm_b64 exec, 32, 0")
        aC.e("buffer_store_dword v255, v2, s[8:11], s20 offen")
    aC.e("s_endpgm")
    print('phase vgprs', vg)
    assert max(vg) <= (255 if STAMPS else 256)
    return a.text() + aL.text() + f"{name}_comp:\n" + aC.text(), 256, 163840
```

```python
import sys, re
import common
args = sys.argv[1:]
common.STAMPS = '--stamps' in args
from common import *
import k_small, k_gemm, k_attn, mega, gemm
for m in (k_small, k_gemm, k_attn, mega): m.STAMPS = common.STAMPS
out = [x for x in args if not x.startswith('--')][0]
KN = 'adaLN_cond__mha_block__mixer_gmlp__prompt_kernel' if '--single' in args else 'mega_kernel'
ks = [(KN, mega.k_mega, dict(force_fallback='--fallback' in args))]
ref = open('adaLN_cond__mha_block__mixer_gmlp__prompt.s.ref').read()
hdr = [l for l in ref.split('\n') if l.startswith(';') and '@launch' not in l and 'Override' not in l and 'grid=ceil' not in l]
body = ''; desc = ''; launches = []
for name, fn, kw in ks:
    t, vg, lds = fn(name, **kw)
    assert vg <= 256 and lds <= 163840, (name, vg, lds)
    body += t; desc += kernel_desc(name, vg, 102, 104)
    launches.append(f"; @launch {'' if '--single' in args else 'kernel=' + name + ' '}grid=(256,1,1) block=(512,1,1) lds={lds}")
    print(name, 'vgpr', vg, 'lds', lds)
src = "\n".join(hdr + launches) + '\n.amdgcn_target "amdgcn-amd-amdhsa--gfx950"\n.text\n' + body + '.section .rodata,"a"\n' + desc
open(out, 'w').write(src)
print(len(src), 'bytes')
```

```python
from common import *
import k_gemm, k_attn

LNT = 122880

def ln1(a, n):
    a.e("v_and_b32 v1, 63, v0")
    a.e("s_and_b32 s4, s2, 15"); a.e("s_lshr_b32 s5, s2, 4")
    a.e("s_lshl_b32 s6, s5, 2"); a.e("s_add_u32 s6, s6, s3"); a.e("s_lshl_b32 s6, s6, 1")
    a.e("v_and_b32 v2, 15, v1"); a.e("v_lshrrev_b32 v3, 4, v1")
    a.e("v_lshlrev_b32 v4, 11, v2"); a.e("v_lshl_add_u32 v4, v3, 4, v4")
    a.e("s_lshl_b32 s20, s6, 15"); a.e("s_lshl_b32 s21, s4, 7"); a.e("s_add_u32 s20, s20, s21"); a.e("s_add_u32 s21, s20, 32768")
    a.e("v_lshlrev_b32 v5, 3, v2"); a.e("s_lshl_b32 s22, s6, 7"); a.e(f"s_add_u32 s22, s22, {WS_ST0}")
    a.e("s_lshl_b32 s7, s4, 6"); a.e("s_lshl_b32 s23, s3, 10"); a.e("s_add_u32 s7, s7, s23")
    a.e("s_lshl_b32 s24, s7, 2")
    a.e("v_lshlrev_b32 v6, 2, v1")
    srd(a, 8, P_X, 4*MB); srd(a, 12, 36, 1*MB); srd(a, 16, 36, 4*MB, WS_H)
    a.e("s_cmp_ge_u32 s3, 2"); a.e(f"s_cbranch_scc1 {n}_nop")
    a.e(f"s_add_u32 s25, s24, {WS_MP}")
    for p in range(16):
        a.e(f"buffer_load_dword v{32+p}, v6, s[12:15], s25 offen")
        if p < 15: a.e("s_add_u32 s25, s25, 8192")
    a.label(f"{n}_nop")
    for b in range(2):
        a.e(f"buffer_load_dwordx4 {vr(8+8*b,4)}, v4, s[8:11], s{20+b} offen")
        a.e(f"buffer_load_dwordx4 {vr(12+8*b,4)}, v4, s[8:11], s{20+b} offen offset:64")
        a.e(f"buffer_load_dwordx2 {vr(48+2*b,2)}, v5, s[12:15], s22 offen offset:{128*b}")
    a.e("s_cmp_ge_u32 s3, 2"); a.e(f"s_cbranch_scc1 {n}_bar")
    a.e("s_waitcnt vmcnt(6)")
    for p in range(1, 16): a.e(f"v_add_f32 v32, v32, v{32+p}")
    rnd_bf16(a, 32, 32)
    a.e("s_cmp_eq_u32 s3, 0"); a.e(f"s_cbranch_scc1 {n}_st")
    a.e("v_add_f32 v32, 1.0, v32"); rnd_bf16(a, 32, 32)
    a.label(f"{n}_st")
    a.e("s_lshl_b32 s25, s3, 8"); a.e(f"s_add_u32 s25, s25, {LNT}"); a.e("v_add_u32 v7, s25, v6")
    a.e("ds_write_b32 v7, v32")
    a.label(f"{n}_bar")
    a.e(f"v_lshlrev_b32 v7, 5, v3"); a.e(f"v_add_u32 v7, {LNT}, v7")
    a.e("s_waitcnt lgkmcnt(0)"); a.e("s_barrier")
    for i in range(2):
        for q in range(2):
            a.e(f"ds_read_b128 {vr(32+8*i+4*q,4)}, v7 offset:{128*i+16*q}")
            a.e(f"ds_read_b128 {vr(52+8*i+4*q,4)}, v7 offset:{256+128*i+16*q}")
    a.e("v_lshlrev_b32 v5, 4, v1")
    a.e("s_lshl_b32 s20, s6, 15"); a.e("s_lshl_b32 s21, s4, 11"); a.e("s_add_u32 s20, s20, s21"); a.e("s_add_u32 s21, s20, 32768")
    a.e("s_waitcnt vmcnt(0) lgkmcnt(0)")
    for b in range(2):
        u = 72
        for i in range(8): unpack(a, u+2*i, u+1+2*i, 8+8*b+i)
        for i in range(0, 16, 2):
            a.e(f"v_pk_fma_f32 {vr(u+i,2)}, {vr(u+i,2)}, {vr(48+2*b,2)}, {vr(48+2*b,2)} op_sel:[0,0,1] op_sel_hi:[1,0,1]")
        for i in range(0, 16, 2):
            a.e(f"v_pk_fma_f32 {vr(u+i,2)}, {vr(u+i,2)}, {vr(52+i,2)}, {vr(32+i,2)}")
        for i in range(8): a.e(f"v_cvt_pk_bf16_f32 v{88+8*b+i}, v{u+2*i}, v{u+1+2*i}")
        a.e(f"buffer_store_dwordx4 {vr(88+8*b,4)}, v5, s[16:19], s{20+b} offen sc1")
        a.e(f"buffer_store_dwordx4 {vr(92+8*b,4)}, v5, s[16:19], s{20+b} offen offset:1024 sc1")
    def so(a): a.e("s_mov_b32 s21, s4"); flag_off(a, FL_H, 5, 21)
    wg_signal(a, f"{n}_sig", so)
    mstamp(a, 2)

def k_mega(name, force_fallback=False):
    a = Asm(); aL = Asm(); aC = Asm()
    kernel_header(a, name)
    a.e("s_cmp_ge_u32 s2, 256"); a.e(f"s_cbranch_scc0 {name}_go"); a.e("s_endpgm")
    a.label(f"{name}_go")
    a.e("s_load_dwordx16 s[76:91], s[0:1], 0")
    a.e(f"s_load_dwordx2 s[92:93], s[0:1], {D_OUT}")
    a.e(f"s_load_dwordx2 s[36:37], s[0:1], {D_WS}")
    a.e(f"s_load_dwordx4 s[28:31], s[0:1], {IN_C}")
    wave_id(a, 3)
    if STAMPS: a.e("v_mov_b32 v255, 0")
    mstamp(a, 0)
    a.e("s_waitcnt lgkmcnt(0)")
    srd(a, 96, 36, 128*FSTR, WS_FLG)
    a.e("s_cmp_ge_u32 s3, 4"); a.e(f"s_cbranch_scc0 {name}_comp")
    a.e("s_sub_u32 s3, s3, 4")
    ln1(aC, name + "_ln")
    vg = [104]
    vg.append(k_gemm.k_qkv(aL, aC, name + "_q"))
    vg.append(k_attn.k_attn(aL, aC, name + "_a", force_fallback))
    vg.append(k_gemm.k_proj(aL, aC, name + "_p"))
    vg.append(k_gemm.k_win(aL, aC, name + "_w"))
    vg.append(k_gemm.k_spat(aL, aC, name + "_s"))
    vg.append(k_gemm.k_wout(aL, aC, name + "_o"))
    aL.e("s_endpgm")
    if STAMPS:
        srd(aC, 8, 36, 1 << 19, WS_STAMP + 65536)
        aC.e("s_getreg_b32 s20, hwreg(HW_REG_XCC_ID)"); aC.e("v_writelane_b32 v255, s20, 31")
        aC.e("s_lshl_b32 s20, s2, 2"); aC.e("s_add_u32 s20, s20, s3"); aC.e("s_lshl_b32 s20, s20, 7")
        aC.e("v_and_b32 v2, 63, v0"); aC.e("v_lshlrev_b32 v2, 2, v2"); aC.e("s_bfm_b64 exec, 32, 0")
        aC.e("buffer_store_dword v255, v2, s[8:11], s20 offen")
    if STAMPS and os.environ.get('DBG'):
        aC.e(f"s_cmp_eq_u32 s2, {os.environ['DBG']}"); aC.e(f"s_cbranch_scc0 {name}_nd"); aC.e("s_cmp_eq_u32 s3, 0"); aC.e(f"s_cbranch_scc0 {name}_nd")
        aC.e(f"s_load_dwordx2 s[20:21], s[0:1], {D_DBG}"); aC.e("s_waitcnt lgkmcnt(0)")
        aC.e(f"s_sub_u32 s20, s20, {os.environ.get('DBGOFF', '0')}"); aC.e("s_subb_u32 s21, s21, 0")
        srd(aC, 8, 20, 64)
        aC.e("v_readlane_b32 s22, v255, 0")
        idx = [2, 3, 4, 5, 6, 7, 8, 9, 11, 12, 13, 14, 15, 17, 18, 20]
        aC.e("s_mov_b64 exec, -1")
        for i, k in enumerate(idx):
            aC.e(f"v_readlane_b32 s23, v255, {k}"); aC.e("s_nop 3"); aC.e("s_sub_u32 s23, s23, s22"); aC.e(f"v_writelane_b32 v254, s23, {i}")
        aC.e("s_bfm_b64 exec, 16, 0")
        aC.e("buffer_store_dword v254, v2, s[8:11], 0 offen")
        aC.label(f"{name}_nd")
    aC.e("s_endpgm")
    print('phase vgprs', vg)
    assert max(vg) <= (255 if STAMPS else 256)
    return a.text() + aL.text() + f"{name}_comp:\n" + aC.text(), 256, 163840
```

```python
from asmlib import *
A_X, A_WQKV, A_WO, B_X, B_WIN, B_WSP, B_BSP, B_WOUT, IN_C, W_MOD, D_OUT, D_DBG, D_WS = [8*i for i in range(13)]
MB = 1 << 20
WS_MOD   = 0
WS_ST1   = 64*1024
WS_UT    = 80*1024
WS_ST2   = 112*1024
WS_FLG   = 68*MB
FSTR = 4352
WS_ST0   = 224*1024
WS_MP    = 256*1024
WS_STAMP = 1*MB
import os
REUSE = os.environ.get('REUSE', '1') == '1'
WS_H     = 2*MB
WS_Q     = 6*MB
WS_KV    = 10*MB
WS_O     = WS_Q if REUSE else 18*MB
WS_H2    = WS_H if REUSE else 22*MB
WS_X1    = 26*MB
WS_Z1    = 44*MB
WS_Z2    = WS_KV if REUSE else 52*MB
WS_U     = WS_H if REUSE else 60*MB
WS_WO    = 30*MB
WS_WIN   = 32*MB
WS_WOUT  = 40*MB
SENT = 0xffffffff
QSCALE = 0.17677669529663687 * 1.4426950408889634
import struct
def f2u(x): return struct.unpack('<I', struct.pack('<f', x))[0]
def hexf(x): return hex(f2u(x))

STAMPS = False
def stamp(a, slot):
    if STAMPS: a.e(f"s_memtime s[{80+2*slot}:{81+2*slot}]")
def stamp_start(a):
    if STAMPS:
        stamp(a, 0); a.e("s_memrealtime s[92:93]"); a.e("s_getreg_b32 s94, hwreg(HW_REG_XCC_ID)")
        for i in (1,2,3): a.e(f"s_mov_b32 s{80+2*i}, 0")
def stamp_end(a, kidx, wsreg, wave_s, nw=8):
    if not STAMPS: return
    stamp(a, 4); a.e("s_memrealtime s[90:91]"); a.e("s_waitcnt lgkmcnt(0)")
    a.e("s_mov_b64 exec, -1")
    srd(a, 76, wsreg, 65536, WS_STAMP + kidx*65536)
    a.e("s_lshl_b32 s75, s2, 3"); a.e(f"s_add_u32 s75, s75, s{wave_s}"); a.e("s_lshl_b32 s75, s75, 5")
    for i in range(8): a.e(f"v_mov_b32 v{2+i}, s{80+2*i}")
    a.e("v_mov_b32 v10, s75")
    a.e("v_and_b32 v11, 63, v0"); a.e("v_cmp_eq_u32 vcc, 0, v11"); a.e("s_and_saveexec_b64 s[74:75], vcc")
    a.e("buffer_store_dwordx4 v[2:5], v10, s[76:79], 0 offen")
    a.e("buffer_store_dwordx4 v[6:9], v10, s[76:79], 0 offen offset:16")

def wave_id(a, sdst, vtmp=1):
    a.e(f"v_lshrrev_b32 v{vtmp}, 6, v0"); a.e("s_nop 0"); a.e(f"v_readfirstlane_b32 s{sdst}, v{vtmp}")

def xrow_sum(a, regs, tmps):
    for op in ("v_permlane16_swap_b32", "v_permlane32_swap_b32"):
        for r, t in zip(regs, tmps): a.e(f"v_mov_b32 v{t}, v{r}")
        if len(regs) < 3: a.e("s_nop 1")
        for r, t in zip(regs, tmps): a.e(f"{op} v{r}, v{t}")
        a.e("s_nop 0")
        for r, t in zip(regs, tmps): a.e(f"v_add_f32 v{r}, v{r}, v{t}")

def row16_sum(a, regs):
    for m in ("quad_perm:[1,0,3,2]", "quad_perm:[2,3,0,1]", "row_half_mirror", "row_mirror"):
        a.e("s_nop 1")
        for r in regs: a.e(f"v_add_f32_dpp v{r}, v{r}, v{r} {m} row_mask:0xf bank_mask:0xf")

def rnd_bf16(a, dst, src):
    a.e(f"v_cvt_pk_bf16_f32 v{dst}, v{src}, v{src}")
    a.e(f"v_and_b32 v{dst}, 0xffff0000, v{dst}")

def unpack(a, lo, hi, src):
    a.e(f"v_lshlrev_b32 v{lo}, 16, v{src}")
    a.e(f"v_and_b32 v{hi}, 0xffff0000, v{src}")

def prefetch(a, srd_s, nbytes, vaddr, vtmp, slice_reg, nslices, step=128, dst=None):
    per = nbytes // nslices
    n = (per + 64*step - 1) // (64*step)
    a.e(f"s_mul_i32 s23, s{slice_reg}, {per}")
    for i in range(n):
        a.e(f"buffer_load_dword v{vtmp}, v{vaddr}, s[{srd_s}:{srd_s+3}], s23 offen")
        if i + 1 < n: a.e(f"s_add_u32 s23, s23, {64*step}")

P_X, P_WQKV, P_WO, P_WIN, P_WSP, P_BSP, P_WOUT, P_OUT = 76, 78, 80, 84, 86, 88, 90, 92
FL_H, FL_Q, FL_O, FL_S, FL_P, FL_W, FL_U = 0, 16, 32, 96, 48, 64, 80
FL_K = 112
PSLEEP = int(os.environ.get('PSLEEP', '4'))
POLLF = os.environ.get("POLLF", "sc1")
def mstamp(a, idx):
    if not STAMPS: return
    a.e("s_memrealtime s[94:95]"); a.e("s_waitcnt lgkmcnt(0)"); a.e(f"v_writelane_b32 v255, s94, {idx}")
FMODE = os.environ.get('FMODE', 'B')
def flag_off(a, base, sgrp, sidx, mode=None):
    mode = mode or FMODE
    a.e(f"s_add_u32 s20, s{sgrp}, {base}"); a.e(f"s_mul_i32 s20, s20, {FSTR}")
    if sidx is not None and mode != 'C':
        a.e(f"s_lshl_b32 s{sidx}, s{sidx}, {2 if mode == 'A' else 7}"); a.e(f"s_add_u32 s20, s20, s{sidx}")
def flag_set(a, soff, mode=None):
    mode = mode or FMODE
    a.e("v_mov_b32 v2, s101"); a.e("v_mov_b32 v3, 0")
    a.e("s_mov_b64 exec, 1")
    if mode == 'C': a.e(f"buffer_atomic_add v2, v3, s[96:99], s{soff} offen")
    else: a.e(f"buffer_store_dword v2, v3, s[96:99], s{soff} offen sc1")
    a.e("s_mov_b64 exec, -1")
def poll(a, lbl, soff, n, mode=None, nslot=1):
    mode = mode or FMODE
    a.e("v_and_b32 v2, 63, v0")
    if mode == 'C':
        a.e(f"v_mul_u32_u24 v2, {FSTR}, v2"); a.e(f"s_bfm_b64 exec, {nslot}, 0")
    else:
        a.e(f"v_lshlrev_b32 v2, {2 if mode == 'A' else 7}, v2"); a.e(f"s_bfm_b64 exec, {n}, 0")
    a.e("s_mov_b32 s19, 0x8000")
    a.label(lbl)
    a.e(f"buffer_load_dword v240, v2, s[96:99], s{soff} offen {POLLF}")
    a.e("s_waitcnt vmcnt(0)")
    a.e("v_cmp_ne_u32 vcc, s101, v240")
    a.e("s_sub_u32 s19, s19, 1"); a.e("s_cmp_eq_u32 s19, 0")
    a.e(f"s_cbranch_scc1 {lbl}_d"); a.e(f"s_cbranch_vccz {lbl}_d"); a.e(f"s_sleep {PSLEEP}"); a.e(f"s_branch {lbl}")
    a.label(f"{lbl}_d")
    a.e("s_mov_b64 exec, -1")
def wg_signal(a, lbl, off_fn):
    a.e("s_waitcnt vmcnt(0)"); a.e("s_barrier")
    a.e("s_cmp_eq_u32 s3, 0"); a.e(f"s_cbranch_scc0 {lbl}")
    off_fn(a); flag_set(a, 20)
    a.label(lbl)

def poll256(a, lbl, base):
    a.e("v_and_b32 v2, 31, v0"); a.e("v_lshlrev_b32 v2, 7, v2"); a.e("v_bfe_u32 v3, v0, 5, 1"); a.e(f"v_mul_u32_u24 v3, {FSTR}, v3")
    a.e("v_add_u32 v2, v2, v3")
    a.e("s_mov_b32 s19, 0x8000")
    a.label(lbl)
    for i in range(4):
        a.e(f"s_mov_b32 s20, {(base + 2*i)*FSTR}")
        a.e(f"buffer_load_dword v{240+i}, v2, s[96:99], s20 offen {POLLF}")
    a.e("s_waitcnt vmcnt(0)")
    for i in range(4): a.e(f"v_xor_b32 v{240+i}, s101, v{240+i}")
    a.e("v_or3_b32 v240, v240, v241, v242"); a.e("v_or_b32 v240, v240, v243")
    a.e("v_cmp_ne_u32 vcc, 0, v240")
    a.e("s_sub_u32 s19, s19, 1"); a.e("s_cmp_eq_u32 s19, 0")
    a.e(f"s_cbranch_scc1 {lbl}_d"); a.e(f"s_cbranch_vccz {lbl}_d"); a.e(f"s_sleep {PSLEEP}"); a.e(f"s_branch {lbl}")
    a.label(f"{lbl}_d")

ROTK, ROTV = [int(x) for x in os.environ.get('ROT', '0,0').split(',')]
TOUCH = os.environ.get('TOUCH', '')
TD = int(os.environ.get('TD', '3'))

def guard_issue(a, base, per_slot):
    sh = 5 if per_slot == 32 else 4
    a.e(f"v_and_b32 v58, {per_slot-1}, v1"); a.e("v_lshlrev_b32 v58, 7, v58"); a.e(f"v_lshrrev_b32 v59, {sh}, v1")
    a.e(f"v_mul_u32_u24 v59, {FSTR}, v59"); a.e("v_add_u32 v58, v58, v59")
    a.e(f"s_mul_i32 s35, s3, {(64//per_slot)*FSTR}"); a.e(f"s_add_u32 s35, s35, {base*FSTR}")
    a.e(f"buffer_load_dword v59, v58, s[96:99], s35 offen {POLLF}")
def guard_check(a, lbl):
    a.e("s_mov_b32 s19, 0x8000")
    a.label(lbl)
    a.e("v_cmp_ne_u32 vcc, s101, v59")
    a.e("s_sub_u32 s19, s19, 1"); a.e("s_cmp_eq_u32 s19, 0")
    a.e(f"s_cbranch_scc1 {lbl}_d"); a.e(f"s_cbranch_vccz {lbl}_d"); a.e(f"s_sleep {PSLEEP}")
    a.e(f"buffer_load_dword v59, v58, s[96:99], s35 offen {POLLF}"); a.e("s_waitcnt vmcnt(0)"); a.e(f"s_branch {lbl}")
    a.label(f"{lbl}_d")
```

```python
from asmlib import *

class GemmCfg:
    def __init__(s, name, TM, NB, K, NS, mode, tmode, fmode, ldt=None, ldf=None,
                 groups=None, swap=None, xm=None, xn=None, MT=None, NT=None):
        s.name = name; s.TM = TM; s.NB = NB; s.K = K; s.NS = NS
        s.mode = mode
        s.tmode = tmode
        s.fmode = fmode
        s.ldt = ldt; s.ldf = ldf
        s.groups = groups
        s.swap = swap or [False]*NB
        s.xm = xm; s.xn = xn
        s.MT = MT; s.NT = NT
        s.nT = TM // 8
        if fmode == 'tr':
            full, half = groups
            s.nF = full*8 + (4 if half else 0)
        else:
            s.nF = NB*2*(1 if mode in ('ksplitT', '4x1') else 2)
        s.stage = (s.nT + s.nF)*1024
        s.nk = K // 64
        s.lds = s.stage*NS
        s.ksplit = mode in ('ksplitT', 'ksplitF')
        s.NTB = 2 if mode in ('2x2s', '4x1') else 4

V_ACC = 8

def decode_tile(a, c):
    import math
    rx = c.MT // c.xm
    lrx = int(math.log2(rx)); lxm = int(math.log2(c.xm))
    a.e("s_and_b32 s20, s2, 7")
    a.e("s_lshr_b32 s21, s2, 3")
    a.e(f"s_and_b32 s4, s20, {rx-1}")
    a.e(f"s_lshl_b32 s4, s4, {lxm}")
    a.e(f"s_and_b32 s22, s21, {c.xm-1}")
    a.e("s_add_u32 s4, s4, s22")
    a.e(f"s_lshr_b32 s5, s20, {lrx}")
    a.e(f"s_mul_i32 s5, s5, {c.xn}")
    a.e(f"s_lshr_b32 s22, s21, {lxm}")
    a.e("s_add_u32 s5, s5, s22")

def loader(a, c, fcol_bytes, pre=None, tail=None, postP=None, xf=None, fitem=None, extra=None, lfin=None, mega=None):
    n = c.name
    vL = 1
    a.e(f"v_and_b32 v{vL}, 63, v0")
    nTi = c.nT // 4
    vT0 = 8
    vF0 = vT0 + nTi
    if c.tmode == 'frag':
        kb = c.K // 32
        a.e(f"s_mul_i32 s20, s4, {c.TM//16}")
        a.e("s_lshr_b32 s21, s3, 1")
        a.e("s_add_u32 s20, s20, s21")
        a.e(f"s_mul_i32 s20, s20, {kb*1024}")
        a.e("s_and_b32 s21, s3, 1")
        a.e("s_lshl_b32 s21, s21, 10")
        a.e("s_add_u32 s20, s20, s21")
        a.e(f"v_lshlrev_b32 v2, 4, v{vL}")
        a.e(f"v_add_u32 v{vT0}, s20, v2")
        for t in range(1, nTi):
            a.e(f"v_add_u32 v{vT0+t}, {t*2*kb*1024}, v{vT0}")
        dT = 2048
    else:
        a.e(f"v_lshrrev_b32 v2, 4, v{vL}")
        a.e("s_and_b32 s21, s3, 1")
        a.e("s_lshl_b32 s21, s21, 2")
        a.e("v_or_b32 v2, s21, v2")
        a.e(f"v_and_b32 v3, 7, v{vL}")
        a.e("v_xor_b32 v2, v2, v3")
        a.e("v_lshlrev_b32 v2, 4, v2")
        a.e(f"v_lshrrev_b32 v3, 3, v{vL}")
        a.e(f"s_mul_i32 s20, s4, {c.TM}")
        a.e("s_lshl_b32 s21, s3, 3")
        a.e("s_add_u32 s20, s20, s21")
        a.e("v_add_u32 v3, s20, v3")
        a.e(f"s_mov_b32 s21, {c.ldt}")
        a.e("v_mul_lo_u32 v3, v3, s21")
        a.e(f"v_add_u32 v{vT0}, v2, v3")
        for t in range(1, nTi):
            a.e(f"v_add_u32 v{vT0+t}, {t*32*c.ldt}, v{vT0}")
        dT = 128
    if c.fmode == 'tr':
        full, half = c.groups
        a.e(f"v_bfe_u32 v2, v{vL}, 4, 1")
        a.e("s_and_b32 s21, s3, 1")
        a.e("s_lshl_b32 s21, s21, 1")
        a.e("v_or_b32 v2, s21, v2")
        a.e(f"v_bfe_u32 v3, v{vL}, 1, 2")
        a.e("v_xor_b32 v2, v2, v3")
        a.e("v_lshlrev_b32 v2, 5, v2")
        a.e(f"v_and_b32 v3, 1, v{vL}")
        a.e("v_lshl_add_u32 v2, v3, 4, v2")
        a.e(f"v_lshrrev_b32 v3, 3, v{vL}")
        a.e("s_lshl_b32 s21, s3, 3")
        a.e("v_add_u32 v3, s21, v3")
        a.e(f"s_mov_b32 s21, {c.ldf}")
        a.e("v_mul_lo_u32 v3, v3, s21")
        a.e("v_add_u32 v2, v2, v3")
        for G in range(full):
            fcol_bytes(a, G, 20)
            a.e(f"v_add_u32 v{vF0+2*G}, s20, v2")
            a.e(f"v_add_u32 v{vF0+2*G+1}, {32*c.ldf}, v{vF0+2*G}")
        nFi = [2*full + (1 if half else 0)]*4
        if half:
            a.e(f"v_bfe_u32 v2, v{vL}, 1, 1")
            a.e(f"v_lshrrev_b32 v3, 5, v{vL}")
            a.e("v_xor_b32 v2, v2, v3")
            a.e("v_lshlrev_b32 v2, 5, v2")
            a.e(f"v_and_b32 v3, 1, v{vL}")
            a.e("v_lshl_add_u32 v2, v3, 4, v2")
            a.e(f"v_lshrrev_b32 v3, 2, v{vL}")
            a.e("s_lshl_b32 s21, s3, 4")
            a.e("v_add_u32 v3, s21, v3")
            a.e(f"s_mov_b32 s21, {c.ldf}")
            a.e("v_mul_lo_u32 v3, v3, s21")
            a.e("v_add_u32 v2, v2, v3")
            fcol_bytes(a, 'H', 20)
            a.e(f"v_add_u32 v{vF0+2*full}, s20, v2")
        dF = 64*c.ldf
    else:
        kb = c.K // 32
        fcol_bytes(a, 0, 20)
        a.e("s_lshr_b32 s21, s3, 1")
        a.e("s_add_u32 s20, s20, s21")
        a.e(f"s_mul_i32 s20, s20, {kb*1024}")
        a.e("s_and_b32 s21, s3, 1")
        a.e("s_lshl_b32 s21, s21, 10")
        a.e("s_add_u32 s20, s20, s21")
        a.e(f"v_lshlrev_b32 v2, 4, v{vL}")
        a.e(f"v_add_u32 v{vF0}, s20, v2")
        mx = (c.nF + 3)//4
        for t in range(1, mx):
            a.e(f"v_add_u32 v{vF0+t}, {t*2*kb*1024}, v{vF0}")
        if fitem:
            for t in range(mx):
                fitem(a, t, 20)
                a.e(f"s_mul_i32 s20, s20, {kb*1024}"); a.e("s_add_u32 s20, s20, s21")
                a.e(f"v_add_u32 v{vF0+t}, s20, v2")
        nFi = [len(range(w, c.nF, 4)) for w in range(4)]
        dF = 2048
    a.e("s_mov_b32 s16, 0")
    a.e("s_mov_b32 s17, 0")
    a.e("s_lshl_b32 s18, s3, 10")
    a.e(f"s_add_u32 s23, s18, {c.lds}")
    if pre: pre(a)
    M = mega
    sc = lambda side: " sc1" if side != M['indep'] else M.get('indf', '')
    def iss(side, nf, slot_s, k_s):
        if side == 'T':
            for t in range(nTi):
                a.e(f"s_add_u32 m0, s{slot_s}, {t*4096}"); a.e("s_nop 0")
                a.e(f"buffer_load_dwordx4 v{vT0+t}, s[8:11], s{k_s} offen{sc('T')} lds")
            a.e(f"s_add_u32 s{k_s}, s{k_s}, {dT}")
            return nTi
        for t in range(nf):
            a.e(f"s_add_u32 m0, s{slot_s}, {(c.nT + 4*t)*1024}"); a.e("s_nop 0")
            a.e(f"buffer_load_dwordx4 v{vF0+t}, s[12:15], s{k_s} offen{sc('F')} lds")
        a.e(f"s_add_u32 s{k_s}, s{k_s}, {dF}")
        return nf
    def adv():
        a.e(f"s_add_u32 s18, s18, {c.stage}"); a.e("s_cmp_ge_u32 s18, s23")
        a.e(f"s_cselect_b32 s20, {c.lds}, 0"); a.e("s_sub_u32 s18, s18, s20")
    variants = sorted(set(nFi), reverse=True)
    TC = M.get('touch')
    cnt0 = nFi.count(variants[0])
    for vi, nf in enumerate(variants):
        if len(variants) > 1 and vi == 0:
            a.e(f"s_cmp_ge_u32 s3, {cnt0}"); a.e(f"s_cbranch_scc1 {n}_ld_v1")
        def touch():
            if not TC: return
            for o in TC['t']: a.e(f"s_buffer_load_dword s34, s[8:11], s38 offset:{o}")
            for o in TC['f']: a.e(f"s_buffer_load_dword s35, s[12:15], s39 offset:{o}")
            a.e(f"s_add_u32 s38, s38, {dT}"); a.e(f"s_add_u32 s39, s39, {dF}")
        if vi == 1: a.label(f"{n}_ld_v1")
        ops = []
        def wait_stage(st):
            last = max(i for i, t in enumerate(ops) if t == st)
            a.e(f"s_waitcnt vmcnt({min(63, len(ops)-1-last)})")
        ks = {'T': 16, 'F': 17}
        ind = M['indep']; dep = 'T' if ind == 'F' else 'F'
        if M.get('pre_indep'): M['pre_indep'](a, vi)
        for st in range(c.NS):
            if M.get('noearly'): break
            a.e(f"s_add_u32 s22, s18, {st*c.stage}")
            ops += [st]*iss(ind, nf, 22, ks[ind])
        M['mid'](a, vi)
        if M.get('post_dep'): ops += [0]*M['post_dep'](a)
        for st in range(c.NS):
            a.e(f"s_add_u32 s22, s18, {st*c.stage}")
            ops += [st]*iss(dep, nf, 22, ks[dep])
            if M.get('noearly'): ops += [st]*iss(ind, nf, 22, ks[ind])
        if TC:
            TC['setup'](a)
            for _ in range(TC['D']): touch()
        wait_stage(0); a.e("s_barrier")
        if postP: postP(a)
        per = nTi + nf
        npeel = c.NS - 2
        for i in range(npeel):
            wait_stage(i+1); a.e("s_barrier")
            ops += [i+c.NS]*(iss('T', nf, 18, 16) + iss('F', nf, 18, 17)); adv(); touch()
        a.e(f"s_mov_b32 s19, {c.nk - c.NS - npeel}")
        a.label(f"{n}_ld_loop{vi}")
        a.e(f"s_waitcnt vmcnt({per*(c.NS-2)})"); a.e("s_barrier")
        iss('T', nf, 18, 16); iss('F', nf, 18, 17); adv(); touch()
        a.e("s_sub_u32 s19, s19, 1"); a.e("s_cmp_lg_u32 s19, 0"); a.e(f"s_cbranch_scc1 {n}_ld_loop{vi}")
        if TC: a.e("s_waitcnt lgkmcnt(0)")
        for i in range(c.nk - c.NS, c.nk):
            rem = c.nk - 1 - (i + 1); idx = i - (c.nk - c.NS)
            E = extra[0] if (extra and idx >= 1) else 0
            if rem >= 0: a.e(f"s_waitcnt vmcnt({per*rem + E})")
            elif extra: a.e("s_waitcnt vmcnt(0)")
            if rem < 0 and M.get('lastbar'): M['lastbar'](a)
            a.e("s_barrier")
            if extra and idx == 0: extra[1](a)
        if len(variants) > 1 and vi == 0: a.e(f"s_branch {n}_ld_join")
    if len(variants) > 1: a.label(f"{n}_ld_join")
    if lfin: lfin(a)

class Regs: pass

def compute_setup(a, c, fblock):
    r = Regs()
    NB = c.NB
    r.acc = V_ACC
    nt = c.NTB
    nacc = nt*NB*4
    r.T = [r.acc + nacc, r.acc + nacc + 4*nt + NB*4]
    r.F = [r.T[0] + 4*nt, r.T[1] + 4*nt]
    nxt = r.T[1] + 4*nt + NB*4
    r.lane = 1
    a.e("v_and_b32 v1, 63, v0")
    if c.mode == '2x2':
        a.e("s_and_b32 s6, s3, 1")
        a.e("s_lshr_b32 s7, s3, 1")
    elif c.mode == 'ksplitT':
        a.e("s_and_b32 s6, s3, 1")
        a.e("s_lshr_b32 s7, s3, 1")
    else:
        a.e("s_and_b32 s6, s3, 1")
        a.e("s_lshr_b32 s7, s3, 1")
    r.Tb = nxt; r.Tc = nxt + 1; nxt += 2
    if c.tmode == 'frag':
        a.e(f"v_lshlrev_b32 v{r.Tb}, 4, v1")
        if c.mode == '2x2s':
            a.e("s_lshl_b32 s20, s7, 12"); a.e(f"v_add_u32 v{r.Tb}, s20, v{r.Tb}")
        elif c.mode != 'ksplitF':
            a.e("s_lshl_b32 s20, s6, 13")
            a.e(f"v_add_u32 v{r.Tb}, s20, v{r.Tb}")
        if c.ksplit:
            a.e("s_lshl_b32 s20, s7, 10")
            a.e(f"v_add_u32 v{r.Tb}, s20, v{r.Tb}")
        r.t_off = lambda i, sub: i*2048 + sub*1024
    else:
        a.e("v_and_b32 v2, 15, v1")
        a.e("v_lshrrev_b32 v3, 4, v1")
        if c.ksplit:
            a.e("s_lshl_b32 s20, s7, 2")
            a.e("v_or_b32 v3, s20, v3")
        a.e("v_lshrrev_b32 v4, 1, v2")
        a.e("v_xor_b32 v3, v3, v4")
        a.e("v_lshlrev_b32 v3, 4, v3")
        a.e(f"v_lshl_add_u32 v{r.Tb}, v2, 7, v3")
        if c.mode == 'ksplitT':
            a.e("s_lshl_b32 s20, s6, 13")
            a.e(f"v_add_u32 v{r.Tb}, s20, v{r.Tb}")
        if c.mode == '4x1':
            a.e("s_lshl_b32 s20, s6, 13"); a.e("s_lshl_b32 s22, s7, 12"); a.e("s_add_u32 s20, s20, s22")
            a.e(f"v_add_u32 v{r.Tb}, s20, v{r.Tb}")
            r.Tc2 = nxt; nxt += 2
        r.t_off = lambda i, sub: i*2048
    fbase = c.nT*1024
    if c.fmode == 'tr':
        r.Fb = nxt; r.Fc = nxt + NB; nxt += 2*NB
        a.e("v_lshrrev_b32 v2, 4, v1")
        a.e("v_bfe_u32 v3, v1, 2, 2")
        a.e("v_lshl_add_u32 v4, v2, 3, v3")
        a.e("v_and_b32 v5, 3, v1")
        a.e("v_lshlrev_b32 v5, 3, v5")
        a.e("v_and_b32 v2, 1, v2")
        a.e("v_lshrrev_b32 v3, 1, v3")
        a.e("v_lshl_or_b32 v3, v2, 1, v3")
        r.fhalf = []
        for j in range(NB):
            half = fblock(a, j)
            r.fhalf.append(half)
            a.e(f"v_xor_b32 v6, s21, v{2 if half else 3}")
            a.e("v_lshl_add_u32 v6, v6, 5, v5")
            a.e(f"v_lshl_add_u32 v6, v4, {6 if half else 7}, v6")
            a.e(f"s_add_u32 s20, s20, {fbase}")
            if c.ksplit:
                a.e(f"s_lshl_b32 s22, s7, {11 if half else 12}")
                a.e("s_add_u32 s20, s20, s22")
            a.e(f"v_add_u32 v{r.Fb+j}, s20, v6")
        r.nFa = NB
    else:
        r.Fb = nxt; r.Fc = nxt + 1; nxt += 2
        if c.fmode == 'trp':
            a.e("v_bfe_u32 v2, v1, 2, 3")
            a.e("v_lshrrev_b32 v3, 5, v1")
            a.e("v_lshl_add_u32 v2, v3, 4, v2")
            a.e("v_and_b32 v3, 3, v1")
            a.e("v_lshlrev_b32 v3, 3, v3")
            a.e(f"v_lshl_add_u32 v{r.Fb}, v2, 5, v3")
        else:
            a.e(f"v_lshlrev_b32 v{r.Fb}, 4, v1")
        a.e(f"s_mov_b32 s20, {fbase}")
        if c.ksplit:
            a.e("s_lshl_b32 s22, s7, 10")
            a.e("s_add_u32 s20, s20, s22")
        if c.mode not in ('ksplitT', '4x1'):
            a.e(f"s_mul_i32 s22, s{7 if c.mode == '2x2' else 6}, {NB*2048}")
            a.e("s_add_u32 s20, s20, s22")
        a.e(f"v_add_u32 v{r.Fb}, s20, v{r.Fb}")
        r.nFa = 1
    r.free = nxt
    for i in range(nacc):
        a.e(f"v_mov_b32 v{r.acc+i}, 0")
    return r

def reads(c, r, buf, sub):
    out = []
    tl = []
    for i in range(c.NTB):
        tc = r.Tc2 if (c.mode == '4x1' and sub) else r.Tc
        tl.append(f"ds_read_b128 {vr(r.T[buf]+4*i,4)}, v{tc} offset:{r.t_off(i,sub)}")
    fl = []
    for j in range(c.NB):
        if c.fmode == 'tr':
            h = r.fhalf[j]
            for q in range(2):
                off = sub*(2048 if h else 4096) + q*(256 if h else 512)
                fl.append(f"ds_read_b64_tr_b16 {vr(r.F[buf]+4*j+2*q,2)}, v{r.Fc+j} offset:{off}")
        elif c.fmode == 'trp':
            for q in range(2):
                fl.append(f"ds_read_b64_tr_b16 {vr(r.F[buf]+4*j+2*q,2)}, v{r.Fc} offset:{j*2048+sub*1024+q*256}")
        else:
            fl.append(f"ds_read_b128 {vr(r.F[buf]+4*j,4)}, v{r.Fc} offset:{j*2048+sub*1024}")
    return tl + fl

def mfmas(c, r, buf):
    out = []
    for j in range(c.NB):
        for i in range(c.NTB):
            d = vr(r.acc + (i*c.NB + j)*4, 4)
            t = vr(r.T[buf]+4*i, 4); f = vr(r.F[buf]+4*j, 4)
            if c.swap[j]:
                out.append(f"v_mfma_f32_16x16x32_bf16 {d}, {t}, {f}, {d}")
            else:
                out.append(f"v_mfma_f32_16x16x32_bf16 {d}, {f}, {t}, {d}")
    return out

def setslot(c, r):
    o = [f"v_add_u32 v{r.Tc}, s18, v{r.Tb}"]
    if c.mode == '4x1': o.append(f"v_xor_b32 v{r.Tc2}, 64, v{r.Tc}")
    for j in range(r.nFa):
        o.append(f"v_add_u32 v{r.Fc+j}, s18, v{r.Fb+j}")
    return o

def advslot(c):
    return [f"s_add_u32 s18, s18, {c.stage}", f"s_cmp_ge_u32 s18, {c.lds}",
            "s_cselect_b32 s18, 0, s18"]

def compute_loop(a, c, r, nomfma=False, noread=False, afterP=None):
    n = c.name
    mf = (lambda b: []) if nomfma else (lambda b: mfmas(c, r, b))
    rd = (lambda b, s: []) if noread else (lambda b, s: reads(c, r, b, s))
    a.e("s_mov_b32 s18, 0")
    for x in setslot(c, r): a.e(x)
    a.e("s_barrier")
    if getattr(c, 'stampP', None): c.stampP(a)
    for x in rd(0, 0): a.e(x)
    if afterP: afterP()
    if not c.ksplit:
        a.e(f"s_mov_b32 s19, {c.nk}")
        a.e("s_waitcnt lgkmcnt(0)")
        a(".p2align 6")
        a.label(f"{n}_c_loop")
        interleave(a, mf(0), rd(1, 1) + advslot(c) + setslot(c, r), per=(2 if c.NTB == 2 else 1))
        a.e("s_waitcnt lgkmcnt(0)")
        a.e("s_barrier")
        interleave(a, mf(1), rd(0, 0) + ["s_sub_u32 s19, s19, 1", "s_cmp_lg_u32 s19, 0"], per=(2 if c.NTB == 2 else 1))
        a.e("s_waitcnt lgkmcnt(0)")
        a.e(f"s_cbranch_scc1 {n}_c_loop")
    else:
        assert c.nk % 2 == 0
        a.e(f"s_mov_b32 s19, {c.nk//2}")
        for x in advslot(c) + setslot(c, r): a.e(x)
        a(".p2align 6")
        a.label(f"{n}_c_loop")
        for b in range(2):
            a.e("s_waitcnt lgkmcnt(0)")
            a.e("s_barrier")
            extra = advslot(c) + setslot(c, r)
            if b == 1: extra += ["s_sub_u32 s19, s19, 1", "s_cmp_lg_u32 s19, 0"]
            interleave(a, mf(b), rd(1-b, 0) + extra)
        a.e(f"s_cbranch_scc1 {n}_c_loop")
        a.e("s_waitcnt lgkmcnt(0)")
    a.e("s_nop 7")
    a.e("s_nop 7")

def ksplit_reduce(a, c, r):
    NB = c.NB
    n = c.name
    if not c.ksplit:
        a.e("s_waitcnt lgkmcnt(0)"); a.e("s_barrier")
        return
    sz = 2*NB*1024
    a.e(f"s_mul_i32 s20, s3, {sz}")
    a.e("v_lshlrev_b32 v2, 4, v1")
    a.e("v_add_u32 v3, s20, v2")
    a.e("s_xor_b32 s21, s3, 2")
    a.e(f"s_mul_i32 s21, s21, {sz}")
    a.e("v_add_u32 v4, s21, v2")
    a.e("s_cmp_eq_u32 s7, 0")
    a.e(f"s_cbranch_scc0 {n}_red_k1")
    for x in range(2*NB):
        a.e(f"ds_write_b128 v3, {vr(r.acc + (2*NB + x)*4, 4)} offset:{x*1024}")
    a.e(f"s_branch {n}_red_j")
    a.label(f"{n}_red_k1")
    for x in range(2*NB):
        a.e(f"ds_write_b128 v3, {vr(r.acc + x*4, 4)} offset:{x*1024}")
    a.e("s_nop 1")
    for x in range(2*NB*4):
        a.e(f"v_mov_b32 v{r.acc + x}, v{r.acc + 2*NB*4 + x}")
    a.label(f"{n}_red_j")
    a.e("s_waitcnt lgkmcnt(0)")
    a.e("s_barrier")
    base = r.acc + 2*NB*4
    for x in range(2*NB):
        a.e(f"ds_read_b128 {vr(base + x*4, 4)}, v4 offset:{x*1024}")
    for x in range(2*NB):
        a.e(f"s_waitcnt lgkmcnt({min(15, 2*NB-1-x)})")
        if x == 2*NB-1: a.e("s_barrier")
        for q in range(0, 4, 2):
            a.e(f"v_pk_add_f32 {vr(r.acc + x*4 + q, 2)}, {vr(r.acc + x*4 + q, 2)}, {vr(base + x*4 + q, 2)}")
```

```python
from common import *

MARGIN = 40.0
PREW = ''
EXPT = os.environ.get('EXPT', '')
SCH = [int(x) for x in os.environ.get('SCH', '2,3,4').split(',')]
NSLOT = 4
CH = 32768
FLG = 0
STG = NSLOT*CH

def k_attn(aL, aC, n, force_fallback=False, side=True):
    KI = 2
    for a in (aL, aC):
        attn_common(a)
    attn_helper(aL, n, side)
    attn_compute(aC, n, force_fallback, KI)
    return 168

def attn_common(a):
    a.e("s_and_b32 s4, s2, 7"); a.e("s_lshl_b32 s4, s4, 2"); a.e("s_lshr_b32 s20, s2, 6"); a.e("s_add_u32 s4, s4, s20")
    a.e("s_bfe_u32 s5, s2, 0x30003")
    a.e("v_and_b32 v1, 63, v0")
    vL16 = 4
    a.e(f"v_lshlrev_b32 v{vL16}, 4, v1")
    a.e("s_mov_b32 s33, 0")

def attn_helper(a, n, side):
    vL16 = 4
    a.e("s_cmp_ge_u32 s3, 2"); a.e(f"s_cbranch_scc1 {n}_side")
    vD = 8
    a.e("s_lshl_b32 s6, s3, 14"); a.e(f"v_add_u32 v{vD}, s6, v{vL16}")
    for h in range(1, 4): a.e(f"v_add_u32 v{vD+h}, {4096*h}, v{vD}")
    a.e("s_lshl_b32 s21, s4, 18")
    srd(a, 8, 36, 262144, WS_KV); a.e("s_add_u32 s8, s8, s21"); a.e("s_addc_u32 s9, s9, 0")
    def kv(c):
        a.e(f"s_mov_b32 s16, {c*CH}")
        for h in range(4):
            a.e(f"s_add_u32 m0, s6, {(c % NSLOT)*CH + 4096*h}"); a.e("s_nop 0")
            for i in range(4):
                a.e(f"buffer_load_dwordx4 v{vD+h}, s[8:11], s16 offen offset:{1024*i} sc1 lds")
    def stream():
        for c in range(3): kv(c)
        a.e("s_waitcnt vmcnt(32)"); a.e("s_barrier")
        for i in range(8):
            a.e(f"s_waitcnt vmcnt({16 if i < 6 else 0})"); a.e("s_barrier")
            if i + 3 < 8: kv(i+3)
    a.e("s_barrier"); a.e("s_barrier")
    stream()
    a.e("s_lshl_b32 s20, s3, 3"); a.e("s_add_u32 s20, s20, 7"); flag_off(a, FL_S, 20, None, 'B')
    poll(a, f"{n}_sp", 20, 32, 'B')
    def chk(lbl, lend):
        a.label(lbl)
        a.e("s_barrier")
        a.e(f"v_mov_b32 v7, {FLG}"); a.e("ds_read_b128 v[12:15], v7"); a.e("s_waitcnt lgkmcnt(0)")
        a.e("v_or3_b32 v12, v12, v13, v14"); a.e("v_or_b32 v12, v12, v15"); a.e("s_nop 0"); a.e("v_readfirstlane_b32 s20, v12"); a.e("s_nop 3")
        a.e("s_cmp_eq_u32 s20, 0"); a.e(f"s_cbranch_scc1 {lend}")
    chk(f"{n}_hchk", f"{n}_hend")
    a.e("s_mov_b32 s19, 2")
    a.label(f"{n}_hfb")
    a.e("s_barrier"); stream()
    a.e("s_sub_u32 s19, s19, 1"); a.e("s_cmp_lg_u32 s19, 0"); a.e(f"s_cbranch_scc1 {n}_hfb")
    a.e(f"s_branch {n}_hchk")
    a.label(f"{n}_side")
    vSF, vX, vDD, vSA, vSR = 32, 96, 104, 136, 140
    a.e("s_sub_u32 s30, s3, 2"); a.e("s_lshl_b32 s6, s30, 14")
    a.e("s_lshl_b32 s22, s2, 1"); a.e("s_add_u32 s22, s22, s30")
    a.e("s_lshr_b32 s38, s4, 1")
    a.e("s_and_b32 s39, s4, 1"); a.e("s_lshl_b32 s20, s5, 1"); a.e("s_add_u32 s39, s39, s20"); a.e("s_lshl_b32 s39, s39, 1")
    a.e("s_add_u32 s39, s39, s30"); a.e("s_lshl_b32 s39, s39, 1")
    a.e("s_mul_i32 s31, s38, 56"); a.e("s_add_u32 s31, s31, s39")
    a.e("s_lshl_b32 s23, s38, 3"); a.e("s_add_u32 s23, s23, s39"); a.e("s_sub_u32 s23, s23, 56")
    a.e("s_cmp_lt_u32 s5, 7"); a.e("s_cselect_b32 s62, 1, 0"); a.e("s_cselect_b32 s31, s31, s23")
    a.e("s_cselect_b32 s40, s84, s80"); a.e("s_cselect_b32 s41, s85, s81")
    a.e(f"s_cselect_b32 s42, {1024*7168}, {2*MB}"); a.e("s_mov_b32 s43, 0x20000")
    a.e("s_cselect_b32 s44, s90, s80"); a.e("s_cselect_b32 s45, s91, s81")
    a.e(f"s_cselect_b32 s46, {1792*2048}, {2*MB}"); a.e("s_mov_b32 s47, 0x20000")
    a.e("s_cselect_b32 s54, 7168, 2048")
    a.e(f"s_cselect_b32 s56, {WS_WIN-WS_WO}, 0"); a.e(f"s_cselect_b32 s60, {WS_WOUT-WS_WO}, 0")
    a.e(f"s_cselect_b32 s61, {56*1024}, 32768")
    a.e("s_lshr_b32 s32, s31, 4"); a.e("s_and_b32 s31, s31, 15")
    a.e("s_lshl_b32 s23, s32, 2"); a.e("s_add_u32 s34, s23, 2"); a.e("s_lshl_b32 s21, s38, 1")
    a.e("s_cmp_lt_u32 s5, 7"); a.e("s_cselect_b32 s20, s39, s31"); a.e("s_cselect_b32 s21, s21, s23"); a.e("s_cselect_b32 s32, s32, s34")
    a.e("s_lshl_b32 s63, s20, 8"); a.e("s_lshl_b32 s68, s21, 7")
    a.e("s_mul_i32 s55, s21, s54"); a.e("s_lshl_b32 s55, s55, 5"); a.e("s_lshl_b32 s23, s20, 7"); a.e("s_add_u32 s55, s55, s23")
    a.e("s_add_u32 s23, s23, s21"); a.e("s_lshl_b32 s23, s23, 10"); a.e("s_add_u32 s56, s56, s23")
    a.e("s_mov_b32 s57, 32768")
    a.e("s_lshl_b32 s59, s32, 16"); a.e("s_lshl_b32 s23, s31, 7"); a.e("s_add_u32 s59, s59, s23")
    a.e("s_mul_i32 s23, s31, s61"); a.e("s_lshl_b32 s23, s23, 2"); a.e("s_add_u32 s60, s60, s23")
    a.e("s_lshl_b32 s23, s32, 10"); a.e("s_add_u32 s60, s60, s23")
    a.e("s_lshl_b32 s69, s22, 14"); a.e("s_lshl_b32 s35, s54, 3")
    srd(a, 64, 36, 14*MB, WS_WO); srd(a, 72, 36, 128*1024); srd(a, 12, P_WSP, 8*MB)
    a.e("v_and_b32 v8, 1, v1"); a.e("v_sub_u32 v8, 4, v8"); a.e("v_lshlrev_b32 v8, 12, v8")
    a.e("v_lshrrev_b32 v7, 4, v1"); a.e("v_lshl_add_u32 v10, v7, 5, v8")
    a.e("v_bfe_u32 v8, v1, 2, 2"); a.e("v_lshl_add_u32 v8, v7, 3, v8"); a.e("v_lshlrev_b32 v8, 7, v8")
    a.e("v_and_b32 v9, 3, v1"); a.e("v_lshl_add_u32 v8, v9, 3, v8")
    a.e(f"s_add_u32 s20, s6, {STG}"); a.e("v_add_u32 v8, s20, v8")
    a.e("v_bfe_u32 v9, v1, 3, 2")
    for b in range(4):
        a.e(f"v_xor_b32 v7, {b}, v9"); a.e(f"v_lshl_add_u32 v{vSR+b}, v7, 5, v8")
    a.e("v_bfe_u32 v8, v1, 4, 1"); a.e("v_bfe_u32 v7, v1, 1, 2"); a.e("v_xor_b32 v8, v8, v7")
    a.e("v_and_b32 v7, 1, v1"); a.e("v_lshlrev_b32 v7, 4, v7"); a.e("v_lshl_add_u32 v8, v8, 5, v7")
    a.e("v_xor_b32 v9, 64, v8"); a.e("v_lshrrev_b32 v7, 3, v1"); a.e("v_mul_lo_u32 v11, v7, s54")
    a.e(f"v_add_u32 v{vSA}, v8, v11"); a.e(f"v_add_u32 v{vSA+1}, v9, v11")
    a.e(f"v_lshl_add_u32 v{vSA+2}, v7, 11, v8"); a.e(f"v_lshl_add_u32 v{vSA+3}, v7, 11, v9")
    def sdma(srd_s, va, ld8, off_s):
        for v in range(2):
            a.e(f"s_add_u32 s21, s{off_s}, {128*v}")
            for jj in range(8):
                a.e(f"s_add_u32 m0, s6, {STG + 8192*v + 1024*jj}")
                if jj: a.e(f"s_add_u32 s21, s21, {ld8}")
                else: a.e("s_nop 0")
                a.e(f"buffer_load_dwordx4 v{va+(jj&1)}, s[{srd_s}:{srd_s+3}], s21 offen lds")
    def sread():
        for t in range(4):
            for b in range(4):
                for q in range(2):
                    a.e(f"ds_read_b64_tr_b16 {vr(vSF+16*t+4*b+2*q,2)}, v{vSR+b} offset:{4096*t + 512*q}")
        a.e("s_waitcnt lgkmcnt(0)")
    def sstore(off_s, str_s, mf, gate):
        for k in range(2):
            if gate and k: a.e("s_cmp_eq_u32 s62, 0"); a.e(f"s_cselect_b32 s66, {14*MB}, 0")
            a.e(f"s_add_u32 s20, s{off_s}, {1024*k}")
            for v in range(2):
                for b in range(4):
                    f = vr(vSF+16*(2*v+k)+4*b, 4)
                    a.e(f"buffer_store_dwordx4 {f}, v{vL16}, s[64:67], s20 offen sc1")
                    a.e(f"s_add_u32 s20, s20, s{str_s}")
                    if mf:
                        d = vr(vDD+16*v+4*b, 4)
                        a.e(f"v_mfma_f32_16x16x32_bf16 {d}, {vr(vX+4*k,4)}, {f}, {'0' if k == 0 else d}")
    a.e("s_barrier"); a.e("s_barrier")
    a.e("s_barrier")
    sdma(40, vSA, "s35", 55)
    for k in range(2):
        for h in range(2):
            a.e(f"buffer_load_dwordx4 {vr(16+8*k+4*h,4)}, v10, s[72:75], s68 offen offset:{128*k+16*h}")
    a.e("s_mov_b32 s18, 1"); a.e("s_mov_b32 s19, 8")
    a.label(f"{n}_sl")
    a.e("s_cmp_eq_u32 s19, 0"); a.e(f"s_cbranch_scc1 {n}_sgo")
    a.e("s_getreg_b32 s20, hwreg(HW_REG_IB_STS)"); a.e("s_and_b32 s20, s20, 0xc000000f"); a.e(f"s_cbranch_scc1 {n}_sbar")
    a.label(f"{n}_sgo")
    a.e("s_waitcnt vmcnt(0)")
    for st in (1, 2, 3, 4):
        a.e(f"s_cmp_eq_u32 s18, {st}"); a.e(f"s_cbranch_scc0 {n}_st{st}")
        if st == 1:
            a.e("v_and_b32 v7, 1, v1"); a.e("v_xor_b32 v7, 1, v7"); a.e("v_cvt_f32_u32 v7, v7")
            for q in range(16):
                rnd_bf16(a, 16+q, 16+q); a.e(f"v_add_f32 v{16+q}, v{16+q}, v7")
            for q in range(8): a.e(f"v_cvt_pk_bf16_f32 v{vX+q}, v{16+2*q}, v{17+2*q}")
            sread(); sdma(44, vSA+2, "16384", 59); sstore(56, 57, True, False)
        elif st == 2:
            a.e("s_cmp_eq_u32 s62, 0"); a.e(f"s_cselect_b32 s74, 0, {128*1024}")
            a.e("v_lshlrev_b32 v7, 2, v1"); a.e(f"s_add_u32 s20, s63, {WS_UT}"); a.e(f"s_add_u32 s21, s20, {3584*4}")
            for v in range(2):
                d = vDD + 16*v
                a.e("s_bfm_b64 vcc, 16, 16")
                for r in range(2): a.e(f"v_cndmask_b32 v{d+r}, v{d+r}, v{d+4+r}, vcc")
                a.e("s_bfm_b64 vcc, 16, 48")
                for r in range(2): a.e(f"v_cndmask_b32 v{d+8+r}, v{d+8+r}, v{d+12+r}, vcc")
                a.e("s_bfm_b64 vcc, 32, 32")
                for r in range(2): a.e(f"v_cndmask_b32 v{d+r}, v{d+r}, v{d+8+r}, vcc")
                a.e(f"buffer_atomic_add_f32 v{d}, v7, s[72:75], s20 offen offset:{256*v}")
                a.e(f"buffer_atomic_add_f32 v{d+1}, v7, s[72:75], s21 offen offset:{256*v}")
            sread(); sstore(60, 61, False, True)
        elif st == 3:
            a.e("s_lshl_b32 s21, s30, 3"); a.e("s_add_u32 s20, s5, s21"); a.e("s_mov_b32 s21, s4")
            flag_off(a, FL_S, 20, 21, 'B'); flag_set(a, 20, 'B')
            a.e("v_lshlrev_b32 v7, 7, v1"); a.e("s_add_u32 s21, s69, 8192")
            a.e("buffer_load_dword v12, v7, s[12:15], s69 offen"); a.e("buffer_load_dword v13, v7, s[12:15], s21 offen")
        else:
            a.e("s_cmp_eq_u32 s19, 0"); a.e(f"s_cbranch_scc1 {n}_schk"); a.e(f"s_branch {n}_sbar")
        if st < 4:
            a.e(f"s_mov_b32 s18, {st+1}")
            a.e("s_cmp_eq_u32 s19, 0"); a.e(f"s_cbranch_scc1 {n}_sgo"); a.e(f"s_branch {n}_sbar")
        a.label(f"{n}_st{st}")
    a.label(f"{n}_sbar")
    a.e("s_barrier"); a.e("s_sub_u32 s19, s19, 1"); a.e(f"s_branch {n}_sl")
    chk(f"{n}_schk", f"{n}_hend")
    for _ in range(20): a.e("s_barrier")
    a.e(f"s_branch {n}_schk")
    a.label(f"{n}_hend")

def attn_compute(a, n, force_fallback, KI):
    vL16 = 4
    a.e("s_cmp_lt_u32 s3, 3"); a.e(f"s_cbranch_scc0 {n}_np")
    a.e("s_cmp_eq_u32 s3, 1"); a.e(f"s_cselect_b32 s21, {16-ROTK}, 0"); a.e("s_cmp_eq_u32 s3, 2"); a.e(f"s_cselect_b32 s21, {16-ROTV}, s21")
    a.e("s_lshr_b32 s20, s4, 1"); a.e("s_add_u32 s20, s20, s21"); a.e("s_and_b32 s20, s20, 15"); flag_off(a, FL_Q, 20, None)
    poll(a, f"{n}_dp", 20, 16)
    a.label(f"{n}_np")
    a.e("s_barrier")
    vQ, vNM, vS, vP, vO, vL, vONE, vK, vV = 8, 24, 56, 88, 96, 128, 136, 140, 148
    vA, vAn, vQo = 2, 3, 5
    a.e(f"v_bfe_u32 v{vQo}, v1, 4, 1"); a.e(f"v_lshlrev_b32 v{vQo}, 15, v{vQo}")
    a.e("v_lshrrev_b32 v6, 5, v1"); a.e(f"v_lshl_add_u32 v{vQo}, v6, 8, v{vQo}")
    a.e("v_and_b32 v6, 15, v1"); a.e(f"v_lshl_add_u32 v{vQo}, v6, 4, v{vQo}")
    a.e("s_lshl_b32 s7, s5, 2"); a.e("s_add_u32 s7, s7, s3"); a.e("s_lshl_b32 s7, s7, 17")
    a.e("s_lshl_b32 s20, s4, 10"); a.e("s_add_u32 s7, s7, s20"); a.e("s_add_u32 s32, s7, 65536")
    srd(a, 12, 36, 4*MB, WS_Q); srd(a, 24, 36, 4*MB, WS_O)
    def loadq():
        for q in range(2):
            for s in range(2):
                a.e(f"buffer_load_dwordx4 {vr(vQ+8*q+4*s,4)}, v{vQo}, s[12:15], s{32 if q else 7} offen offset:{512*s} sc1")
    loadq()
    a.e("v_bfe_u32 v6, v1, 2, 1"); a.e("v_bfe_u32 v7, v1, 4, 1"); a.e("v_cmp_eq_u32 vcc, v6, v7")
    a.e("v_mov_b32 v6, 0x3f803f80"); a.e("s_setprio 2")
    a.e(f"v_cndmask_b32 v{vONE}, 0, v6, vcc")
    for i in range(1, 4): a.e(f"v_mov_b32 v{vONE+i}, v{vONE}")
    def zero_state():
        for i in range(32): a.e(f"v_mov_b32 v{vO+i}, 0")
        for i in range(8): a.e(f"v_mov_b32 v{vL+i}, 0")
        for i in range(4): a.e(f"v_mov_b32 v{vP+4+i}, 0")
        for i in range(4): a.e(f"v_mov_b32 v{vV+8+i}, 0")
        a.e(f"v_mov_b32 v{vA}, v{vL16}"); a.e("s_mov_b32 s18, 0")
    zero_state()
    a.e("s_barrier")
    mstamp(a, 3*KI)
    K = lambda s: vr(vK + 4*s, 4)
    V0 = lambda p: vr(vV + 4*p, 4)
    V1 = vr(vV + 8, 4)
    S = lambda b: vr(vS + 16*b, 16)
    O = lambda b: vr(vO + 16*b, 16)
    L = lambda b: vr(vL + 4*b, 4)
    NM = lambda b: vr(vNM + 16*b, 16)
    Q = lambda b, s: vr(vQ + 8*b + 4*s, 4)
    P = lambda s: vr(vP + 4*s, 4)
    rdK = lambda s, areg, off: f"ds_read_b128 {K(s)}, v{areg} offset:{off + 1024*s}"
    for s in range(2): a.e(rdK(s, vA, 0))
    a.e(f"ds_read_b128 {V0(0)}, v{vA} offset:2048")
    a.e("s_waitcnt vmcnt(0) lgkmcnt(0)")
    for b in range(2):
        a.e(f"v_mfma_f32_32x32x16_bf16 {S(b)}, {K(0)}, {Q(b,0)}, 0")
        a.e(f"v_mfma_f32_32x32x16_bf16 {S(b)}, {K(1)}, {Q(b,1)}, {S(b)}")
    a.e("s_nop 7"); a.e("s_nop 1")
    mg = -200.0 if force_fallback else MARGIN
    def setnm(b, src, margin):
        a.e(f"v_mov_b32 v7, v{src}"); a.e("s_nop 1"); a.e(f"v_permlane32_swap_b32 v{src}, v7"); a.e("s_nop 0")
        a.e(f"v_max_f32 v6, v{src}, v7")
        a.e(f"v_sub_f32 v{vNM+16*b}, {hexf(-margin) if margin else 0}, v6")
        for i in range(1, 16): a.e(f"v_mov_b32 v{vNM+16*b+i}, v{vNM+16*b}")
    for b in range(2):
        s0 = vS + 16*b
        a.e(f"v_max3_f32 v6, v{s0}, v{s0+1}, v{s0+2}")
        for i in range(3, 15, 2): a.e(f"v_max3_f32 v6, v6, v{s0+i}, v{s0+i+1}")
        a.e(f"v_max_f32 v6, v6, v{s0+15}")
        setnm(b, 6, mg)
    a.label(f"{n}_havem")
    a.e("s_nop 1")
    a.e(f"v_mfma_f32_32x32x16_bf16 {S(0)}, {K(0)}, {Q(0,0)}, {NM(0)}")
    a.e(f"v_mfma_f32_32x32x16_bf16 {S(0)}, {K(1)}, {Q(0,1)}, {S(0)}")
    a.e("s_mov_b32 s19, 8")
    a.e("s_nop 7"); a.e("s_nop 3")
    a(".p2align 6")
    a.label(f"{n}_loop")
    for ph in range(16):
        t = ph >> 1; b = ph & 1; nb = 1 - b
        E = lambda x, y: [a.e(f"v_exp_f32 v{vS+16*b+i}, v{vS+16*b+i}") for i in range(x, y)]
        C = lambda x, y: [a.e(f"v_cvt_pk_bf16_f32 v{vP+i}, v{vS+16*b+2*i}, v{vS+16*b+2*i+1}") for i in range(x, y)]
        na, no = (vA, (t+1)*4096) if t < 7 else (vAn, 0)
        if b == 1: a.e("s_waitcnt lgkmcnt(0)")
        a.e(f"v_mfma_f32_32x32x16_bf16 {S(nb)}, {K(0)}, {Q(nb,0)}, {NM(nb)}")
        if ph == 14: a.e("s_barrier")
        if b == 0: a.e(rdK(0, na, no))
        if ph == 13:
            a.e(f"s_add_u32 s18, s18, {CH}"); a.e(f"s_and_b32 s18, s18, {NSLOT*CH-1}")
        E(0, 3)
        a.e(f"v_mfma_f32_16x16x32_bf16 {L(nb)}, {vr(vONE,4)}, {P(1)}, {L(nb)}")
        E(3, 5)
        a.e(f"v_mfma_f32_32x32x16_bf16 {O(nb)}, {V1}, {P(1)}, {O(nb)}")
        if b == 0: a.e(f"ds_read_b128 {V1}, v{vA} offset:{t*4096 + 3072}")
        if ph == 13: a.e(f"v_add_u32 v{vAn}, s18, v{vL16}")
        if ph == 15:
            a.e(f"v_mov_b32 v{vA}, v{vAn}")
        E(5, 8); C(0, 2)
        a.e(f"v_mfma_f32_32x32x16_bf16 {S(nb)}, {K(1)}, {Q(nb,1)}, {S(nb)}")
        if b == 0: a.e(rdK(1, na, no))
        if ph == 15:
            a.e("s_sub_u32 s19, s19, 1"); a.e("s_cmp_lg_u32 s19, 0")
        C(2, 4); E(8, 11)
        a.e(f"v_mfma_f32_16x16x32_bf16 {L(b)}, {vr(vONE,4)}, {P(0)}, {L(b)}")
        if b == 0: a.e(f"ds_read_b128 {V0((t+1) & 1)}, v{na} offset:{no + 2048}")
        E(11, 13)
        a.e(f"v_mfma_f32_32x32x16_bf16 {O(b)}, {V0(t & 1)}, {P(0)}, {O(b)}")
        E(13, 16)
        C(4, 8)
    a.e(f"s_cbranch_scc1 {n}_loop")
    a.e("s_nop 0")
    a.e(f"v_mfma_f32_32x32x16_bf16 {O(1)}, {V1}, {P(1)}, {O(1)}")
    a.e(f"v_mfma_f32_16x16x32_bf16 {L(1)}, {vr(vONE,4)}, {P(1)}, {L(1)}")
    mstamp(a, 3*KI+1)
    for b in range(2):
        if b: a.e("s_nop 1")
        a.e(f"v_rcp_f32 v6, v{vL+4*b}")
        a.e(f"v_pk_mul_f32 {vr(vS+2*b,2)}, {vr(vO+16*b,2)}, 0")
        for i in range(2, 16, 2): a.e(f"v_pk_fma_f32 {vr(vS+2*b,2)}, {vr(vO+16*b+i,2)}, 0, {vr(vS+2*b,2)}")
        for i in range(0, 16, 2): a.e(f"v_pk_mul_f32 {vr(vO+16*b+i,2)}, {vr(vO+16*b+i,2)}, v[6:7] op_sel_hi:[1,0]")
        pp = vS + 8 + 8*b
        for i in range(8): a.e(f"v_cvt_pk_bf16_f32 v{pp+i}, v{vO+16*b+2*i}, v{vO+16*b+2*i+1}")
        a.e("s_nop 1")
        for h in range(2):
            a.e(f"v_permlane32_swap_b32 v{pp+4*h}, v{pp+4*h+2}"); a.e(f"v_permlane32_swap_b32 v{pp+4*h+1}, v{pp+4*h+3}")
        for h in range(2):
            a.e(f"buffer_store_dwordx4 {vr(pp+4*h,4)}, v{vQo}, s[24:27], s{32 if b else 7} offen offset:{512*h} sc1")
    a.e(f"v_mov_b32 v6, {hexf(2.0**100)}")
    a.e(f"v_cmp_nle_f32 s[20:21], v{vL}, v6"); a.e(f"v_cmp_nle_f32 vcc, v{vL+4}, v6"); a.e("s_or_b64 s[20:21], s[20:21], vcc")
    a.e(f"v_cmp_u_f32 vcc, v{vS}, v{vS+1}"); a.e("s_or_b64 s[20:21], s[20:21], vcc")
    a.e(f"v_cmp_u_f32 vcc, v{vS+2}, v{vS+3}"); a.e("s_or_b64 s[20:21], s[20:21], vcc")
    a.e("s_cmp_lg_u64 s[20:21], 0"); a.e("s_cselect_b32 s20, 1, 0")
    a.e("s_cmp_eq_u32 s33, 0"); a.e("s_cselect_b32 s20, s20, 0")
    a.e("v_mov_b32 v6, s20"); a.e("s_lshl_b32 s21, s3, 2"); a.e("v_mov_b32 v7, s21")
    a.e("ds_write_b32 v7, v6"); a.e("s_waitcnt lgkmcnt(0)"); a.e("s_barrier")
    a.e(f"v_mov_b32 v7, {FLG}"); a.e(f"ds_read_b128 {vr(vK,4)}, v7"); a.e("s_waitcnt lgkmcnt(0)")
    a.e(f"v_or3_b32 v6, v{vK}, v{vK+1}, v{vK+2}"); a.e(f"v_or_b32 v6, v6, v{vK+3}")
    a.e("s_nop 0"); a.e("v_readfirstlane_b32 s20, v6"); a.e("s_nop 3")
    a.e("s_cmp_eq_u32 s20, 0"); a.e(f"s_cbranch_scc1 {n}_ok")
    a.label(f"{n}_fb")
    a.e("s_mov_b32 s33, 1")
    a.e("s_waitcnt vmcnt(0)")
    a.e("s_barrier")
    a.e(f"v_mov_b32 v{vP}, 0xff800000"); a.e(f"v_mov_b32 v{vP+1}, 0xff800000")
    a.e("s_mov_b32 s18, 0"); a.e("s_mov_b32 s19, 8")
    a.e("s_barrier")
    a.label(f"{n}_mx")
    a.e(f"v_add_u32 v{vA}, s18, v{vL16}")
    for t in range(8):
        for s in range(2): a.e(rdK(s, vA, t*4096))
        a.e("s_waitcnt lgkmcnt(0)")
        for b in range(2):
            a.e(f"v_mfma_f32_32x32x16_bf16 {S(b)}, {K(0)}, {Q(b,0)}, 0")
            a.e(f"v_mfma_f32_32x32x16_bf16 {S(b)}, {K(1)}, {Q(b,1)}, {S(b)}")
        a.e("s_nop 7"); a.e("s_nop 7")
        for b in range(2):
            for i in range(0, 16, 2): a.e(f"v_max3_f32 v{vP+b}, v{vP+b}, v{vS+16*b+i}, v{vS+16*b+i+1}")
    a.e("s_barrier")
    a.e(f"s_add_u32 s18, s18, {CH}"); a.e(f"s_and_b32 s18, s18, {NSLOT*CH-1}")
    a.e("s_sub_u32 s19, s19, 1"); a.e("s_cmp_lg_u32 s19, 0"); a.e(f"s_cbranch_scc1 {n}_mx")
    for b in range(2): setnm(b, vP+b, 0)
    zero_state()
    a.e("s_barrier"); a.e("s_barrier")
    for s in range(2): a.e(rdK(s, vA, 0))
    a.e(f"ds_read_b128 {V0(0)}, v{vA} offset:2048")
    a.e("s_waitcnt lgkmcnt(0)")
    a.e(f"s_branch {n}_havem")
    a.label(f"{n}_ok")
    def so(a): a.e("s_mov_b32 s21, s4"); flag_off(a, FL_O, 5, 21)
    wg_signal(a, f"{n}_sig", so)
    mstamp(a, 3*KI+2)
```

```python
from common import *
from gemm import *
import gemm_bench as gb

import os
STF = os.environ.get("STF", " sc1")
QTOUCH = int(os.environ.get("QTOUCH", "0"))
LATE = int(os.environ.get("LATE", "0"))
NOKS = os.environ.get("NOKS", "pos")
PBAR = int(os.environ.get("PBAR", "6"))

def prolog(aL, a, name, c, tptr, tbytes, toff, fptr, fbytes, foff, kidx, **lkw):
    decode_tile(aL, c)
    srd(aL, 8, tptr, tbytes, toff); srd(aL, 12, fptr, fbytes, foff)
    base = c.name; fc = gb.fcol(c); c.name = name
    loader(aL, c, fc, **lkw)
    decode_tile(a, c)
    lkw['mega']['cpoll'](a)
    c.name = base; fb = gb.fblock(c); cc = gb.colchunk(c); c.name = name
    r = compute_setup(a, c, fb)
    c.stampP = lambda a: mstamp(a, 3*kidx)
    return r, cc

def P0(a, vi): a.e("s_barrier"); a.e("s_barrier")
def cpoll(name, off_fn, ndw):
    def f(a):
        a.e("s_cmp_eq_u32 s3, 0"); a.e(f"s_cbranch_scc0 {name}_np")
        off_fn(a)
        poll(a, f"{name}_dp", 20, 16*ndw)
        a.label(f"{name}_np")
        a.e("s_barrier")
    return f

def touch_ws(c, toff, foff):
    kb = c.K//32
    def setup(a):
        a.e("s_lshl_b32 s20, s4, 2"); a.e("s_and_b32 s21, s5, 3"); a.e("s_add_u32 s20, s20, s21"); a.e(f"s_mul_i32 s38, s20, {kb*1024}")
        a.e("s_lshl_b32 s22, s5, 3"); a.e("s_and_b32 s21, s4, 7"); a.e("s_add_u32 s22, s22, s21"); a.e(f"s_mul_i32 s39, s22, {kb*1024}")
        a.e("s_lshl_b32 s21, s3, 9"); a.e(f"s_add_u32 s21, s21, {c.NS*2048}"); a.e("s_add_u32 s38, s38, s21"); a.e("s_add_u32 s39, s39, s21")
    return dict(setup=setup, D=TD, t=[128*i for i in range(4)], f=[128*i for i in range(4)])

def fin(a, kidx, off_fn):
    if off_fn:
        wg_signal(a, f"sig_{kidx}", off_fn)
    mstamp(a, 3*kidx + 2)

def pack_pair(a, t, x, y):
    a.e(f"v_cvt_pk_bf16_f32 v{t}, v{x}, v{x+1}"); a.e(f"v_cvt_pk_bf16_f32 v{t+1}, v{x+2}, v{x+3}")
    a.e(f"v_cvt_pk_bf16_f32 v{t+2}, v{y}, v{y+1}"); a.e(f"v_cvt_pk_bf16_f32 v{t+3}, v{y+2}, v{y+3}")
def swap_pair(a, t):
    a.e(f"v_permlane16_swap_b32 v{t}, v{t+2}"); a.e(f"v_permlane16_swap_b32 v{t+1}, v{t+3}")

def store_pairs(a, items, tmp, ntmp=4):
    pend = None
    for k, (x, y, pre, st) in enumerate(items):
        t = tmp + 4*(k % ntmp)
        pack_pair(a, t, x, y)
        if pend is not None:
            swap_pair(a, pend[0])
            for p in pend[1]: a.e(p)
            a.e(pend[2](pend[0]))
        pend = (t, pre, st)
    a.e("s_nop 1")
    swap_pair(a, pend[0])
    for p in pend[1]: a.e(p)
    a.e(pend[2](pend[0]))

def lane_chunk_off(a, vd, nchunks):
    a.e(f"v_bfe_u32 v{vd}, v1, 4, 1"); a.e(f"v_mul_u32_u24 v{vd}, {nchunks*256}, v{vd}")
    a.e("v_lshrrev_b32 v3, 5, v1"); a.e(f"v_lshl_add_u32 v{vd}, v3, 8, v{vd}")
    a.e("v_and_b32 v3, 15, v1"); a.e(f"v_lshl_add_u32 v{vd}, v3, 4, v{vd}")

def swap23(a, vd, vt):
    a.e(f"v_and_b32 v{vd}, 19, v1")
    a.e(f"v_bfe_u32 v{vt}, v1, 2, 1"); a.e(f"v_lshl_or_b32 v{vd}, v{vt}, 3, v{vd}")
    a.e(f"v_bfe_u32 v{vt}, v1, 3, 1"); a.e(f"v_lshl_or_b32 v{vd}, v{vt}, 2, v{vd}")

def k_qkv(aL, a, name):
    KI = 1
    c = GemmCfg('qkv', 128, 6, 1024, 3, '2x2', 'frag', 'tr', ldf=6144, groups=(3, False), xm=8, xn=4, MT=16, NT=16,
                swap=[False]*4 + [True]*2)
    def off(a): flag_off(a, FL_H, 4, None)
    def mid(a, vi):
        if QTOUCH:
            a.e("s_lshl_b32 s20, s2, 2"); a.e("s_add_u32 s20, s20, s3"); a.e("s_mul_i32 s20, s20, 6144")
            a.e("v_lshlrev_b32 v2, 7, v1"); a.e("s_bfm_b64 exec, 48, 0")
            a.e("buffer_load_dword v60, v2, s[12:15], s20 offen"); a.e("s_mov_b64 exec, -1")
        a.e("s_barrier")
        if LATE: a.e("s_barrier")
        srd(a, 40, 30, 1024*6144*2); srd(a, 44, 28, 2048); srd(a, 48, 36, 24576)
        a.e("s_lshl_b32 s20, s4, 2"); a.e("s_add_u32 s20, s20, s3"); a.e("s_lshl_b32 s20, s20, 4")
        a.e("s_lshl_b32 s21, s20, 1"); a.e("v_and_b32 v2, 15, v1"); a.e("v_lshlrev_b32 v3, 1, v2")
        a.e("buffer_load_ushort v61, v3, s[44:47], s21 offen")
        a.e("s_mul_i32 s20, s20, 12288"); a.e("s_lshl_b32 s21, s5, 7"); a.e("s_add_u32 s20, s20, s21"); a.e("s_add_u32 s20, s20, 4096")
        a.e("v_lshrrev_b32 v3, 4, v1"); a.e("v_lshlrev_b32 v62, 11, v3"); a.e("v_lshl_add_u32 v62, v2, 3, v62")
        for i in range(16):
            a.e(f"buffer_load_dwordx2 {vr(64+2*i,2)}, v62, s[40:43], s20 offen")
            if i < 15: a.e("s_add_u32 s20, s20, 12288")
        if not LATE: a.e("s_barrier")
        P0(a, vi)
    GB = 40960
    def lgemv2(a):
        a.e("s_lshl_b32 s20, s3, 8"); a.e(f"s_add_u32 s20, s20, {GB}"); a.e("v_lshl_add_u32 v2, v1, 2, s20")
        for w in range(4): a.e(f"ds_read_b32 v{56+w}, v2 offset:{1024*w}")
        a.e("s_lshl_b32 s20, s3, 12"); a.e("s_lshl_b32 s21, s5, 8"); a.e("s_add_u32 s20, s20, s21"); a.e("s_add_u32 s20, s20, 8192")
        a.e("v_lshlrev_b32 v2, 2, v1")
        a.e("s_waitcnt lgkmcnt(0)")
        a.e("v_add_f32 v56, v56, v57"); a.e("v_add_f32 v58, v58, v59"); a.e("v_add_f32 v56, v56, v58")
        a.e("buffer_atomic_add_f32 v56, v2, s[48:51], s20 offen")
    def lgemv(a):
        a.e("v_lshlrev_b32 v61, 16, v61")
        a.e(f"v_mul_f32 v2, {hexf(-1.4426950408889634)}, v61")
        a.e("v_exp_f32 v2, v2"); a.e("s_nop 0"); a.e("v_add_f32 v2, 1.0, v2"); a.e("v_rcp_f32 v2, v2"); a.e("s_nop 0")
        a.e("v_mul_f32 v61, v61, v2"); rnd_bf16(a, 61, 61)
        for k in range(4): a.e(f"v_mov_b32 v{56+k}, 0")
        for i in range(16):
            a.e(f"v_readlane_b32 s20, v61, {i}")
            unpack(a, 2, 3, 64+2*i); unpack(a, 4, 5, 65+2*i)
            for k in range(4): a.e(f"v_fmac_f32 v{56+k}, s20, v{2+k}")
        a.e("s_lshl_b32 s20, s3, 10"); a.e(f"s_add_u32 s20, s20, {GB}"); a.e("v_lshl_add_u32 v2, v1, 4, s20")
        a.e("ds_write_b128 v2, v[56:59]"); a.e("s_waitcnt lgkmcnt(0)")
    def lfin(a): a.e("s_waitcnt vmcnt(0)")
    r, cc = prolog(aL, a, name, c, 36, 4*MB, WS_H, P_WQKV, 6*MB, 0, KI, extra=(0, lgemv), lfin=lfin, mega=dict(indep='F', mid=mid, lastbar=lgemv2, cpoll=cpoll(name, off, 1)))
    srd(a, 24, 36, 4*MB, WS_Q); srd(a, 40, 36, 8*MB, WS_KV)
    vq, vk, vv = r.free, r.free+1, r.free+2
    lane_chunk_off(a, vq, 128)
    swap23(a, vk, 3); a.e(f"v_lshlrev_b32 v{vk}, 4, v{vk}")
    a.e("v_lshrrev_b32 v3, 5, v1"); a.e(f"v_lshl_add_u32 v{vk}, v3, 9, v{vk}")
    a.e("v_bfe_u32 v2, v1, 4, 1"); a.e("v_lshl_add_u32 v2, v2, 1, v3")
    a.e("v_and_b32 v3, 15, v1"); a.e("v_lshlrev_b32 v3, 4, v3"); a.e(f"v_lshl_add_u32 v{vv}, v2, 9, v3")
    a.e("s_lshl_b32 s32, s5, 1"); a.e("s_add_u32 s32, s32, s7")
    a.e("s_lshl_b32 s33, s4, 2"); a.e("s_lshl_b32 s20, s6, 1"); a.e("s_add_u32 s33, s33, s20")
    a.e("s_lshl_b32 s34, s33, 16"); a.e("s_lshl_b32 s20, s32, 10"); a.e("s_add_u32 s34, s34, s20")
    for rot, d in ((ROTK, 56), (ROTV, 58)):
        a.e(f"s_add_u32 s20, s32, {2*rot}"); a.e("s_and_b32 s20, s20, 31")
        a.e("s_lshl_b32 s20, s20, 6"); a.e("s_add_u32 s20, s20, s33"); a.e(f"s_lshl_b32 s{d}, s20, 12"); a.e(f"s_add_u32 s{d+1}, s{d}, 4096")
    a.e("s_add_u32 s38, s34, 65536")
    a.e(f"s_mov_b32 s44, {hexf(QSCALE)}"); a.e(f"s_mov_b32 s45, s44")
    a.e("s_setprio 1")
    compute_loop(a, c, r)
    mstamp(a, 3*KI + 1)
    items = []
    acc = lambda i, j: r.acc + (i*6 + j)*4
    for j in (2, 3, 4, 5, 0, 1):
        for p in range(2):
            jj = j & 1
            if j < 2:
                st = (lambda t, p=p, jj=jj: f"buffer_store_dwordx4 {vr(t,4)}, v{vq}, s[24:27], s{38 if p else 34} offen offset:{jj*512}{STF}")
            elif j < 4:
                st = (lambda t, p=p, jj=jj: f"buffer_store_dwordx4 {vr(t,4)}, v{vk}, s[40:43], s{56+p} offen offset:{jj*1024}{STF}")
            else:
                st = (lambda t, p=p, jj=jj: f"buffer_store_dwordx4 {vr(t,4)}, v{vv}, s[40:43], s{58+p} offen offset:{2048+jj*256}{STF}")
            items.append((acc(2*p, j), acc(2*p+1, j), [], st))
    for i in range(4):
        for j in range(2):
            for q in range(2):
                x = acc(i, j) + 2*q
                a.e(f"v_pk_mul_f32 {vr(x,2)}, {vr(x,2)}, s[44:45]")
    store_pairs(a, items, r.T[0])
    def so(a):
        a.e("s_mov_b32 s21, s4")
        flag_off(a, FL_Q, 5, 21)
    fin(a, KI, so)
    return r.free + 3

def stats_atomic(a, r, NB, nti, vS, srd_s, vaddr, soff):
    for i in range(nti):
        x0 = r.acc + i*NB*4
        a.e(f"v_pk_mul_f32 {vr(vS+4*i+2,2)}, {vr(x0,2)}, {vr(x0,2)}")
        a.e(f"v_pk_add_f32 {vr(vS+4*i,2)}, {vr(x0,2)}, {vr(x0+2,2)}")
        a.e(f"v_pk_fma_f32 {vr(vS+4*i+2,2)}, {vr(x0+2,2)}, {vr(x0+2,2)}, {vr(vS+4*i+2,2)}")
        for k in range(4, NB*4, 2):
            a.e(f"v_pk_add_f32 {vr(vS+4*i,2)}, {vr(vS+4*i,2)}, {vr(x0+k,2)}")
            a.e(f"v_pk_fma_f32 {vr(vS+4*i+2,2)}, {vr(x0+k,2)}, {vr(x0+k,2)}, {vr(vS+4*i+2,2)}")
    for i in range(nti):
        a.e(f"v_add_f32 v{vS+4*i}, v{vS+4*i}, v{vS+4*i+1}")
        a.e(f"v_add_f32 v{vS+4*i+2}, v{vS+4*i+2}, v{vS+4*i+3}")
    a.e("s_nop 1")
    for i in range(nti): a.e(f"v_permlane16_swap_b32 v{vS+4*i}, v{vS+4*i+2}")
    a.e("s_nop 0")
    for i in range(nti): a.e(f"v_add_f32 v{vS+4*i}, v{vS+4*i}, v{vS+4*i+2}")
    a.e("s_nop 1")
    for i in range(0, nti, 2): a.e(f"v_permlane32_swap_b32 v{vS+4*i}, v{vS+4*i+4}")
    a.e("s_nop 0")
    for i in range(0, nti, 2):
        a.e(f"v_add_f32 v{vS+4*i}, v{vS+4*i}, v{vS+4*i+4}")
        a.e(f"buffer_atomic_add_f32 v{vS+4*i}, v{vaddr}, s[{srd_s}:{srd_s+3}], s{soff} offen offset:{128*i}")

def stat_addr(a, vd):
    a.e(f"v_and_b32 v{vd}, 15, v1"); a.e("v_lshrrev_b32 v3, 5, v1"); a.e(f"v_lshl_add_u32 v{vd}, v3, 4, v{vd}")
    a.e(f"v_lshlrev_b32 v{vd}, 3, v{vd}"); a.e("v_bfe_u32 v3, v1, 4, 1"); a.e(f"v_lshl_add_u32 v{vd}, v3, 2, v{vd}")

def finish_stats(a, s, q, t, n):
    a.e(f"v_mul_f32 v{s}, {hexf(1.0/n)}, v{s}")
    a.e(f"v_mul_f32 v{q}, {hexf(1.0/n)}, v{q}")
    a.e(f"v_fma_f32 v{q}, -v{s}, v{s}, v{q}")
    a.e(f"v_max_f32 v{q}, 0, v{q}")
    a.e(f"v_add_f32 v{q}, {hexf(1e-5)}, v{q}")
    a.e(f"v_rsq_f32 v{t}, v{q}")
    a.e("s_nop 0")
    a.e(f"v_mul_f32_e64 v{q}, -v{s}, v{t}")
    a.e(f"v_mov_b32 v{s}, v{t}")

def k_proj(aL, a, name):
    KI = 3
    c = GemmCfg('woutL', 64, 4, 1024, 6, '2x2s' if 'p' in NOKS else 'ksplitF', 'frag', 'frag', xm=8, xn=4, MT=32, NT=8)
    EB = ((c.nk - c.NS) % c.NS)*c.stage
    def lpre(a):
        srd(a, 24, P_X, 4*MB); srd(a, 40, 36, 24576)
        a.e("v_lshrrev_b32 v2, 4, v1"); a.e("v_and_b32 v3, 15, v1")
        a.e("s_lshl_b32 s20, s4, 6"); a.e("s_lshl_b32 s21, s3, 4"); a.e("s_add_u32 s20, s20, s21"); a.e("s_lshl_b32 s20, s20, 11")
        a.e("s_lshl_b32 s21, s5, 8"); a.e("s_add_u32 s20, s20, s21")
        for t in range(4):
            a.e(f"v_add_u32 v4, {4*t}, v2"); a.e("v_xor_b32 v5, v4, v3"); a.e("v_lshlrev_b32 v5, 4, v5")
            a.e("v_lshl_add_u32 v5, v4, 11, v5"); a.e(f"v_add_u32 v{40+t}, s20, v5")
        a.e("v_lshrrev_b32 v4, 5, v1"); a.e("v_lshlrev_b32 v4, 13, v4"); a.e("v_and_b32 v5, 31, v1"); a.e("v_lshl_add_u32 v4, v5, 4, v4")
        a.e("s_lshl_b32 s21, s5, 9"); a.e("s_add_u32 s21, s21, 8192"); a.e("v_add_u32 v44, s21, v4")
    def lextra(a):
        a.e("s_lshl_b32 s20, s3, 12")
        for t in range(4):
            a.e(f"s_add_u32 m0, s20, {EB + 1024*t}"); a.e("s_nop 0")
            a.e(f"buffer_load_dwordx4 v{40+t}, s[24:27], 0 offen lds")
        a.e("buffer_load_dwordx4 v[48:51], v44, s[40:43], 0 offen")
    def lastbar(a):
        a.e("v_lshrrev_b32 v2, 5, v1"); a.e("v_cvt_f32_u32 v2, v2")
        for k in range(4):
            rnd_bf16(a, 48+k, 48+k); a.e(f"v_add_f32 v{48+k}, v{48+k}, v2"); rnd_bf16(a, 48+k, 48+k)
        a.e(f"v_lshlrev_b32 v2, 4, v1"); a.e(f"v_add_u32 v2, {EB + 16384}, v2")
        a.e("ds_write_b128 v2, v[48:51]"); a.e("s_waitcnt lgkmcnt(0)")
    def off(a): a.e("s_lshr_b32 s20, s4, 2"); flag_off(a, FL_O, 20, None)
    def lfin(a):
        if c.ksplit: a.e("s_barrier")
        a.e("s_barrier")
    cp0 = cpoll(name, off, 2)
    def cp(a):
        for w in (1, 2):
            a.e(f"s_cmp_eq_u32 s3, {w}"); a.e(f"s_cbranch_scc0 {name}_ns{w}")
            poll256(a, f"{name}_sp{w}", FL_S + 8*(w-1))
            a.label(f"{name}_ns{w}")
        cp0(a)
    r, cc = prolog(aL, a, name, c, 36, 4*MB, WS_O, 36, 2*MB, WS_WO, KI, pre=lpre, extra=(5, lextra), lfin=lfin,
                   mega=dict(indep='F', mid=P0, cpoll=cp, lastbar=lastbar, touch=touch_ws(c, WS_O, WS_WO) if 'p' in TOUCH else None))
    srd(a, 40, 36, 128*1024)
    srd(a, 48, 36, 4*MB, WS_X1); srd(a, 52, 36, 4*MB, WS_H2)
    f = r.free
    vX, vGA, vG = f, f+16, f+32
    vo, vs1, vm, vS, vx = f+48, f+49, f+50, f+52, f+60
    a.e("s_lshl_b32 s56, s4, 6"); a.e("s_lshl_b32 s20, s7, 5"); a.e("s_add_u32 s56, s56, s20")
    a.e("s_lshl_b32 s57, s5, 7"); a.e("s_lshl_b32 s20, s6, 6"); a.e("s_add_u32 s57, s57, s20")
    a.e("v_and_b32 v2, 15, v1"); a.e("v_lshrrev_b32 v3, 4, v1")
    a.e("v_lshrrev_b32 v4, 1, v3"); a.e("s_lshl_b32 s20, s6, 3"); a.e("v_or_b32 v4, s20, v4"); a.e("v_xor_b32 v4, v4, v2")
    a.e("v_and_b32 v5, 1, v3"); a.e("v_lshlrev_b32 v5, 3, v5"); a.e("v_lshl_add_u32 v5, v2, 8, v5")
    a.e("s_lshl_b32 s20, s7, 13"); a.e(f"s_add_u32 s20, s20, {EB}"); a.e("v_add_u32 v5, s20, v5")
    for j in range(4):
        a.e(f"v_xor_b32 v6, {2*j}, v4"); a.e(f"v_lshl_add_u32 v{vx+j}, v6, 4, v5")
    a.e("s_lshl_b32 s20, s6, 8"); a.e(f"s_add_u32 s20, s20, {EB + 16384}"); a.e(f"v_lshl_add_u32 v{vm}, v3, 4, s20")
    stat_addr(a, vs1)
    lane_chunk_off(a, vo, 128)
    a.e("s_lshl_b32 s60, s56, 3"); a.e(f"s_add_u32 s60, s60, {WS_ST1}")
    a.e("s_lshl_b32 s62, s56, 11"); a.e("s_lshl_b32 s20, s57, 5"); a.e("s_add_u32 s62, s62, s20")
    a.e("s_setprio 1")
    compute_loop(a, c, r)
    mstamp(a, 3*KI + 1)
    for i in range(2):
        for j in range(4):
            a.e(f"ds_read_b64 {vr(vX+(i*4+j)*2,2)}, v{vx+j} offset:{4096*i}")
    for j in range(4):
        a.e(f"ds_read_b128 {vr(vGA+4*j,4)}, v{vm} offset:{64*j}")
        a.e(f"ds_read_b128 {vr(vG+4*j,4)}, v{vm} offset:{512+64*j}")
    ksplit_reduce(a, c, r)
    for i in range(2):
        for j in range(4):
            x = r.acc + (i*4+j)*4; s = vX + (i*4+j)*2
            for h in range(2):
                unpack(a, 2, 3, s+h)
                a.e(f"v_pk_fma_f32 {vr(x+2*h,2)}, {vr(x+2*h,2)}, {vr(vGA+4*j+2*h,2)}, v[2:3]")
    stats_atomic(a, r, 4, 2, vS, 40, vs1, 60)
    y0 = r.acc + 32 if c.ksplit else f + 64
    tp = r.T[0] if c.ksplit else f + 96
    for i in range(2):
        for j in range(4):
            for h in range(2):
                x = (i*4+j)*4 + 2*h
                a.e(f"v_pk_mul_f32 {vr(y0+x,2)}, {vr(r.acc+x,2)}, {vr(vG+4*j+2*h,2)}")
    items = [(y0 + j*4, y0 + (4+j)*4, [],
              (lambda t, j=j: f"buffer_store_dwordx4 {vr(t,4)}, v{vo}, s[52:55], s62 offen offset:{512*j}{STF}")) for j in range(4)]
    items += [(r.acc + j*4, r.acc + (4+j)*4, [],
              (lambda t, j=j: f"buffer_store_dwordx4 {vr(t,4)}, v{vo}, s[48:51], s62 offen offset:{512*j}{STF}")) for j in range(4)]
    store_pairs(a, items, tp, 8)
    def so(a):
        a.e("s_and_b32 s21, s4, 1"); a.e("s_lshl_b32 s21, s21, 3"); a.e("s_add_u32 s21, s21, s5"); a.e("s_lshr_b32 s22, s4, 1")
        flag_off(a, FL_P, 22, 21)
    fin(a, KI, so)
    return f + (64 if c.ksplit else 128)

def gelu(a, regs, t0, G=4):
    n = len(regs)//2
    for b in range(0, n, G):
        ps = [(regs[2*k], t0 + 2*(k-b)) for k in range(b, min(n, b+G))]
        for x, t in ps: a.e(f"v_pk_mul_f32 {vr(t,2)}, {vr(x,2)}, {vr(x,2)}")
        for x, t in ps: a.e(f"v_pk_fma_f32 {vr(t,2)}, {vr(t,2)}, s[64:65], {vr(t0+2*G,2)}")
        for x, t in ps: a.e(f"v_pk_mul_f32 {vr(t,2)}, {vr(t,2)}, {vr(x,2)}")
        for x, t in ps: a.e(f"v_exp_f32 v{t}, v{t}"); a.e(f"v_exp_f32 v{t+1}, v{t+1}")
        for x, t in ps: a.e(f"v_pk_add_f32 {vr(t,2)}, {vr(t,2)}, 1.0 op_sel_hi:[1,0]")
        for x, t in ps: a.e(f"v_rcp_f32 v{t}, v{t}"); a.e(f"v_rcp_f32 v{t+1}, v{t+1}")
        for x, t in ps: a.e(f"v_pk_mul_f32 {vr(x,2)}, {vr(x,2)}, {vr(t,2)}")

def bp2gb(bp):
    if bp < 4: return True, bp
    if bp < 7: return False, bp - 4
    if bp < 10: return True, bp - 3
    return False, bp - 7

def k_win(aL, a, name):
    KI = 4
    c = GemmCfg('winL', 128, 7, 1024, 3, '2x2', 'frag', 'frag', xm=8, xn=4, MT=16, NT=16)
    TB = c.lds
    gbo = lambda bp: (112 if bp2gb(bp)[0] else 0) + bp2gb(bp)[1]
    def fitem(a, t, sd):
        a.e("s_cmp_lt_u32 s3, 2"); a.e(f"s_cselect_b32 s{sd}, {gbo(2*t)}, {gbo(2*t+1)}")
        a.e("s_mul_i32 s22, s5, 7"); a.e(f"s_add_u32 s{sd}, s{sd}, s22")
    def lpre(a):
        srd(a, 40, 36, 128*1024)
        a.e("s_cmp_ge_u32 s3, 2"); a.e(f"s_cbranch_scc1 {name}_lp1")
        a.e(f"s_mul_i32 s20, s3, {3584*4}"); a.e("s_mul_i32 s21, s5, 448"); a.e("s_add_u32 s20, s20, s21"); a.e(f"s_add_u32 s20, s20, {WS_UT}")
        a.e("v_lshlrev_b32 v30, 4, v1")
        a.e(f"v_add_u32 v31, {112*64}, v30")
        for lim, d in ((16, -4*64), (28, (112-3)*64), (40, -7*64)):
            a.e(f"v_cmp_le_u32 vcc, {lim}, v1"); a.e(f"v_add_u32 v29, {d & 0xffffffff}, v30"); a.e("s_nop 0")
            a.e("v_cndmask_b32 v31, v31, v29, vcc")
        a.e("buffer_load_dwordx4 v[32:35], v31, s[40:43], s20 offen")
        a.e(f"s_branch {name}_lp2")
        a.label(f"{name}_lp1")
        a.e("s_lshl_b32 s20, s4, 1"); a.e("s_add_u32 s20, s20, s3"); a.e("s_sub_u32 s20, s20, 2"); a.e("s_lshl_b32 s20, s20, 9")
        a.e(f"s_add_u32 s20, s20, {WS_ST1}")
        a.e("v_lshlrev_b32 v30, 3, v1")
        a.e("buffer_load_dwordx2 v[32:33], v30, s[40:43], s20 offen")
        a.label(f"{name}_lp2")
        return 1
    def lpost(a):
        a.e("s_cmp_ge_u32 s3, 2"); a.e(f"s_cbranch_scc1 {name}_lq1")
        a.e("s_mul_i32 s20, s3, 896"); a.e(f"s_add_u32 s20, s20, {TB}"); a.e("v_add_u32 v30, s20, v30")
        a.e("s_bfm_b64 exec, 56, 0")
        a.e("ds_write_b128 v30, v[32:35]")
        a.e("s_mov_b64 exec, -1")
        a.e(f"s_branch {name}_lq2")
        a.label(f"{name}_lq1")
        finish_stats(a, 32, 33, 34, 1024)
        a.e("s_lshl_b32 s20, s3, 9"); a.e(f"s_add_u32 s20, s20, {TB + 2048 - 1024}"); a.e("v_add_u32 v30, s20, v30")
        a.e("ds_write_b64 v30, v[32:33]")
        a.label(f"{name}_lq2")
        a.e("s_waitcnt lgkmcnt(0)")
    def lfin(a):
        a.e("s_barrier")
        a.e("s_cmp_ge_u32 s3, 2"); a.e(f"s_cbranch_scc1 {name}_lx")
        srd(a, 44, 36, 32768, WS_ST2)
        a.e("s_lshl_b32 s20, s4, 1"); a.e("s_add_u32 s20, s20, s3"); a.e("s_lshl_b32 s20, s20, 10")
        a.e("v_lshlrev_b32 v30, 4, v1")
        a.e("s_mov_b32 s19, 0x8000")
        a.label(f"{name}_poll")
        a.e(f"buffer_load_dwordx3 v[32:34], v30, s[44:47], s20 offen {POLLF}")
        a.e("s_waitcnt vmcnt(0)")
        a.e(f"v_cmp_gt_f32 vcc, {hexf(31.5)}, v34")
        a.e("s_sub_u32 s19, s19, 1"); a.e("s_cmp_eq_u32 s19, 0")
        a.e(f"s_cbranch_scc1 {name}_pd"); a.e(f"s_cbranch_vccz {name}_pd"); a.e("s_sleep 4"); a.e(f"s_branch {name}_poll")
        a.label(f"{name}_pd")
        finish_stats(a, 32, 33, 34, 1792)
        a.e("s_lshl_b32 s20, s3, 9"); a.e(f"s_add_u32 s20, s20, {TB + 3072}"); a.e("v_lshl_add_u32 v30, v1, 3, s20")
        a.e("ds_write_b64 v30, v[32:33]")
        a.e("s_waitcnt lgkmcnt(0)")
        a.label(f"{name}_lx")
        a.e("s_barrier"); a.e("s_barrier")
    def off(a): flag_off(a, FL_P, 4, None)
    r, cc = prolog(aL, a, name, c, 36, 4*MB, WS_H2, 36, 1024*3584*2, WS_WIN, KI, postP=lpost, fitem=fitem, lfin=lfin,
                   extra=(1, lambda a: guard_issue(a, FL_O, 32)),
                   mega=dict(indep='F', mid=P0, cpoll=cpoll(name, off, 1), post_dep=lpre,
                             lastbar=lambda a: guard_check(a, a.newlabel(name + "_g"))))
    ZB = 2048*1792*2
    srd(a, 24, 36, ZB, WS_Z1); srd(a, 40, 36, ZB, WS_Z2); srd(a, 44, 36, 32768, WS_ST2)
    f = r.free
    vo, vz, vs0, vs1, vu, vst, vpl, vC = f, f+1, f+2, f+3, f+4, f+5, f+6, f+7
    lane_chunk_off(a, vo, 224)
    swap23(a, vz, 3); a.e(f"v_lshlrev_b32 v{vz}, 5, v{vz}")
    a.e("v_lshrrev_b32 v3, 5, v1"); a.e(f"v_lshl_add_u32 v{vz}, v3, 4, v{vz}")
    a.e("v_and_b32 v2, 15, v1"); a.e("v_lshrrev_b32 v3, 4, v1")
    a.e(f"v_lshlrev_b32 v{vpl}, 4, v2")
    a.e(f"v_lshl_add_u32 v{vs0}, v3, 2, v{vpl}"); a.e(f"v_xor_b32 v{vs1}, 8, v{vs0}")
    a.e("v_and_b32 v4, 1, v3"); a.e("v_xor_b32 v4, 1, v4"); a.e(f"v_cvt_f32_u32 v{vC}, v4")
    a.e("s_mul_i32 s20, s7, 448"); a.e(f"s_add_u32 s20, s20, {TB}")
    a.e(f"v_lshl_add_u32 v{vu}, v3, 4, s20")
    a.e("s_lshl_b32 s20, s6, 9"); a.e(f"s_add_u32 s20, s20, {TB+2048}")
    a.e(f"v_lshl_add_u32 v{vst}, v2, 3, s20")
    a.e("s_lshl_b32 s56, s4, 7"); a.e("s_lshl_b32 s20, s6, 6"); a.e("s_add_u32 s56, s56, s20")
    a.e("s_lshl_b32 s60, s56, 4")
    a.e("s_lshr_b32 s21, s56, 4"); a.e("s_mul_i32 s21, s21, 224"); a.e("s_mul_i32 s20, s5, 14"); a.e("s_add_u32 s21, s21, s20")
    a.e("s_lshl_b32 s68, s21, 8"); a.e(f"s_add_u32 s69, s68, {2*224*256}")
    a.e(f"s_mul_i32 s20, s5, {7*65536}"); a.e("s_lshl_b32 s22, s56, 5"); a.e("s_add_u32 s70, s20, s22")
    c1 = -2*0.7978845608028654*1.4426950408889634
    a.e(f"s_mov_b32 s64, {hexf(c1*0.044715)}"); a.e("s_mov_b32 s65, s64")
    a.e("s_setprio 1")
    compute_loop(a, c, r)
    mstamp(a, 3*KI + 1)
    t0 = r.T[0]
    vU, vTt, vST = t0 + 16, t0 + 44, t0 + 72
    for i in range(4): a.e(f"ds_read_b64 {vr(vST+2*i,2)}, v{vst} offset:{128*i}")
    for j in range(7):
        a.e(f"ds_read_b128 {vr(vU+4*j,4)}, v{vu} offset:{64*j}")
        a.e(f"ds_read_b128 {vr(vTt+4*j,4)}, v{vu} offset:{896+64*j}")
    a.e(f"v_mov_b32 v{t0+8}, {hexf(c1)}"); a.e(f"v_mov_b32 v{t0+9}, {hexf(c1)}")
    acc = lambda i, j: r.acc + (i*7 + j)*4
    def fold_gelu(j):
        for i in range(4):
            for h in range(2):
                t = t0 + 10 + 2*h
                a.e(f"v_pk_fma_f32 {vr(t,2)}, {vr(vU+4*j+2*h,2)}, {vr(vST+2*i,2)}, {vr(vTt+4*j+2*h,2)} op_sel:[0,1,0] op_sel_hi:[1,1,1]")
            for h in range(2):
                t = t0 + 10 + 2*h; x = acc(i, j) + 2*h
                a.e(f"v_pk_fma_f32 {vr(x,2)}, {vr(x,2)}, {vr(vST+2*i,2)}, {vr(t,2)} op_sel:[0,0,0] op_sel_hi:[1,0,1]")
        regs = []
        for i in range(4): regs += list(range(acc(i, j), acc(i, j)+4))
        gelu(a, regs, t0)
    vS = f + 8
    tp = f + 24
    a.e("s_waitcnt lgkmcnt(0)")
    a.e("s_cmp_eq_u32 s7, 0"); a.e(f"s_cbranch_scc0 {name}_e1")
    for fw in range(2):
        if fw: a.label(f"{name}_e1")
        nz = 4 - fw
        for j in range(nz):
            fold_gelu(j)
            for i in range(4):
                x0 = acc(i, j)
                if j == 0:
                    a.e(f"v_pk_add_f32 {vr(vS+4*i,2)}, {vr(x0,2)}, {vr(x0+2,2)}")
                    a.e(f"v_pk_mul_f32 {vr(vS+4*i+2,2)}, {vr(x0,2)}, {vr(x0,2)}")
                else:
                    a.e(f"v_pk_add_f32 {vr(vS+4*i,2)}, {vr(vS+4*i,2)}, {vr(x0,2)}")
                    a.e(f"v_pk_fma_f32 {vr(vS+4*i+2,2)}, {vr(x0,2)}, {vr(x0,2)}, {vr(vS+4*i+2,2)}")
                    a.e(f"v_pk_add_f32 {vr(vS+4*i,2)}, {vr(vS+4*i,2)}, {vr(x0+2,2)}")
                a.e(f"v_pk_fma_f32 {vr(vS+4*i+2,2)}, {vr(x0+2,2)}, {vr(x0+2,2)}, {vr(vS+4*i+2,2)}")
        for i in range(4):
            a.e(f"v_add_f32 v{vS+4*i}, v{vS+4*i}, v{vS+4*i+1}")
            a.e(f"v_add_f32 v{vS+4*i+2}, v{vS+4*i+2}, v{vS+4*i+3}")
        a.e("s_nop 0")
        for i in range(4): a.e(f"v_permlane16_swap_b32 v{vS+4*i}, v{vS+4*i+2}")
        for i in range(4): a.e(f"v_add_f32 v{vS+4*i}, v{vS+4*i}, v{vS+4*i+2}")
        a.e("s_nop 1")
        for i in (0, 2): a.e(f"v_permlane32_swap_b32 v{vS+4*i}, v{vS+4*i+4}")
        a.e("s_bfm_b64 vcc, 32, 32")
        for i in (0, 2): a.e(f"v_add_f32 v{vS+4*i}, v{vS+4*i}, v{vS+4*i+4}")
        for i in (0, 2):
            a.e(f"v_cndmask_b32 v{vS+4*i+1}, v{vS+4*i}, v{vC}, vcc")
            a.e(f"v_cndmask_b32 v{vS+4*i+2}, v{vC}, v{vS+4*i}, vcc")
        for i in (0, 2):
            a.e(f"buffer_atomic_add_f32 v{vS+4*i+1}, v{vs0}, s[44:47], s60 offen offset:{256*i}")
            a.e(f"buffer_atomic_add_f32 v{vS+4*i+2}, v{vs1}, s[44:47], s60 offen offset:{256*(i+1)}")
        for j in range(nz, 7):
            if j == PBAR: a.e("s_barrier")
            fold_gelu(j)
            lb = bp2gb(7*fw + j)[1]
            items = [(acc(2*p, j), acc(2*p+1, j), [],
                      (lambda t, p=p, lb=lb: f"buffer_store_dwordx4 {vr(t,4)}, v{vo}, s[24:27], s{68+p} offen offset:{512*lb}{STF}")) for p in range(2)]
            store_pairs(a, items, tp + 8*(j & 1), 2)
        vP = t0 + 16
        a.e("s_barrier")
        for i in range(4): a.e(f"ds_read_b64 {vr(vP+4*i,2)}, v{vst} offset:{1024 + 128*i}")
        a.e("s_waitcnt lgkmcnt(0)"); a.e("s_barrier")
        items = []
        for j in range(nz):
            lb = bp2gb(7*fw + j)[1]
            for i in range(4):
                for h in range(2):
                    x = acc(i, j) + 2*h
                    a.e(f"v_pk_fma_f32 {vr(x,2)}, {vr(x,2)}, {vr(vP+4*i,2)}, {vr(vP+4*i,2)} op_sel:[0,0,1] op_sel_hi:[1,0,1]")
            for p in range(2):
                pre = [f"s_add_u32 s71, s70, {lb*65536}"] if p == 0 else []
                items.append((acc(2*p, j), acc(2*p+1, j), pre,
                              (lambda t, p=p: f"buffer_store_dwordx4 {vr(t,4)}, v{vz}, s[40:43], s71 offen offset:{1024*p}{STF}")))
        store_pairs(a, items, t0 + 32, 8)
        if fw == 0: a.e(f"s_branch {name}_fin")
    a.label(f"{name}_fin")
    def so(a):
        a.e("s_mov_b32 s21, s4")
        flag_off(a, FL_W, 5, 21)
    fin(a, KI, so)
    return f + 40

def k_spat(aL, a, name):
    KI = 5
    c = GemmCfg('spat', 128, 7, 2048, 5, '4x1' if 's' in NOKS else 'ksplitT', 'nat', 'trp', ldt=4096, xm=4, xn=8, MT=16, NT=16)
    ZB = 2048*1792*2
    EB = ((c.nk - c.NS) % c.NS)*c.stage
    def lpre(a):
        srd(a, 24, 36, ZB, WS_Z1); srd(a, 44, P_BSP, 4096)
        a.e("s_lshl_b32 s20, s4, 3"); a.e("s_lshl_b32 s21, s3, 1"); a.e("s_add_u32 s20, s20, s21"); a.e(f"s_mul_i32 s20, s20, {224*256}")
        a.e("s_mul_i32 s21, s5, 3584"); a.e("s_add_u32 s20, s20, s21")
        a.e("v_lshl_add_u32 v4, v1, 4, s20")
        for t in range(7):
            if t < 3: a.e(f"v_add_u32 v{40+t}, {1024*t}, v4")
            elif t > 3: a.e(f"v_add_u32 v{40+t}, {1024*t + 224*256 - 3584}, v4")
        a.e("v_lshrrev_b32 v5, 5, v1"); a.e(f"v_mul_u32_u24 v5, {224*256 - 3584}, v5"); a.e("v_add3_u32 v43, v4, v5, 0")
        a.e("v_add_u32 v43, 3072, v43")
        a.e("s_lshl_b32 s21, s4, 8"); a.e("v_lshl_add_u32 v47, v1, 4, s21")
    def lextra(a):
        a.e("s_mul_i32 s20, s3, 7168")
        for t in range(7):
            a.e(f"s_add_u32 m0, s20, {EB + 1024*t}"); a.e("s_nop 0")
            a.e(f"buffer_load_dwordx4 v{40+t}, s[24:27], 0 offen lds")
        a.e(f"s_mov_b32 m0, {EB + 28672}"); a.e("s_nop 0")
        a.e("buffer_load_dwordx4 v47, s[44:47], 0 offen lds")
        guard_issue(a, FL_W, 16)
    def tsetup(a):
        a.e("s_lshl_b32 s20, s4, 3"); a.e("s_and_b32 s21, s5, 7"); a.e("s_add_u32 s20, s20, s21"); a.e("s_lshl_b32 s20, s20, 2")
        a.e("s_add_u32 s20, s20, s3"); a.e("s_lshl_b32 s38, s20, 14"); a.e(f"s_add_u32 s38, s38, {c.NS*128}")
        a.e("s_and_b32 s21, s4, 3"); a.e("s_lshl_b32 s21, s21, 2"); a.e("s_add_u32 s21, s21, s3"); a.e("s_lshl_b32 s21, s21, 7")
        a.e(f"s_mul_i32 s39, s5, {7*65536}"); a.e("s_add_u32 s39, s39, s21"); a.e(f"s_add_u32 s39, s39, {c.NS*2048}")
    def off(a): flag_off(a, FL_W, 5, None)
    def lfin(a):
        if c.ksplit: a.e("s_barrier")
        a.e("s_barrier")
    r, cc = prolog(aL, a, name, c, P_WSP, 8*MB, 0, 36, ZB, WS_Z2, KI, pre=lpre, extra=(9, lextra), lfin=lfin,
                   mega=dict(indep='T', mid=P0, cpoll=cpoll(name, off, 1), lastbar=lambda a: guard_check(a, a.newlabel(name + '_g')), touch=dict(setup=tsetup, D=TD, t=[4096*i for i in range(4)], f=[65536*i for i in range(7)]) if 's' in TOUCH else None))
    srd(a, 40, 36, ZB, WS_U)
    f = r.free
    vZ, vB, vo, vz, vb = f, f+28, f+30, f+31, f+32
    a.e("s_lshl_b32 s56, s4, 7"); a.e("s_lshl_b32 s20, s6, 6"); a.e("s_add_u32 s56, s56, s20")
    a.e("s_lshl_b32 s20, s7, 5"); a.e("s_add_u32 s56, s56, s20")
    a.e("s_lshr_b32 s57, s56, 4"); a.e("s_mul_i32 s57, s57, 224"); a.e("s_mul_i32 s20, s5, 14")
    a.e("s_add_u32 s57, s57, s20"); a.e("s_lshl_b32 s57, s57, 8"); a.e(f"s_add_u32 s58, s57, {224*256}")
    a.e("v_and_b32 v2, 15, v1"); a.e(f"v_lshlrev_b32 v{vz}, 4, v2")
    a.e("v_bfe_u32 v3, v1, 4, 1"); a.e(f"v_lshl_add_u32 v{vz}, v3, 3, v{vz}")
    a.e("v_lshrrev_b32 v3, 5, v1"); a.e(f"v_lshl_add_u32 v{vz}, v3, 8, v{vz}")
    a.e("s_lshl_b32 s20, s6, 2"); a.e("s_lshl_b32 s21, s7, 1"); a.e("s_add_u32 s20, s20, s21")
    a.e("s_mul_i32 s21, s20, 3584"); a.e(f"s_add_u32 s21, s21, {EB}"); a.e(f"v_add_u32 v{vz}, s21, v{vz}")
    a.e("s_lshl_b32 s20, s20, 5"); a.e(f"s_add_u32 s20, s20, {EB + 28672}"); a.e(f"v_lshl_add_u32 v{vb}, v2, 1, s20")
    lane_chunk_off(a, vo, 224)
    a.e("s_setprio 1")
    compute_loop(a, c, r)
    mstamp(a, 3*KI + 1)
    for i in range(2):
        for j in range(7):
            a.e(f"ds_read_b64 {vr(vZ+(i*7+j)*2,2)}, v{vz} offset:{3584*i + 512*j}")
    a.e("s_waitcnt lgkmcnt(8)")
    for i in range(2): a.e(f"ds_read_u16 v{vB+i}, v{vb} offset:{32*i}")
    ksplit_reduce(a, c, r)
    for i in range(2): a.e(f"v_lshlrev_b32 v{vB+i}, 16, v{vB+i}")
    for i in range(2):
        for j in range(7):
            x = r.acc + (i*7+j)*4; s = vZ + (i*7+j)*2
            for h in range(2):
                unpack(a, 2, 3, s+h)
                a.e(f"v_pk_add_f32 {vr(x+2*h,2)}, {vr(x+2*h,2)}, {vr(vB,2)} op_sel:[0,{i}] op_sel_hi:[1,{i}]")
                a.e(f"v_pk_mul_f32 {vr(x+2*h,2)}, {vr(x+2*h,2)}, v[2:3]")
    items = [(r.acc + j*4, r.acc + (7+j)*4, [],
              (lambda t, j=j: f"buffer_store_dwordx4 {vr(t,4)}, v{vo}, s[40:43], s57 offen offset:{512*j}{STF}")) for j in range(7)]
    store_pairs(a, items, r.T[0], 8)
    def so(a):
        a.e("s_mov_b32 s21, s5")
        flag_off(a, FL_U, 4, 21)
    fin(a, KI, so)
    return f + 33

def k_wout(aL, a, name):
    KI = 6
    c = GemmCfg('woutL', 64, 4, 1792, 6, '2x2s' if 'o' in NOKS else 'ksplitF', 'frag', 'frag', xm=8, xn=4, MT=32, NT=8)
    ZB = 2048*1792*2
    EB = ((c.nk - c.NS) % c.NS)*c.stage
    def lpre(a):
        srd(a, 40, 36, 24576); srd(a, 48, 36, 4*MB, WS_X1)
        a.e("s_lshl_b32 s20, s4, 2"); a.e("s_add_u32 s20, s20, s3"); a.e("s_lshl_b32 s20, s20, 15")
        a.e("s_lshl_b32 s21, s5, 12"); a.e("s_add_u32 s20, s20, s21"); a.e("v_lshl_add_u32 v40, v1, 4, s20")
        a.e("s_lshl_b32 s21, s5, 9"); a.e(f"s_add_u32 s21, s21, {5*4096}"); a.e("v_lshl_add_u32 v44, v1, 4, s21")
    def lextra(a):
        a.e("s_lshl_b32 s20, s3, 12"); a.e(f"s_add_u32 m0, s20, {EB}"); a.e("s_nop 0")
        for t in range(4):
            a.e(f"buffer_load_dwordx4 v40, s[48:51], 0 offen offset:{1024*t} lds")
        a.e("buffer_load_dwordx4 v[48:51], v44, s[40:43], 0 offen")
    def lastbar(a):
        for k in range(4): rnd_bf16(a, 48+k, 48+k)
        a.e(f"v_lshlrev_b32 v2, 4, v1"); a.e(f"v_add_u32 v2, {EB + 16384}, v2")
        a.e("ds_write_b128 v2, v[48:51]"); a.e("s_waitcnt lgkmcnt(0)")
    def off(a): a.e("s_lshr_b32 s20, s4, 1"); flag_off(a, FL_U, 20, None)
    r, cc = prolog(aL, a, name, c, 36, ZB, WS_U, 36, 1792*2048, WS_WOUT, KI, pre=lpre, extra=(5, lextra),
                   mega=dict(indep='F', mid=P0, cpoll=cpoll(name, off, 1), lastbar=lastbar, touch=touch_ws(c, WS_U, WS_WOUT) if 'o' in TOUCH else None))
    srd(a, 24, P_OUT, 4*MB)
    f = r.free
    vX, vG, vo, vx, vm = f, f+16, f+32, f+33, f+34
    a.e("s_lshl_b32 s56, s4, 6"); a.e("s_lshl_b32 s20, s7, 5"); a.e("s_add_u32 s56, s56, s20")
    a.e("s_lshl_b32 s57, s5, 7"); a.e("s_lshl_b32 s20, s6, 6"); a.e("s_add_u32 s57, s57, s20")
    a.e("s_lshl_b32 s62, s56, 11"); a.e("s_lshl_b32 s20, s57, 5"); a.e("s_add_u32 s60, s62, s20"); a.e("s_add_u32 s61, s60, 32768")
    a.e("s_lshl_b32 s20, s57, 1"); a.e("s_add_u32 s62, s62, s20"); a.e("s_add_u32 s63, s62, 32768")
    a.e("v_and_b32 v2, 15, v1"); a.e(f"v_lshlrev_b32 v{vx}, 4, v2")
    a.e("v_bfe_u32 v3, v1, 4, 1"); a.e(f"v_lshl_add_u32 v{vx}, v3, 3, v{vx}")
    a.e(f"v_lshlrev_b32 v{vo}, 11, v2"); a.e(f"v_lshl_add_u32 v{vo}, v3, 5, v{vo}")
    a.e("v_lshrrev_b32 v3, 5, v1"); a.e(f"v_lshl_add_u32 v{vx}, v3, 8, v{vx}"); a.e(f"v_lshl_add_u32 v{vo}, v3, 4, v{vo}")
    a.e("s_lshl_b32 s20, s7, 13"); a.e("s_lshl_b32 s21, s6, 11"); a.e("s_add_u32 s20, s20, s21"); a.e(f"s_add_u32 s20, s20, {EB}")
    a.e(f"v_add_u32 v{vx}, s20, v{vx}")
    a.e("v_lshrrev_b32 v3, 4, v1"); a.e("s_lshl_b32 s20, s6, 8"); a.e(f"s_add_u32 s20, s20, {EB + 16384}"); a.e(f"v_lshl_add_u32 v{vm}, v3, 4, s20")
    a.e("s_setprio 1")
    compute_loop(a, c, r)
    mstamp(a, 3*KI + 1)
    for i in range(2):
        for j in range(4):
            a.e(f"ds_read_b64 {vr(vX+(i*4+j)*2,2)}, v{vx} offset:{4096*i + 512*j}")
    for j in range(4):
        a.e(f"ds_read_b128 {vr(vG+4*j,4)}, v{vm} offset:{64*j}")
    ksplit_reduce(a, c, r)
    for i in range(2):
        for j in range(4):
            x = r.acc + (i*4+j)*4; s = vX + (i*4+j)*2
            for h in range(2):
                unpack(a, 2, 3, s+h)
                a.e(f"v_pk_fma_f32 {vr(x+2*h,2)}, {vr(x+2*h,2)}, {vr(vG+4*j+2*h,2)}, v[2:3]")
    items = []
    for i in range(2):
        for jp in range(2):
            items.append((r.acc + (i*4+2*jp)*4, r.acc + (i*4+2*jp+1)*4, [],
                          (lambda t, i=i, jp=jp: f"buffer_store_dwordx4 {vr(t,4)}, v{vo}, s[24:27], s{62+i} offen offset:{64*jp}")))
    store_pairs(a, items, r.T[0])
    if STAMPS: a.e("s_waitcnt vmcnt(0)")
    fin(a, KI, None)
    return f + 35
```

```python
from common import *
import k_gemm, k_attn

LNT = 122880

def ln1(a, n):
    a.e("v_and_b32 v1, 63, v0")
    a.e("s_and_b32 s4, s2, 15"); a.e("s_lshr_b32 s5, s2, 4")
    a.e("s_lshl_b32 s6, s5, 2"); a.e("s_add_u32 s6, s6, s3"); a.e("s_lshl_b32 s6, s6, 1")
    a.e("v_and_b32 v2, 15, v1"); a.e("v_lshrrev_b32 v3, 4, v1")
    a.e("v_lshlrev_b32 v4, 11, v2"); a.e("v_lshl_add_u32 v4, v3, 4, v4")
    a.e("s_lshl_b32 s20, s6, 15"); a.e("s_lshl_b32 s21, s4, 7"); a.e("s_add_u32 s20, s20, s21"); a.e("s_add_u32 s21, s20, 32768")
    a.e("v_lshlrev_b32 v5, 3, v2"); a.e("s_lshl_b32 s22, s6, 7"); a.e(f"s_add_u32 s22, s22, {WS_ST0}")
    a.e("s_lshl_b32 s7, s4, 6"); a.e("s_lshl_b32 s23, s3, 10"); a.e("s_add_u32 s7, s7, s23")
    a.e("s_lshl_b32 s24, s7, 2")
    a.e("v_lshlrev_b32 v6, 2, v1")
    srd(a, 8, P_X, 4*MB); srd(a, 12, 36, 1*MB)
    for b in range(2):
        a.e(f"buffer_load_dwordx4 {vr(8+8*b,4)}, v4, s[8:11], s{20+b} offen")
        a.e(f"buffer_load_dwordx4 {vr(12+8*b,4)}, v4, s[8:11], s{20+b} offen offset:64")
    a.e("s_cmp_ge_u32 s3, 3"); a.e(f"s_cbranch_scc1 {n}_np")
    a.e("s_lshr_b32 s20, s4, 1"); a.e("s_lshl_b32 s21, s3, 3"); a.e("s_add_u32 s20, s20, s21")
    a.e("s_cmp_eq_u32 s3, 2"); a.e("s_cselect_b32 s20, s5, s20"); flag_off(a, FL_K, 20, None)
    poll(a, f"{n}_dp", 20, 16)
    a.label(f"{n}_np")
    a.e("s_barrier")
    mstamp(a, 0)
    srd(a, 16, 36, 4*MB, WS_H)
    a.e("s_cmp_ge_u32 s3, 2"); a.e(f"s_cbranch_scc1 {n}_nop")
    a.e(f"s_add_u32 s25, s24, {WS_MP}")
    for p in range(16):
        a.e(f"buffer_load_dword v{32+p}, v6, s[12:15], s25 offen sc1")
        if p < 15: a.e("s_add_u32 s25, s25, 8192")
    a.label(f"{n}_nop")
    for b in range(2):
        a.e(f"buffer_load_dwordx2 {vr(48+2*b,2)}, v5, s[12:15], s22 offen offset:{128*b} sc1")
    a.e("s_cmp_ge_u32 s3, 2"); a.e(f"s_cbranch_scc1 {n}_bar")
    a.e("s_waitcnt vmcnt(2)")
    for p in range(1, 16): a.e(f"v_add_f32 v32, v32, v{32+p}")
    rnd_bf16(a, 32, 32)
    a.e("s_cmp_eq_u32 s3, 0"); a.e(f"s_cbranch_scc1 {n}_st")
    a.e("v_add_f32 v32, 1.0, v32"); rnd_bf16(a, 32, 32)
    a.label(f"{n}_st")
    a.e("s_lshl_b32 s25, s3, 8"); a.e(f"s_add_u32 s25, s25, {LNT}"); a.e("v_add_u32 v7, s25, v6")
    a.e("ds_write_b32 v7, v32")
    a.label(f"{n}_bar")
    a.e(f"v_lshlrev_b32 v7, 5, v3"); a.e(f"v_add_u32 v7, {LNT}, v7")
    a.e("s_waitcnt lgkmcnt(0)"); a.e("s_barrier")
    for i in range(2):
        for q in range(2):
            a.e(f"ds_read_b128 {vr(32+8*i+4*q,4)}, v7 offset:{128*i+16*q}")
            a.e(f"ds_read_b128 {vr(52+8*i+4*q,4)}, v7 offset:{256+128*i+16*q}")
    a.e("v_lshlrev_b32 v5, 4, v1")
    a.e("s_lshl_b32 s20, s6, 15"); a.e("s_lshl_b32 s21, s4, 11"); a.e("s_add_u32 s20, s20, s21"); a.e("s_add_u32 s21, s20, 32768")
    a.e("s_waitcnt vmcnt(0) lgkmcnt(0)")
    for b in range(2):
        u = 72
        for i in range(8): unpack(a, u+2*i, u+1+2*i, 8+8*b+i)
        for i in range(0, 16, 2):
            a.e(f"v_pk_fma_f32 {vr(u+i,2)}, {vr(u+i,2)}, {vr(48+2*b,2)}, {vr(48+2*b,2)} op_sel:[0,0,1] op_sel_hi:[1,0,1]")
        for i in range(0, 16, 2):
            a.e(f"v_pk_fma_f32 {vr(u+i,2)}, {vr(u+i,2)}, {vr(52+i,2)}, {vr(32+i,2)}")
        for i in range(8): a.e(f"v_cvt_pk_bf16_f32 v{88+8*b+i}, v{u+2*i}, v{u+1+2*i}")
        a.e(f"buffer_store_dwordx4 {vr(88+8*b,4)}, v5, s[16:19], s{20+b} offen sc1")
        a.e(f"buffer_store_dwordx4 {vr(92+8*b,4)}, v5, s[16:19], s{20+b} offen offset:1024 sc1")
    def so(a): a.e("s_mov_b32 s21, s4"); flag_off(a, FL_H, 5, 21)
    wg_signal(a, f"{n}_sig", so)
    mstamp(a, 2)

PH0 = 124928

def phase0(a, n):
    a.e("v_and_b32 v1, 63, v0")
    a.e("s_and_b32 s4, s2, 15"); a.e("s_lshr_b32 s5, s2, 4")
    a.e("s_lshl_b32 s6, s5, 3"); a.e("s_add_u32 s6, s6, s100")
    a.e("s_lshl_b32 s22, s4, 7"); a.e("s_add_u32 s22, s22, s6")
    a.e("s_lshl_b32 s6, s6, 3")
    a.e("s_mul_i32 s20, s6, 12288"); a.e("s_lshl_b32 s21, s4, 8"); a.e("s_add_u32 s20, s20, s21")
    a.e("v_lshrrev_b32 v3, 5, v1"); a.e("v_mul_u32_u24 v4, 12288, v3"); a.e("v_and_b32 v5, 31, v1"); a.e("v_lshl_add_u32 v4, v5, 3, v4")
    a.e("v_lshlrev_b32 v5, 1, v3"); a.e("s_lshl_b32 s7, s6, 1")
    a.e("v_lshlrev_b32 v2, 4, v1")
    a.e("s_lshl_b32 s26, s22, 11")
    a.e("s_waitcnt lgkmcnt(0)")
    srd(a, 12, 30, 1024*6144*2)
    for i in range(4):
        a.e(f"buffer_load_dwordx2 {vr(16+2*i,2)}, v4, s[12:15], s20 offen{MODF}")
        if i < 3: a.e("s_add_u32 s20, s20, 24576")
    srd(a, 40, P_X, 4*MB); srd(a, 8, 28, 2048)
    a.e("buffer_load_dwordx4 v[8:11], v2, s[40:43], s26 offen")
    a.e("buffer_load_dwordx4 v[12:15], v2, s[40:43], s26 offen offset:1024")
    for i in range(4): a.e(f"buffer_load_ushort v{24+i}, v5, s[8:11], s7 offen offset:{4*i}")
    srd(a, 44, 34, 256); a.e("v_mov_b32 v48, 0")
    a.e("s_or_b32 s20, s2, s100"); a.e(f"s_cbranch_scc1 {n}_nn")
    a.e("s_memrealtime s[20:21]"); a.e("s_waitcnt lgkmcnt(0)"); a.e("s_or_b32 s20, s20, 0x80000000"); a.e("v_mov_b32 v52, s20")
    a.e("s_mov_b64 exec, 1"); a.e("buffer_store_dword v52, v48, s[44:47], 0 offen sc1"); a.e("s_mov_b64 exec, -1")
    a.e("s_waitcnt vmcnt(0)")
    a.label(f"{n}_nn")
    srd(a, 16, 36, 1*MB); srd(a, 96, 36, 128*FSTR, WS_FLG)
    a.e("s_lshl_b32 s25, s2, 3"); a.e("s_add_u32 s25, s25, s100")
    a.e("v_lshlrev_b32 v49, 2, v1")
    a.e("s_lshl_b32 s23, s25, 6"); a.e(f"s_add_u32 s24, s23, {WS_ST1}"); a.e(f"s_sub_u32 s23, s23, {1280*64 - 8192}")
    a.e("s_cmp_lt_u32 s25, 1280"); a.e("s_cselect_b32 s23, s24, s23")
    a.e("s_cmp_lt_u32 s25, 1536"); a.e(f"s_cselect_b32 s23, s23, {1*MB}")
    a.e("s_bfm_b64 exec, 16, 0")
    a.e("buffer_store_dword v48, v49, s[16:19], s23 offen sc1")
    a.e("s_mov_b64 exec, -1")
    srd(a, 48, P_WQKV, 6*MB)
    a.e("v_lshlrev_b32 v53, 7, v1"); a.e("s_lshl_b32 s23, s2, 2"); a.e("s_add_u32 s23, s23, s100"); a.e("s_sub_u32 s23, s23, 4")
    a.e("s_mul_i32 s23, s23, 6144")
    a.e("s_waitcnt vmcnt(1)")
    a.e("buffer_load_dword v52, v48, s[44:47], 0 offen sc1")
    a.e("s_cmp_ge_u32 s100, 4"); a.e(f"s_cbranch_scc0 {n}_nt")
    a.e("s_bfm_b64 exec, 48, 0"); a.e("buffer_load_dword v54, v48, s[44:47], 0 offen" if TQF == 'off' else f"buffer_load_dword v54, v53, s[48:51], s23 offen{TQF}"); a.e("s_mov_b64 exec, -1")
    a.label(f"{n}_nt")
    for i in range(4):
        r = 24+i
        a.e(f"v_lshlrev_b32 v{r}, 16, v{r}")
        a.e(f"v_mul_f32 v50, {hexf(-1.4426950408889634)}, v{r}")
        a.e("v_exp_f32 v50, v50"); a.e("s_nop 0")
        a.e("v_add_f32 v50, 1.0, v50"); a.e("v_rcp_f32 v50, v50"); a.e("s_nop 0")
        a.e(f"v_mul_f32 v{r}, v{r}, v50")
        rnd_bf16(a, r, r)
    for k in range(4): a.e(f"v_mov_b32 v{56+k}, 0")
    for i in range(4):
        for q in range(2):
            unpack(a, 50, 51, 16+2*i+q)
            a.e(f"v_fmac_f32 v{56+2*q}, v{24+i}, v50")
            a.e(f"v_fmac_f32 v{57+2*q}, v{24+i}, v51")
    a.e("s_lshl_b32 s21, s100, 10"); a.e(f"s_add_u32 s21, s21, {PH0}"); a.e("v_add_u32 v4, s21, v2")
    a.e("ds_write_b128 v4, v[56:59]")
    for i in range(8): unpack(a, 16+2*i, 17+2*i, 8+i)
    a.e("v_add_f32 v4, v16, v17")
    for i in range(2, 16): a.e(f"v_add_f32 v4, v4, v{16+i}")
    row16_sum(a, [4]); a.e("s_nop 0"); xrow_sum(a, [4], [5])
    a.e(f"v_mul_f32 v4, {hexf(1/1024)}, v4")
    for i in range(16): a.e(f"v_sub_f32 v{16+i}, v{16+i}, v4")
    a.e("v_mul_f32 v8, v16, v16")
    for i in range(1, 16): a.e(f"v_fmac_f32 v8, v{16+i}, v{16+i}")
    row16_sum(a, [8]); a.e("s_nop 0"); xrow_sum(a, [8], [5])
    a.e(f"v_mov_b32 v5, {hexf(1e-5)}")
    a.e(f"v_fmac_f32 v5, {hexf(1/1024)}, v8")
    a.e("v_rsq_f32 v8, v5"); a.e("s_nop 0")
    a.e("v_mul_f32_e64 v9, -v4, v8")
    a.e(f"s_lshl_b32 s21, s100, 3"); a.e(f"s_add_u32 s21, s21, {PH0 + 8192}"); a.e("v_mov_b32 v10, s21")
    a.e("ds_write_b64 v10, v[8:9]")
    a.e("s_waitcnt lgkmcnt(0)"); a.e("s_barrier")
    a.e("s_cmp_ge_u32 s100, 3"); a.e(f"s_cbranch_scc1 {n}_f2")
    a.e("s_cmp_eq_u32 s100, 2"); a.e(f"s_cbranch_scc1 {n}_f1")
    a.e("v_lshlrev_b32 v6, 2, v0"); a.e(f"v_add_u32 v7, {PH0}, v6")
    for w in range(16): a.e(f"ds_read_b32 v{8+w}, v7 offset:{512*w}")
    a.e("s_lshl_b32 s21, s5, 13"); a.e("s_lshl_b32 s20, s4, 9"); a.e("s_add_u32 s21, s21, s20"); a.e(f"s_add_u32 s21, s21, {WS_MP}")
    a.e("s_waitcnt lgkmcnt(0)")
    for w in range(1, 16): a.e(f"v_add_f32 v8, v8, v{8+w}")
    a.e("buffer_store_dword v8, v6, s[16:19], s21 offen sc1")
    a.e(f"s_branch {n}_f2")
    a.label(f"{n}_f1")
    a.e(f"v_add_u32 v7, {PH0 + 8192}, v49"); a.e("ds_read_b32 v8, v7")
    a.e("s_sub_u32 s23, s22, 2"); a.e("s_lshl_b32 s23, s23, 3"); a.e(f"s_add_u32 s23, s23, {WS_ST0}")
    a.e("s_bfm_b64 exec, 16, 0"); a.e("s_waitcnt lgkmcnt(0)")
    a.e("buffer_store_dword v8, v49, s[16:19], s23 offen sc1"); a.e("s_mov_b64 exec, -1")
    a.label(f"{n}_f2")
    a.e("s_mov_b32 s19, 0x8000")
    a.e("s_cmp_ge_u32 s100, 4"); a.e(f"s_cbranch_scc0 {n}_nw")
    a.e("s_waitcnt vmcnt(1)"); a.e(f"s_branch {n}_nc")
    a.label(f"{n}_nl")
    a.e("buffer_load_dword v52, v48, s[44:47], 0 offen sc1")
    a.label(f"{n}_nw")
    a.e("s_waitcnt vmcnt(0)")
    a.label(f"{n}_nc")
    a.e("v_readfirstlane_b32 s101, v52"); a.e("s_sub_u32 s19, s19, 1"); a.e("s_cmp_eq_u32 s19, 0"); a.e(f"s_cbranch_scc1 {n}_nd")
    a.e("s_cmp_eq_u32 s101, 0"); a.e(f"s_cbranch_scc1 {n}_nl")
    a.label(f"{n}_nd")
    a.e("s_barrier")
    a.e("s_cmp_eq_u32 s100, 0"); a.e(f"s_cbranch_scc0 {n}_ns")
    a.e("s_mov_b32 s21, s5"); flag_off(a, FL_K, 4, 21); flag_set(a, 20)
    a.label(f"{n}_ns")

def k_mega(name, force_fallback=False):
    a = Asm(); aL = Asm(); aC = Asm()
    kernel_header(a, name)
    a.e("s_cmp_ge_u32 s2, 256"); a.e(f"s_cbranch_scc0 {name}_go"); a.e("s_endpgm")
    a.label(f"{name}_go")
    a.e("s_load_dwordx16 s[76:91], s[0:1], 0")
    a.e(f"s_load_dwordx4 s[28:31], s[0:1], {IN_C}")
    a.e(f"s_load_dwordx4 s[32:35], s[0:1], {D_OUT}")
    a.e(f"s_load_dwordx2 s[36:37], s[0:1], {D_WS}")
    wave_id(a, 100)
    if STAMPS: a.e("v_mov_b32 v255, 0")
    mstamp(a, 21)
    phase0(a, name + "_k")
    a.e("s_mov_b32 s92, s32"); a.e("s_mov_b32 s93, s33")
    mstamp(a, 22)
    a.e("s_and_b32 s3, s100, 3")
    a.e("s_cmp_ge_u32 s100, 4"); a.e(f"s_cbranch_scc0 {name}_comp")
    ln1(aC, name + "_ln")
    vg = [104]
    vg.append(k_gemm.k_qkv(aL, aC, name + "_q"))
    vg.append(k_attn.k_attn(aL, aC, name + "_a", force_fallback))
    vg.append(k_gemm.k_proj(aL, aC, name + "_p"))
    vg.append(k_gemm.k_win(aL, aC, name + "_w"))
    vg.append(k_gemm.k_spat(aL, aC, name + "_s"))
    vg.append(k_gemm.k_wout(aL, aC, name + "_o"))
    aL.e("s_endpgm")
    if STAMPS:
        srd(aC, 8, 36, 1 << 19, WS_STAMP + 65536)
        aC.e("s_getreg_b32 s20, hwreg(HW_REG_XCC_ID)"); aC.e("v_writelane_b32 v255, s20, 31")
        aC.e("s_lshl_b32 s20, s2, 2"); aC.e("s_add_u32 s20, s20, s3"); aC.e("s_lshl_b32 s20, s20, 7")
        aC.e("v_and_b32 v2, 63, v0"); aC.e("v_lshlrev_b32 v2, 2, v2"); aC.e("s_bfm_b64 exec, 32, 0")
        aC.e("buffer_store_dword v255, v2, s[8:11], s20 offen")
    if STAMPS and os.environ.get('DBG'):
        aC.e(f"s_cmp_eq_u32 s2, {os.environ['DBG']}"); aC.e(f"s_cbranch_scc0 {name}_nd"); aC.e("s_cmp_eq_u32 s3, 0"); aC.e(f"s_cbranch_scc0 {name}_nd")
        aC.e(f"s_load_dwordx2 s[20:21], s[0:1], {D_DBG}"); aC.e("s_waitcnt lgkmcnt(0)")
        aC.e(f"s_sub_u32 s20, s20, {os.environ.get('DBGOFF', '0')}"); aC.e("s_subb_u32 s21, s21, 0")
        srd(aC, 8, 20, 64)
        aC.e("v_readlane_b32 s22, v255, 0")
        idx = [2, 3, 4, 5, 6, 7, 8, 9, 11, 12, 13, 14, 15, 17, 18, 20]
        aC.e("s_mov_b64 exec, -1")
        for i, k in enumerate(idx):
            aC.e(f"v_readlane_b32 s23, v255, {k}"); aC.e("s_nop 3"); aC.e("s_sub_u32 s23, s23, s22"); aC.e(f"v_writelane_b32 v254, s23, {i}")
        aC.e("s_bfm_b64 exec, 16, 0")
        aC.e("buffer_store_dword v254, v2, s[8:11], 0 offen")
        aC.label(f"{name}_nd")
    aC.e("s_endpgm")
    print('phase vgprs', vg)
    assert max(vg) <= (255 if STAMPS else 256)
    return a.text() + aL.text() + f"{name}_comp:\n" + aC.text(), 256, 163840
```

```python
from asmlib import *
A_X, A_WQKV, A_WO, B_X, B_WIN, B_WSP, B_BSP, B_WOUT, IN_C, W_MOD, D_OUT, D_DBG, D_WS = [8*i for i in range(13)]
MB = 1 << 20
WS_MOD   = 0
WS_ST1   = 64*1024
WS_UT    = 80*1024
WS_ST2   = 112*1024
WS_FLG   = 68*MB
FSTR = 4352
WS_ST0   = 224*1024
WS_MP    = 256*1024
WS_STAMP = 1*MB
import os
REUSE = os.environ.get('REUSE', '1') == '1'
WS_H     = 2*MB
WS_Q     = 6*MB
WS_KV    = 10*MB
WS_O     = WS_Q if REUSE else 18*MB
WS_H2    = WS_H if REUSE else 22*MB
WS_X1    = 26*MB
WS_Z1    = 44*MB
WS_Z2    = WS_KV if REUSE else 52*MB
WS_U     = WS_H if REUSE else 60*MB
WS_WO    = 30*MB
WS_WIN   = 32*MB
WS_WOUT  = 40*MB
SENT = 0xffffffff
QSCALE = 0.17677669529663687 * 1.4426950408889634
import struct
def f2u(x): return struct.unpack('<I', struct.pack('<f', x))[0]
def hexf(x): return hex(f2u(x))

STAMPS = False
def stamp(a, slot):
    if STAMPS: a.e(f"s_memtime s[{80+2*slot}:{81+2*slot}]")
def stamp_start(a):
    if STAMPS:
        stamp(a, 0); a.e("s_memrealtime s[92:93]"); a.e("s_getreg_b32 s94, hwreg(HW_REG_XCC_ID)")
        for i in (1,2,3): a.e(f"s_mov_b32 s{80+2*i}, 0")
def stamp_end(a, kidx, wsreg, wave_s, nw=8):
    if not STAMPS: return
    stamp(a, 4); a.e("s_memrealtime s[90:91]"); a.e("s_waitcnt lgkmcnt(0)")
    a.e("s_mov_b64 exec, -1")
    srd(a, 76, wsreg, 65536, WS_STAMP + kidx*65536)
    a.e("s_lshl_b32 s75, s2, 3"); a.e(f"s_add_u32 s75, s75, s{wave_s}"); a.e("s_lshl_b32 s75, s75, 5")
    for i in range(8): a.e(f"v_mov_b32 v{2+i}, s{80+2*i}")
    a.e("v_mov_b32 v10, s75")
    a.e("v_and_b32 v11, 63, v0"); a.e("v_cmp_eq_u32 vcc, 0, v11"); a.e("s_and_saveexec_b64 s[74:75], vcc")
    a.e("buffer_store_dwordx4 v[2:5], v10, s[76:79], 0 offen")
    a.e("buffer_store_dwordx4 v[6:9], v10, s[76:79], 0 offen offset:16")

def wave_id(a, sdst, vtmp=1):
    a.e(f"v_lshrrev_b32 v{vtmp}, 6, v0"); a.e("s_nop 0"); a.e(f"v_readfirstlane_b32 s{sdst}, v{vtmp}")

def xrow_sum(a, regs, tmps):
    for op in ("v_permlane16_swap_b32", "v_permlane32_swap_b32"):
        for r, t in zip(regs, tmps): a.e(f"v_mov_b32 v{t}, v{r}")
        if len(regs) < 3: a.e("s_nop 1")
        for r, t in zip(regs, tmps): a.e(f"{op} v{r}, v{t}")
        a.e("s_nop 0")
        for r, t in zip(regs, tmps): a.e(f"v_add_f32 v{r}, v{r}, v{t}")

def row16_sum(a, regs):
    for m in ("quad_perm:[1,0,3,2]", "quad_perm:[2,3,0,1]", "row_half_mirror", "row_mirror"):
        a.e("s_nop 1")
        for r in regs: a.e(f"v_add_f32_dpp v{r}, v{r}, v{r} {m} row_mask:0xf bank_mask:0xf")

def rnd_bf16(a, dst, src):
    a.e(f"v_cvt_pk_bf16_f32 v{dst}, v{src}, v{src}")
    a.e(f"v_and_b32 v{dst}, 0xffff0000, v{dst}")

def unpack(a, lo, hi, src):
    a.e(f"v_lshlrev_b32 v{lo}, 16, v{src}")
    a.e(f"v_and_b32 v{hi}, 0xffff0000, v{src}")

def prefetch(a, srd_s, nbytes, vaddr, vtmp, slice_reg, nslices, step=128, dst=None):
    per = nbytes // nslices
    n = (per + 64*step - 1) // (64*step)
    a.e(f"s_mul_i32 s23, s{slice_reg}, {per}")
    for i in range(n):
        a.e(f"buffer_load_dword v{vtmp}, v{vaddr}, s[{srd_s}:{srd_s+3}], s23 offen")
        if i + 1 < n: a.e(f"s_add_u32 s23, s23, {64*step}")

P_X, P_WQKV, P_WO, P_WIN, P_WSP, P_BSP, P_WOUT, P_OUT = 76, 78, 80, 84, 86, 88, 90, 92
FL_H, FL_Q, FL_O, FL_S, FL_P, FL_W, FL_U = 0, 16, 32, 96, 48, 64, 80
FL_K = 112
PSLEEP = int(os.environ.get('PSLEEP', '4'))
POLLF = os.environ.get("POLLF", "sc1")
def mstamp(a, idx):
    if not STAMPS: return
    a.e("s_memrealtime s[94:95]"); a.e("s_waitcnt lgkmcnt(0)"); a.e(f"v_writelane_b32 v255, s94, {idx}")
FMODE = os.environ.get('FMODE', 'B')
def flag_off(a, base, sgrp, sidx, mode=None):
    mode = mode or FMODE
    a.e(f"s_add_u32 s20, s{sgrp}, {base}"); a.e(f"s_mul_i32 s20, s20, {FSTR}")
    if sidx is not None and mode != 'C':
        a.e(f"s_lshl_b32 s{sidx}, s{sidx}, {2 if mode == 'A' else 7}"); a.e(f"s_add_u32 s20, s20, s{sidx}")
def flag_set(a, soff, mode=None):
    mode = mode or FMODE
    a.e("v_mov_b32 v2, s101"); a.e("v_mov_b32 v3, 0")
    a.e("s_mov_b64 exec, 1")
    if mode == 'C': a.e(f"buffer_atomic_add v2, v3, s[96:99], s{soff} offen")
    else: a.e(f"buffer_store_dword v2, v3, s[96:99], s{soff} offen sc1")
    a.e("s_mov_b64 exec, -1")
def poll(a, lbl, soff, n, mode=None, nslot=1):
    mode = mode or FMODE
    a.e("v_and_b32 v2, 63, v0")
    if mode == 'C':
        a.e(f"v_mul_u32_u24 v2, {FSTR}, v2"); a.e(f"s_bfm_b64 exec, {nslot}, 0")
    else:
        a.e(f"v_lshlrev_b32 v2, {2 if mode == 'A' else 7}, v2"); a.e(f"s_bfm_b64 exec, {n}, 0")
    a.e("s_mov_b32 s19, 0x8000")
    a.label(lbl)
    a.e(f"buffer_load_dword v240, v2, s[96:99], s{soff} offen {POLLF}")
    a.e("s_waitcnt vmcnt(0)")
    a.e("v_cmp_ne_u32 vcc, s101, v240")
    a.e("s_sub_u32 s19, s19, 1"); a.e("s_cmp_eq_u32 s19, 0")
    a.e(f"s_cbranch_scc1 {lbl}_d"); a.e(f"s_cbranch_vccz {lbl}_d"); a.e(f"s_sleep {PSLEEP}"); a.e(f"s_branch {lbl}")
    a.label(f"{lbl}_d")
    a.e("s_mov_b64 exec, -1")
def wg_signal(a, lbl, off_fn):
    a.e("s_waitcnt vmcnt(0)"); a.e("s_barrier")
    a.e("s_cmp_eq_u32 s3, 0"); a.e(f"s_cbranch_scc0 {lbl}")
    off_fn(a); flag_set(a, 20)
    a.label(lbl)

def poll256(a, lbl, base):
    a.e("v_and_b32 v2, 31, v0"); a.e("v_lshlrev_b32 v2, 7, v2"); a.e("v_bfe_u32 v3, v0, 5, 1"); a.e(f"v_mul_u32_u24 v3, {FSTR}, v3")
    a.e("v_add_u32 v2, v2, v3")
    a.e("s_mov_b32 s19, 0x8000")
    a.label(lbl)
    for i in range(4):
        a.e(f"s_mov_b32 s20, {(base + 2*i)*FSTR}")
        a.e(f"buffer_load_dword v{240+i}, v2, s[96:99], s20 offen {POLLF}")
    a.e("s_waitcnt vmcnt(0)")
    for i in range(4): a.e(f"v_xor_b32 v{240+i}, s101, v{240+i}")
    a.e("v_or3_b32 v240, v240, v241, v242"); a.e("v_or_b32 v240, v240, v243")
    a.e("v_cmp_ne_u32 vcc, 0, v240")
    a.e("s_sub_u32 s19, s19, 1"); a.e("s_cmp_eq_u32 s19, 0")
    a.e(f"s_cbranch_scc1 {lbl}_d"); a.e(f"s_cbranch_vccz {lbl}_d"); a.e(f"s_sleep {PSLEEP}"); a.e(f"s_branch {lbl}")
    a.label(f"{lbl}_d")

ROTK, ROTV = [int(x) for x in os.environ.get('ROT', '0,0').split(',')]
TOUCH = os.environ.get('TOUCH', '')
TD = int(os.environ.get('TD', '3'))

def guard_issue(a, base, per_slot):
    sh = 5 if per_slot == 32 else 4
    a.e(f"v_and_b32 v58, {per_slot-1}, v1"); a.e("v_lshlrev_b32 v58, 7, v58"); a.e(f"v_lshrrev_b32 v59, {sh}, v1")
    a.e(f"v_mul_u32_u24 v59, {FSTR}, v59"); a.e("v_add_u32 v58, v58, v59")
    a.e(f"s_mul_i32 s35, s3, {(64//per_slot)*FSTR}"); a.e(f"s_add_u32 s35, s35, {base*FSTR}")
    a.e(f"buffer_load_dword v59, v58, s[96:99], s35 offen {POLLF}")
def guard_check(a, lbl):
    a.e("s_mov_b32 s19, 0x8000")
    a.label(lbl)
    a.e("v_cmp_ne_u32 vcc, s101, v59")
    a.e("s_sub_u32 s19, s19, 1"); a.e("s_cmp_eq_u32 s19, 0")
    a.e(f"s_cbranch_scc1 {lbl}_d"); a.e(f"s_cbranch_vccz {lbl}_d"); a.e(f"s_sleep {PSLEEP}")
    a.e(f"buffer_load_dword v59, v58, s[96:99], s35 offen {POLLF}"); a.e("s_waitcnt vmcnt(0)"); a.e(f"s_branch {lbl}")
    a.label(f"{lbl}_d")
MODF = os.environ.get('MODF', ' nt')
XF = os.environ.get('XF', '')
SPF = os.environ.get('SPF', '')
QF = os.environ.get('QF', '')
TQF = os.environ.get('TQF', '')
TSF = os.environ.get('TSF', '')
```

```python
from common import *

MARGIN = 40.0
SIDEF = os.environ.get('SIDEF', ' nt')
PREW = ''
EXPT = os.environ.get('EXPT', '')
SCH = [int(x) for x in os.environ.get('SCH', '2,3,4').split(',')]
NSLOT = 4
CH = 32768
FLG = 0
STG = NSLOT*CH

def k_attn(aL, aC, n, force_fallback=False, side=True):
    KI = 2
    for a in (aL, aC):
        attn_common(a)
    attn_helper(aL, n, side)
    attn_compute(aC, n, force_fallback, KI)
    return 168

def attn_common(a):
    a.e("s_and_b32 s4, s2, 7"); a.e("s_lshl_b32 s4, s4, 2"); a.e("s_lshr_b32 s20, s2, 6"); a.e("s_add_u32 s4, s4, s20")
    a.e("s_bfe_u32 s5, s2, 0x30003")
    a.e("v_and_b32 v1, 63, v0")
    vL16 = 4
    a.e(f"v_lshlrev_b32 v{vL16}, 4, v1")
    a.e("s_mov_b32 s33, 0")

def attn_helper(a, n, side):
    vL16 = 4
    a.e("s_cmp_ge_u32 s3, 2"); a.e(f"s_cbranch_scc1 {n}_side")
    vD = 8
    a.e("s_lshl_b32 s6, s3, 14"); a.e(f"v_add_u32 v{vD}, s6, v{vL16}")
    for h in range(1, 4): a.e(f"v_add_u32 v{vD+h}, {4096*h}, v{vD}")
    a.e("s_lshl_b32 s21, s4, 18")
    srd(a, 8, 36, 262144, WS_KV); a.e("s_add_u32 s8, s8, s21"); a.e("s_addc_u32 s9, s9, 0")
    def kv(c):
        a.e(f"s_mov_b32 s16, {c*CH}")
        for h in range(4):
            a.e(f"s_add_u32 m0, s6, {(c % NSLOT)*CH + 4096*h}"); a.e("s_nop 0")
            for i in range(4):
                a.e(f"buffer_load_dwordx4 v{vD+h}, s[8:11], s16 offen offset:{1024*i} sc1 lds")
    def stream():
        for c in range(3): kv(c)
        a.e("s_waitcnt vmcnt(32)"); a.e("s_barrier")
        for i in range(8):
            a.e(f"s_waitcnt vmcnt({16 if i < 6 else 0})"); a.e("s_barrier")
            if i + 3 < 8: kv(i+3)
    a.e("s_barrier"); a.e("s_barrier")
    stream()
    a.e("s_lshl_b32 s20, s3, 3"); a.e("s_add_u32 s20, s20, 7"); flag_off(a, FL_S, 20, None, 'B')
    poll(a, f"{n}_sp", 20, 32, 'B')
    def chk(lbl, lend):
        a.label(lbl)
        a.e("s_barrier")
        a.e(f"v_mov_b32 v7, {FLG}"); a.e("ds_read_b128 v[12:15], v7"); a.e("s_waitcnt lgkmcnt(0)")
        a.e("v_or3_b32 v12, v12, v13, v14"); a.e("v_or_b32 v12, v12, v15"); a.e("s_nop 0"); a.e("v_readfirstlane_b32 s20, v12"); a.e("s_nop 3")
        a.e("s_cmp_eq_u32 s20, 0"); a.e(f"s_cbranch_scc1 {lend}")
    chk(f"{n}_hchk", f"{n}_hend")
    a.e("s_mov_b32 s19, 2")
    a.label(f"{n}_hfb")
    a.e("s_barrier"); stream()
    a.e("s_sub_u32 s19, s19, 1"); a.e("s_cmp_lg_u32 s19, 0"); a.e(f"s_cbranch_scc1 {n}_hfb")
    a.e(f"s_branch {n}_hchk")
    a.label(f"{n}_side")
    vSF, vX, vDD, vSA, vSR = 32, 96, 104, 136, 140
    a.e("s_sub_u32 s30, s3, 2"); a.e("s_lshl_b32 s6, s30, 14")
    a.e("s_lshl_b32 s22, s2, 1"); a.e("s_add_u32 s22, s22, s30")
    a.e("s_lshr_b32 s38, s4, 1")
    a.e("s_and_b32 s39, s4, 1"); a.e("s_lshl_b32 s20, s5, 1"); a.e("s_add_u32 s39, s39, s20"); a.e("s_lshl_b32 s39, s39, 1")
    a.e("s_add_u32 s39, s39, s30"); a.e("s_lshl_b32 s39, s39, 1")
    a.e("s_mul_i32 s31, s38, 56"); a.e("s_add_u32 s31, s31, s39")
    a.e("s_lshl_b32 s23, s38, 3"); a.e("s_add_u32 s23, s23, s39"); a.e("s_sub_u32 s23, s23, 56")
    a.e("s_cmp_lt_u32 s5, 7"); a.e("s_cselect_b32 s62, 1, 0"); a.e("s_cselect_b32 s31, s31, s23")
    a.e("s_cselect_b32 s40, s84, s80"); a.e("s_cselect_b32 s41, s85, s81")
    a.e(f"s_cselect_b32 s42, {1024*7168}, {2*MB}"); a.e("s_mov_b32 s43, 0x20000")
    a.e("s_cselect_b32 s44, s90, s80"); a.e("s_cselect_b32 s45, s91, s81")
    a.e(f"s_cselect_b32 s46, {1792*2048}, {2*MB}"); a.e("s_mov_b32 s47, 0x20000")
    a.e("s_cselect_b32 s54, 7168, 2048")
    a.e(f"s_cselect_b32 s56, {WS_WIN-WS_WO}, 0"); a.e(f"s_cselect_b32 s60, {WS_WOUT-WS_WO}, 0")
    a.e(f"s_cselect_b32 s61, {56*1024}, 32768")
    a.e("s_lshr_b32 s32, s31, 4"); a.e("s_and_b32 s31, s31, 15")
    a.e("s_lshl_b32 s23, s32, 2"); a.e("s_add_u32 s34, s23, 2"); a.e("s_lshl_b32 s21, s38, 1")
    a.e("s_cmp_lt_u32 s5, 7"); a.e("s_cselect_b32 s20, s39, s31"); a.e("s_cselect_b32 s21, s21, s23"); a.e("s_cselect_b32 s32, s32, s34")
    a.e("s_lshl_b32 s63, s20, 8"); a.e("s_lshl_b32 s68, s21, 7")
    a.e("s_mul_i32 s55, s21, s54"); a.e("s_lshl_b32 s55, s55, 5"); a.e("s_lshl_b32 s23, s20, 7"); a.e("s_add_u32 s55, s55, s23")
    a.e("s_add_u32 s23, s23, s21"); a.e("s_lshl_b32 s23, s23, 10"); a.e("s_add_u32 s56, s56, s23")
    a.e("s_mov_b32 s57, 32768")
    a.e("s_lshl_b32 s59, s32, 16"); a.e("s_lshl_b32 s23, s31, 7"); a.e("s_add_u32 s59, s59, s23")
    a.e("s_mul_i32 s23, s31, s61"); a.e("s_lshl_b32 s23, s23, 2"); a.e("s_add_u32 s60, s60, s23")
    a.e("s_lshl_b32 s23, s32, 10"); a.e("s_add_u32 s60, s60, s23")
    a.e("s_lshl_b32 s69, s22, 14"); a.e("s_lshl_b32 s35, s54, 3")
    srd(a, 64, 36, 14*MB, WS_WO); srd(a, 72, 36, 128*1024); srd(a, 12, P_WSP, 8*MB)
    a.e("v_and_b32 v8, 1, v1"); a.e("v_sub_u32 v8, 4, v8"); a.e("v_lshlrev_b32 v8, 12, v8")
    a.e("v_lshrrev_b32 v7, 4, v1"); a.e("v_lshl_add_u32 v10, v7, 5, v8")
    a.e("v_bfe_u32 v8, v1, 2, 2"); a.e("v_lshl_add_u32 v8, v7, 3, v8"); a.e("v_lshlrev_b32 v8, 7, v8")
    a.e("v_and_b32 v9, 3, v1"); a.e("v_lshl_add_u32 v8, v9, 3, v8")
    a.e(f"s_add_u32 s20, s6, {STG}"); a.e("v_add_u32 v8, s20, v8")
    a.e("v_bfe_u32 v9, v1, 3, 2")
    for b in range(4):
        a.e(f"v_xor_b32 v7, {b}, v9"); a.e(f"v_lshl_add_u32 v{vSR+b}, v7, 5, v8")
    a.e("v_bfe_u32 v8, v1, 4, 1"); a.e("v_bfe_u32 v7, v1, 1, 2"); a.e("v_xor_b32 v8, v8, v7")
    a.e("v_and_b32 v7, 1, v1"); a.e("v_lshlrev_b32 v7, 4, v7"); a.e("v_lshl_add_u32 v8, v8, 5, v7")
    a.e("v_xor_b32 v9, 64, v8"); a.e("v_lshrrev_b32 v7, 3, v1"); a.e("v_mul_lo_u32 v11, v7, s54")
    a.e(f"v_add_u32 v{vSA}, v8, v11"); a.e(f"v_add_u32 v{vSA+1}, v9, v11")
    a.e(f"v_lshl_add_u32 v{vSA+2}, v7, 11, v8"); a.e(f"v_lshl_add_u32 v{vSA+3}, v7, 11, v9")
    def sdma(srd_s, va, ld8, off_s, gate=False):
        nt = SIDEF
        if gate: a.e(f"s_mov_b32 s70, s{srd_s+2}"); a.e("s_cmp_eq_u32 s62, 0"); a.e(f"s_cselect_b32 s71, s70, 0")
        for v in range(2):
            a.e(f"s_add_u32 s21, s{off_s}, {128*v}")
            for jj in range(8):
                if gate and jj in (0, 4): a.e(f"s_mov_b32 s{srd_s+2}, s{70 if jj == 0 else 71}")
                a.e(f"s_add_u32 m0, s6, {STG + 8192*v + 1024*jj}")
                if jj: a.e(f"s_add_u32 s21, s21, {ld8}")
                else: a.e("s_nop 0")
                a.e(f"buffer_load_dwordx4 v{va+(jj&1)}, s[{srd_s}:{srd_s+3}], s21 offen{nt} lds")
    def sread():
        for t in range(4):
            for b in range(4):
                for q in range(2):
                    a.e(f"ds_read_b64_tr_b16 {vr(vSF+16*t+4*b+2*q,2)}, v{vSR+b} offset:{4096*t + 512*q}")
        a.e("s_waitcnt lgkmcnt(0)")
    def sstore(off_s, str_s, mf, gate):
        for k in range(2):
            if gate and k: a.e("s_cmp_eq_u32 s62, 0"); a.e(f"s_cselect_b32 s66, {14*MB}, 0")
            a.e(f"s_add_u32 s20, s{off_s}, {1024*k}")
            for v in range(2):
                for b in range(4):
                    f = vr(vSF+16*(2*v+k)+4*b, 4)
                    a.e(f"buffer_store_dwordx4 {f}, v{vL16}, s[64:67], s20 offen sc1")
                    a.e(f"s_add_u32 s20, s20, s{str_s}")
                    if mf:
                        d = vr(vDD+16*v+4*b, 4)
                        a.e(f"v_mfma_f32_16x16x32_bf16 {d}, {vr(vX+4*k,4)}, {f}, {'0' if k == 0 else d}")
    a.e("s_barrier"); a.e("s_barrier")
    a.e("s_barrier")
    sdma(40, vSA, "s35", 55)
    for k in range(2):
        for h in range(2):
            a.e(f"buffer_load_dwordx4 {vr(16+8*k+4*h,4)}, v10, s[72:75], s68 offen offset:{128*k+16*h} sc1")
    a.e("s_mov_b32 s18, 1"); a.e("s_mov_b32 s19, 8")
    a.label(f"{n}_sl")
    a.e("s_cmp_eq_u32 s19, 0"); a.e(f"s_cbranch_scc1 {n}_sgo")
    a.e("s_getreg_b32 s20, hwreg(HW_REG_IB_STS)"); a.e("s_and_b32 s20, s20, 0xc000000f"); a.e(f"s_cbranch_scc1 {n}_sbar")
    a.label(f"{n}_sgo")
    a.e("s_waitcnt vmcnt(0)")
    for st in (1, 2, 3, 4):
        a.e(f"s_cmp_eq_u32 s18, {st}"); a.e(f"s_cbranch_scc0 {n}_st{st}")
        if st == 1:
            a.e("v_and_b32 v7, 1, v1"); a.e("v_xor_b32 v7, 1, v7"); a.e("v_cvt_f32_u32 v7, v7")
            for q in range(16):
                rnd_bf16(a, 16+q, 16+q); a.e(f"v_add_f32 v{16+q}, v{16+q}, v7")
            for q in range(8): a.e(f"v_cvt_pk_bf16_f32 v{vX+q}, v{16+2*q}, v{17+2*q}")
            sread(); sdma(44, vSA+2, "16384", 59, True); sstore(56, 57, True, False)
        elif st == 2:
            a.e("s_cmp_eq_u32 s62, 0"); a.e(f"s_cselect_b32 s74, 0, {128*1024}")
            a.e("v_lshlrev_b32 v7, 2, v1"); a.e(f"s_add_u32 s20, s63, {WS_UT}"); a.e(f"s_add_u32 s21, s20, {3584*4}")
            for v in range(2):
                d = vDD + 16*v
                a.e("s_bfm_b64 vcc, 16, 16")
                for r in range(2): a.e(f"v_cndmask_b32 v{d+r}, v{d+r}, v{d+4+r}, vcc")
                a.e("s_bfm_b64 vcc, 16, 48")
                for r in range(2): a.e(f"v_cndmask_b32 v{d+8+r}, v{d+8+r}, v{d+12+r}, vcc")
                a.e("s_bfm_b64 vcc, 32, 32")
                for r in range(2): a.e(f"v_cndmask_b32 v{d+r}, v{d+r}, v{d+8+r}, vcc")
                a.e(f"buffer_atomic_add_f32 v{d}, v7, s[72:75], s20 offen offset:{256*v}")
                a.e(f"buffer_atomic_add_f32 v{d+1}, v7, s[72:75], s21 offen offset:{256*v}")
            sread(); sstore(60, 61, False, True)
        elif st == 3:
            a.e("s_lshl_b32 s21, s30, 3"); a.e("s_add_u32 s20, s5, s21"); a.e("s_mov_b32 s21, s4")
            flag_off(a, FL_S, 20, 21, 'B'); flag_set(a, 20, 'B')
            a.e("v_lshlrev_b32 v7, 7, v1"); a.e("s_add_u32 s21, s69, 8192")
            if TSF != 'off':
                a.e("buffer_load_dword v12, v7, s[12:15], s69 offen"); a.e("buffer_load_dword v13, v7, s[12:15], s21 offen")
        else:
            a.e("s_cmp_eq_u32 s19, 0"); a.e(f"s_cbranch_scc1 {n}_schk"); a.e(f"s_branch {n}_sbar")
        if st < 4:
            a.e(f"s_mov_b32 s18, {st+1}")
            a.e("s_cmp_eq_u32 s19, 0"); a.e(f"s_cbranch_scc1 {n}_sgo"); a.e(f"s_branch {n}_sbar")
        a.label(f"{n}_st{st}")
    a.label(f"{n}_sbar")
    a.e("s_barrier"); a.e("s_sub_u32 s19, s19, 1"); a.e(f"s_branch {n}_sl")
    chk(f"{n}_schk", f"{n}_hend")
    for _ in range(20): a.e("s_barrier")
    a.e(f"s_branch {n}_schk")
    a.label(f"{n}_hend")

def attn_compute(a, n, force_fallback, KI):
    vL16 = 4
    a.e("s_cmp_lt_u32 s3, 3"); a.e(f"s_cbranch_scc0 {n}_np")
    a.e("s_cmp_eq_u32 s3, 1"); a.e(f"s_cselect_b32 s21, {16-ROTK}, 0"); a.e("s_cmp_eq_u32 s3, 2"); a.e(f"s_cselect_b32 s21, {16-ROTV}, s21")
    a.e("s_lshr_b32 s20, s4, 1"); a.e("s_add_u32 s20, s20, s21"); a.e("s_and_b32 s20, s20, 15"); flag_off(a, FL_Q, 20, None)
    poll(a, f"{n}_dp", 20, 16)
    a.label(f"{n}_np")
    a.e("s_barrier")
    vQ, vNM, vS, vP, vO, vL, vONE, vK, vV = 8, 24, 56, 88, 96, 128, 136, 140, 148
    vA, vAn, vQo = 2, 3, 5
    a.e(f"v_bfe_u32 v{vQo}, v1, 4, 1"); a.e(f"v_lshlrev_b32 v{vQo}, 15, v{vQo}")
    a.e("v_lshrrev_b32 v6, 5, v1"); a.e(f"v_lshl_add_u32 v{vQo}, v6, 8, v{vQo}")
    a.e("v_and_b32 v6, 15, v1"); a.e(f"v_lshl_add_u32 v{vQo}, v6, 4, v{vQo}")
    a.e("s_lshl_b32 s7, s5, 2"); a.e("s_add_u32 s7, s7, s3"); a.e("s_lshl_b32 s7, s7, 17")
    a.e("s_lshl_b32 s20, s4, 10"); a.e("s_add_u32 s7, s7, s20"); a.e("s_add_u32 s32, s7, 65536")
    srd(a, 12, 36, 4*MB, WS_Q); srd(a, 24, 36, 4*MB, WS_O)
    def loadq():
        for q in range(2):
            for s in range(2):
                a.e(f"buffer_load_dwordx4 {vr(vQ+8*q+4*s,4)}, v{vQo}, s[12:15], s{32 if q else 7} offen offset:{512*s} sc1")
    loadq()
    a.e("v_bfe_u32 v6, v1, 2, 1"); a.e("v_bfe_u32 v7, v1, 4, 1"); a.e("v_cmp_eq_u32 vcc, v6, v7")
    a.e("v_mov_b32 v6, 0x3f803f80"); a.e("s_setprio 2")
    a.e(f"v_cndmask_b32 v{vONE}, 0, v6, vcc")
    for i in range(1, 4): a.e(f"v_mov_b32 v{vONE+i}, v{vONE}")
    def zero_state():
        for i in range(32): a.e(f"v_mov_b32 v{vO+i}, 0")
        for i in range(8): a.e(f"v_mov_b32 v{vL+i}, 0")
        for i in range(4): a.e(f"v_mov_b32 v{vP+4+i}, 0")
        for i in range(4): a.e(f"v_mov_b32 v{vV+8+i}, 0")
        a.e(f"v_mov_b32 v{vA}, v{vL16}"); a.e("s_mov_b32 s18, 0")
    zero_state()
    a.e("s_barrier")
    mstamp(a, 3*KI)
    K = lambda s: vr(vK + 4*s, 4)
    V0 = lambda p: vr(vV + 4*p, 4)
    V1 = vr(vV + 8, 4)
    S = lambda b: vr(vS + 16*b, 16)
    O = lambda b: vr(vO + 16*b, 16)
    L = lambda b: vr(vL + 4*b, 4)
    NM = lambda b: vr(vNM + 16*b, 16)
    Q = lambda b, s: vr(vQ + 8*b + 4*s, 4)
    P = lambda s: vr(vP + 4*s, 4)
    rdK = lambda s, areg, off: f"ds_read_b128 {K(s)}, v{areg} offset:{off + 1024*s}"
    for s in range(2): a.e(rdK(s, vA, 0))
    a.e(f"ds_read_b128 {V0(0)}, v{vA} offset:2048")
    a.e("s_waitcnt vmcnt(0) lgkmcnt(0)")
    for b in range(2):
        a.e(f"v_mfma_f32_32x32x16_bf16 {S(b)}, {K(0)}, {Q(b,0)}, 0")
        a.e(f"v_mfma_f32_32x32x16_bf16 {S(b)}, {K(1)}, {Q(b,1)}, {S(b)}")
    a.e("s_nop 7"); a.e("s_nop 1")
    mg = -200.0 if force_fallback else MARGIN
    def setnm(b, src, margin):
        a.e(f"v_mov_b32 v7, v{src}"); a.e("s_nop 1"); a.e(f"v_permlane32_swap_b32 v{src}, v7"); a.e("s_nop 0")
        a.e(f"v_max_f32 v6, v{src}, v7")
        a.e(f"v_sub_f32 v{vNM+16*b}, {hexf(-margin) if margin else 0}, v6")
        for i in range(1, 16): a.e(f"v_mov_b32 v{vNM+16*b+i}, v{vNM+16*b}")
    for b in range(2):
        s0 = vS + 16*b
        a.e(f"v_max3_f32 v6, v{s0}, v{s0+1}, v{s0+2}")
        for i in range(3, 15, 2): a.e(f"v_max3_f32 v6, v6, v{s0+i}, v{s0+i+1}")
        a.e(f"v_max_f32 v6, v6, v{s0+15}")
        setnm(b, 6, mg)
    a.label(f"{n}_havem")
    a.e("s_nop 1")
    a.e(f"v_mfma_f32_32x32x16_bf16 {S(0)}, {K(0)}, {Q(0,0)}, {NM(0)}")
    a.e(f"v_mfma_f32_32x32x16_bf16 {S(0)}, {K(1)}, {Q(0,1)}, {S(0)}")
    a.e("s_mov_b32 s19, 8")
    a.e("s_nop 7"); a.e("s_nop 3")
    a(".p2align 6")
    a.label(f"{n}_loop")
    for ph in range(16):
        t = ph >> 1; b = ph & 1; nb = 1 - b
        E = lambda x, y: [a.e(f"v_exp_f32 v{vS+16*b+i}, v{vS+16*b+i}") for i in range(x, y)]
        C = lambda x, y: [a.e(f"v_cvt_pk_bf16_f32 v{vP+i}, v{vS+16*b+2*i}, v{vS+16*b+2*i+1}") for i in range(x, y)]
        na, no = (vA, (t+1)*4096) if t < 7 else (vAn, 0)
        if b == 1: a.e("s_waitcnt lgkmcnt(0)")
        a.e(f"v_mfma_f32_32x32x16_bf16 {S(nb)}, {K(0)}, {Q(nb,0)}, {NM(nb)}")
        if ph == 14: a.e("s_barrier")
        if b == 0: a.e(rdK(0, na, no))
        if ph == 13:
            a.e(f"s_add_u32 s18, s18, {CH}"); a.e(f"s_and_b32 s18, s18, {NSLOT*CH-1}")
        E(0, 3)
        a.e(f"v_mfma_f32_16x16x32_bf16 {L(nb)}, {vr(vONE,4)}, {P(1)}, {L(nb)}")
        E(3, 5)
        a.e(f"v_mfma_f32_32x32x16_bf16 {O(nb)}, {V1}, {P(1)}, {O(nb)}")
        if b == 0: a.e(f"ds_read_b128 {V1}, v{vA} offset:{t*4096 + 3072}")
        if ph == 13: a.e(f"v_add_u32 v{vAn}, s18, v{vL16}")
        if ph == 15:
            a.e(f"v_mov_b32 v{vA}, v{vAn}")
        E(5, 8); C(0, 2)
        a.e(f"v_mfma_f32_32x32x16_bf16 {S(nb)}, {K(1)}, {Q(nb,1)}, {S(nb)}")
        if b == 0: a.e(rdK(1, na, no))
        if ph == 15:
            a.e("s_sub_u32 s19, s19, 1"); a.e("s_cmp_lg_u32 s19, 0")
        C(2, 4); E(8, 11)
        a.e(f"v_mfma_f32_16x16x32_bf16 {L(b)}, {vr(vONE,4)}, {P(0)}, {L(b)}")
        if b == 0: a.e(f"ds_read_b128 {V0((t+1) & 1)}, v{na} offset:{no + 2048}")
        E(11, 13)
        a.e(f"v_mfma_f32_32x32x16_bf16 {O(b)}, {V0(t & 1)}, {P(0)}, {O(b)}")
        E(13, 16)
        C(4, 8)
    a.e(f"s_cbranch_scc1 {n}_loop")
    a.e("s_nop 0")
    a.e(f"v_mfma_f32_32x32x16_bf16 {O(1)}, {V1}, {P(1)}, {O(1)}")
    a.e(f"v_mfma_f32_16x16x32_bf16 {L(1)}, {vr(vONE,4)}, {P(1)}, {L(1)}")
    mstamp(a, 3*KI+1)
    for b in range(2):
        if b: a.e("s_nop 1")
        a.e(f"v_rcp_f32 v6, v{vL+4*b}")
        a.e(f"v_pk_mul_f32 {vr(vS+2*b,2)}, {vr(vO+16*b,2)}, 0")
        for i in range(2, 16, 2): a.e(f"v_pk_fma_f32 {vr(vS+2*b,2)}, {vr(vO+16*b+i,2)}, 0, {vr(vS+2*b,2)}")
        for i in range(0, 16, 2): a.e(f"v_pk_mul_f32 {vr(vO+16*b+i,2)}, {vr(vO+16*b+i,2)}, v[6:7] op_sel_hi:[1,0]")
        pp = vS + 8 + 8*b
        for i in range(8): a.e(f"v_cvt_pk_bf16_f32 v{pp+i}, v{vO+16*b+2*i}, v{vO+16*b+2*i+1}")
        a.e("s_nop 1")
        for h in range(2):
            a.e(f"v_permlane32_swap_b32 v{pp+4*h}, v{pp+4*h+2}"); a.e(f"v_permlane32_swap_b32 v{pp+4*h+1}, v{pp+4*h+3}")
        for h in range(2):
            a.e(f"buffer_store_dwordx4 {vr(pp+4*h,4)}, v{vQo}, s[24:27], s{32 if b else 7} offen offset:{512*h} sc1")
    a.e(f"v_mov_b32 v6, {hexf(2.0**100)}")
    a.e(f"v_cmp_nle_f32 s[20:21], v{vL}, v6"); a.e(f"v_cmp_nle_f32 vcc, v{vL+4}, v6"); a.e("s_or_b64 s[20:21], s[20:21], vcc")
    a.e(f"v_cmp_u_f32 vcc, v{vS}, v{vS+1}"); a.e("s_or_b64 s[20:21], s[20:21], vcc")
    a.e(f"v_cmp_u_f32 vcc, v{vS+2}, v{vS+3}"); a.e("s_or_b64 s[20:21], s[20:21], vcc")
    a.e("s_cmp_lg_u64 s[20:21], 0"); a.e("s_cselect_b32 s20, 1, 0")
    a.e("s_cmp_eq_u32 s33, 0"); a.e("s_cselect_b32 s20, s20, 0")
    a.e("v_mov_b32 v6, s20"); a.e("s_lshl_b32 s21, s3, 2"); a.e("v_mov_b32 v7, s21")
    a.e("ds_write_b32 v7, v6"); a.e("s_waitcnt lgkmcnt(0)"); a.e("s_barrier")
    a.e(f"v_mov_b32 v7, {FLG}"); a.e(f"ds_read_b128 {vr(vK,4)}, v7"); a.e("s_waitcnt lgkmcnt(0)")
    a.e(f"v_or3_b32 v6, v{vK}, v{vK+1}, v{vK+2}"); a.e(f"v_or_b32 v6, v6, v{vK+3}")
    a.e("s_nop 0"); a.e("v_readfirstlane_b32 s20, v6"); a.e("s_nop 3")
    a.e("s_cmp_eq_u32 s20, 0"); a.e(f"s_cbranch_scc1 {n}_ok")
    a.label(f"{n}_fb")
    a.e("s_mov_b32 s33, 1")
    a.e("s_waitcnt vmcnt(0)")
    a.e("s_barrier")
    a.e(f"v_mov_b32 v{vP}, 0xff800000"); a.e(f"v_mov_b32 v{vP+1}, 0xff800000")
    a.e("s_mov_b32 s18, 0"); a.e("s_mov_b32 s19, 8")
    a.e("s_barrier")
    a.label(f"{n}_mx")
    a.e(f"v_add_u32 v{vA}, s18, v{vL16}")
    for t in range(8):
        for s in range(2): a.e(rdK(s, vA, t*4096))
        a.e("s_waitcnt lgkmcnt(0)")
        for b in range(2):
            a.e(f"v_mfma_f32_32x32x16_bf16 {S(b)}, {K(0)}, {Q(b,0)}, 0")
            a.e(f"v_mfma_f32_32x32x16_bf16 {S(b)}, {K(1)}, {Q(b,1)}, {S(b)}")
        a.e("s_nop 7"); a.e("s_nop 7")
        for b in range(2):
            for i in range(0, 16, 2): a.e(f"v_max3_f32 v{vP+b}, v{vP+b}, v{vS+16*b+i}, v{vS+16*b+i+1}")
    a.e("s_barrier")
    a.e(f"s_add_u32 s18, s18, {CH}"); a.e(f"s_and_b32 s18, s18, {NSLOT*CH-1}")
    a.e("s_sub_u32 s19, s19, 1"); a.e("s_cmp_lg_u32 s19, 0"); a.e(f"s_cbranch_scc1 {n}_mx")
    for b in range(2): setnm(b, vP+b, 0)
    zero_state()
    a.e("s_barrier"); a.e("s_barrier")
    for s in range(2): a.e(rdK(s, vA, 0))
    a.e(f"ds_read_b128 {V0(0)}, v{vA} offset:2048")
    a.e("s_waitcnt lgkmcnt(0)")
    a.e(f"s_branch {n}_havem")
    a.label(f"{n}_ok")
    def so(a): a.e("s_mov_b32 s21, s4"); flag_off(a, FL_O, 5, 21)
    wg_signal(a, f"{n}_sig", so)
    mstamp(a, 3*KI+2)
```

```python
from common import *
from gemm import *
import gemm_bench as gb

import os
STF = os.environ.get("STF", " sc1")
QTOUCH = int(os.environ.get("QTOUCH", "0"))
LATE = int(os.environ.get("LATE", "0"))
NOKS = os.environ.get("NOKS", "pos")
FINF = os.environ.get("FINF", "")
XQ, XW, XS, XO = [int(x) for x in os.environ.get("XR", "8,8,4,8").split(",")]
PBAR = int(os.environ.get("PBAR", "6"))

def prolog(aL, a, name, c, tptr, tbytes, toff, fptr, fbytes, foff, kidx, **lkw):
    decode_tile(aL, c)
    srd(aL, 8, tptr, tbytes, toff); srd(aL, 12, fptr, fbytes, foff)
    base = c.name; fc = gb.fcol(c); c.name = name
    loader(aL, c, fc, **lkw)
    decode_tile(a, c)
    lkw['mega']['cpoll'](a)
    c.name = base; fb = gb.fblock(c); cc = gb.colchunk(c); c.name = name
    r = compute_setup(a, c, fb)
    c.stampP = lambda a: mstamp(a, 3*kidx)
    return r, cc

def P0(a, vi): a.e("s_barrier"); a.e("s_barrier")
def cpoll(name, off_fn, ndw):
    def f(a):
        a.e("s_cmp_eq_u32 s3, 0"); a.e(f"s_cbranch_scc0 {name}_np")
        off_fn(a)
        poll(a, f"{name}_dp", 20, 16*ndw)
        a.label(f"{name}_np")
        a.e("s_barrier")
    return f

def touch_ws(c, toff, foff):
    kb = c.K//32
    def setup(a):
        a.e("s_lshl_b32 s20, s4, 2"); a.e("s_and_b32 s21, s5, 3"); a.e("s_add_u32 s20, s20, s21"); a.e(f"s_mul_i32 s38, s20, {kb*1024}")
        a.e("s_lshl_b32 s22, s5, 3"); a.e("s_and_b32 s21, s4, 7"); a.e("s_add_u32 s22, s22, s21"); a.e(f"s_mul_i32 s39, s22, {kb*1024}")
        a.e("s_lshl_b32 s21, s3, 9"); a.e(f"s_add_u32 s21, s21, {c.NS*2048}"); a.e("s_add_u32 s38, s38, s21"); a.e("s_add_u32 s39, s39, s21")
    return dict(setup=setup, D=TD, t=[128*i for i in range(4)], f=[128*i for i in range(4)])

def fin(a, kidx, off_fn):
    if off_fn:
        wg_signal(a, f"sig_{kidx}", off_fn)
    mstamp(a, 3*kidx + 2)

def pack_pair(a, t, x, y):
    a.e(f"v_cvt_pk_bf16_f32 v{t}, v{x}, v{x+1}"); a.e(f"v_cvt_pk_bf16_f32 v{t+1}, v{x+2}, v{x+3}")
    a.e(f"v_cvt_pk_bf16_f32 v{t+2}, v{y}, v{y+1}"); a.e(f"v_cvt_pk_bf16_f32 v{t+3}, v{y+2}, v{y+3}")
def swap_pair(a, t):
    a.e(f"v_permlane16_swap_b32 v{t}, v{t+2}"); a.e(f"v_permlane16_swap_b32 v{t+1}, v{t+3}")

def store_pairs(a, items, tmp, ntmp=4):
    pend = None
    for k, (x, y, pre, st) in enumerate(items):
        t = tmp + 4*(k % ntmp)
        pack_pair(a, t, x, y)
        if pend is not None:
            swap_pair(a, pend[0])
            for p in pend[1]: a.e(p)
            a.e(pend[2](pend[0]))
        pend = (t, pre, st)
    a.e("s_nop 1")
    swap_pair(a, pend[0])
    for p in pend[1]: a.e(p)
    a.e(pend[2](pend[0]))

def lane_chunk_off(a, vd, nchunks):
    a.e(f"v_bfe_u32 v{vd}, v1, 4, 1"); a.e(f"v_mul_u32_u24 v{vd}, {nchunks*256}, v{vd}")
    a.e("v_lshrrev_b32 v3, 5, v1"); a.e(f"v_lshl_add_u32 v{vd}, v3, 8, v{vd}")
    a.e("v_and_b32 v3, 15, v1"); a.e(f"v_lshl_add_u32 v{vd}, v3, 4, v{vd}")

def swap23(a, vd, vt):
    a.e(f"v_and_b32 v{vd}, 19, v1")
    a.e(f"v_bfe_u32 v{vt}, v1, 2, 1"); a.e(f"v_lshl_or_b32 v{vd}, v{vt}, 3, v{vd}")
    a.e(f"v_bfe_u32 v{vt}, v1, 3, 1"); a.e(f"v_lshl_or_b32 v{vd}, v{vt}, 2, v{vd}")

def k_qkv(aL, a, name):
    KI = 1
    c = GemmCfg('qkv', 128, 6, 1024, 3, '2x2', 'frag', 'tr', ldf=6144, groups=(3, False), xm=XQ, xn=32//XQ, MT=16, NT=16,
                swap=[False]*4 + [True]*2)
    def off(a): flag_off(a, FL_H, 4, None)
    def mid(a, vi):
        if QTOUCH:
            a.e("s_lshl_b32 s20, s2, 2"); a.e("s_add_u32 s20, s20, s3"); a.e("s_mul_i32 s20, s20, 6144")
            a.e("v_lshlrev_b32 v2, 7, v1"); a.e("s_bfm_b64 exec, 48, 0")
            a.e("buffer_load_dword v60, v2, s[12:15], s20 offen"); a.e("s_mov_b64 exec, -1")
        a.e("s_barrier")
        if LATE: a.e("s_barrier")
        srd(a, 40, 30, 1024*6144*2); srd(a, 44, 28, 2048); srd(a, 48, 36, 24576)
        a.e("s_lshl_b32 s20, s4, 2"); a.e("s_add_u32 s20, s20, s3"); a.e("s_lshl_b32 s20, s20, 4")
        a.e("s_lshl_b32 s21, s20, 1"); a.e("v_and_b32 v2, 15, v1"); a.e("v_lshlrev_b32 v3, 1, v2")
        a.e("buffer_load_ushort v61, v3, s[44:47], s21 offen")
        a.e("s_mul_i32 s20, s20, 12288"); a.e("s_lshl_b32 s21, s5, 7"); a.e("s_add_u32 s20, s20, s21"); a.e("s_add_u32 s20, s20, 4096")
        a.e("v_lshrrev_b32 v3, 4, v1"); a.e("v_lshlrev_b32 v62, 11, v3"); a.e("v_lshl_add_u32 v62, v2, 3, v62")
        for i in range(16):
            a.e(f"buffer_load_dwordx2 {vr(64+2*i,2)}, v62, s[40:43], s20 offen{MODF}")
            if i < 15: a.e("s_add_u32 s20, s20, 12288")
        if not LATE: a.e("s_barrier")
        P0(a, vi)
    GB = 40960
    def lgemv2(a):
        a.e("s_lshl_b32 s20, s3, 8"); a.e(f"s_add_u32 s20, s20, {GB}"); a.e("v_lshl_add_u32 v2, v1, 2, s20")
        for w in range(4): a.e(f"ds_read_b32 v{56+w}, v2 offset:{1024*w}")
        a.e("s_lshl_b32 s20, s3, 12"); a.e("s_lshl_b32 s21, s5, 8"); a.e("s_add_u32 s20, s20, s21"); a.e("s_add_u32 s20, s20, 8192")
        a.e("v_lshlrev_b32 v2, 2, v1")
        a.e("s_waitcnt lgkmcnt(0)")
        a.e("v_add_f32 v56, v56, v57"); a.e("v_add_f32 v58, v58, v59"); a.e("v_add_f32 v56, v56, v58")
        a.e("buffer_atomic_add_f32 v56, v2, s[48:51], s20 offen")
    def lgemv(a):
        a.e("v_lshlrev_b32 v61, 16, v61")
        a.e(f"v_mul_f32 v2, {hexf(-1.4426950408889634)}, v61")
        a.e("v_exp_f32 v2, v2"); a.e("s_nop 0"); a.e("v_add_f32 v2, 1.0, v2"); a.e("v_rcp_f32 v2, v2"); a.e("s_nop 0")
        a.e("v_mul_f32 v61, v61, v2"); rnd_bf16(a, 61, 61)
        for k in range(4): a.e(f"v_mov_b32 v{56+k}, 0")
        for i in range(16):
            a.e(f"v_readlane_b32 s20, v61, {i}")
            unpack(a, 2, 3, 64+2*i); unpack(a, 4, 5, 65+2*i)
            for k in range(4): a.e(f"v_fmac_f32 v{56+k}, s20, v{2+k}")
        a.e("s_lshl_b32 s20, s3, 10"); a.e(f"s_add_u32 s20, s20, {GB}"); a.e("v_lshl_add_u32 v2, v1, 4, s20")
        a.e("ds_write_b128 v2, v[56:59]"); a.e("s_waitcnt lgkmcnt(0)")
    def lfin(a): a.e("s_waitcnt vmcnt(0)")
    r, cc = prolog(aL, a, name, c, 36, 4*MB, WS_H, P_WQKV, 6*MB, 0, KI, extra=(0, lgemv), lfin=lfin, mega=dict(indep='F', indf=QF, mid=mid, lastbar=lgemv2, cpoll=cpoll(name, off, 1)))
    srd(a, 24, 36, 4*MB, WS_Q); srd(a, 40, 36, 8*MB, WS_KV)
    vq, vk, vv = r.free, r.free+1, r.free+2
    lane_chunk_off(a, vq, 128)
    swap23(a, vk, 3); a.e(f"v_lshlrev_b32 v{vk}, 4, v{vk}")
    a.e("v_lshrrev_b32 v3, 5, v1"); a.e(f"v_lshl_add_u32 v{vk}, v3, 9, v{vk}")
    a.e("v_bfe_u32 v2, v1, 4, 1"); a.e("v_lshl_add_u32 v2, v2, 1, v3")
    a.e("v_and_b32 v3, 15, v1"); a.e("v_lshlrev_b32 v3, 4, v3"); a.e(f"v_lshl_add_u32 v{vv}, v2, 9, v3")
    a.e("s_lshl_b32 s32, s5, 1"); a.e("s_add_u32 s32, s32, s7")
    a.e("s_lshl_b32 s33, s4, 2"); a.e("s_lshl_b32 s20, s6, 1"); a.e("s_add_u32 s33, s33, s20")
    a.e("s_lshl_b32 s34, s33, 16"); a.e("s_lshl_b32 s20, s32, 10"); a.e("s_add_u32 s34, s34, s20")
    for rot, d in ((ROTK, 56), (ROTV, 58)):
        a.e(f"s_add_u32 s20, s32, {2*rot}"); a.e("s_and_b32 s20, s20, 31")
        a.e("s_lshl_b32 s20, s20, 6"); a.e("s_add_u32 s20, s20, s33"); a.e(f"s_lshl_b32 s{d}, s20, 12"); a.e(f"s_add_u32 s{d+1}, s{d}, 4096")
    a.e("s_add_u32 s38, s34, 65536")
    a.e(f"s_mov_b32 s44, {hexf(QSCALE)}"); a.e(f"s_mov_b32 s45, s44")
    a.e("s_setprio 1")
    compute_loop(a, c, r)
    mstamp(a, 3*KI + 1)
    items = []
    acc = lambda i, j: r.acc + (i*6 + j)*4
    for j in (2, 3, 4, 5, 0, 1):
        for p in range(2):
            jj = j & 1
            if j < 2:
                st = (lambda t, p=p, jj=jj: f"buffer_store_dwordx4 {vr(t,4)}, v{vq}, s[24:27], s{38 if p else 34} offen offset:{jj*512}{STF}")
            elif j < 4:
                st = (lambda t, p=p, jj=jj: f"buffer_store_dwordx4 {vr(t,4)}, v{vk}, s[40:43], s{56+p} offen offset:{jj*1024}{STF}")
            else:
                st = (lambda t, p=p, jj=jj: f"buffer_store_dwordx4 {vr(t,4)}, v{vv}, s[40:43], s{58+p} offen offset:{2048+jj*256}{STF}")
            items.append((acc(2*p, j), acc(2*p+1, j), [], st))
    for i in range(4):
        for j in range(2):
            for q in range(2):
                x = acc(i, j) + 2*q
                a.e(f"v_pk_mul_f32 {vr(x,2)}, {vr(x,2)}, s[44:45]")
    store_pairs(a, items, r.T[0])
    def so(a):
        a.e("s_mov_b32 s21, s4")
        flag_off(a, FL_Q, 5, 21)
    fin(a, KI, so)
    return r.free + 3

def stats_atomic(a, r, NB, nti, vS, srd_s, vaddr, soff):
    for i in range(nti):
        x0 = r.acc + i*NB*4
        a.e(f"v_pk_mul_f32 {vr(vS+4*i+2,2)}, {vr(x0,2)}, {vr(x0,2)}")
        a.e(f"v_pk_add_f32 {vr(vS+4*i,2)}, {vr(x0,2)}, {vr(x0+2,2)}")
        a.e(f"v_pk_fma_f32 {vr(vS+4*i+2,2)}, {vr(x0+2,2)}, {vr(x0+2,2)}, {vr(vS+4*i+2,2)}")
        for k in range(4, NB*4, 2):
            a.e(f"v_pk_add_f32 {vr(vS+4*i,2)}, {vr(vS+4*i,2)}, {vr(x0+k,2)}")
            a.e(f"v_pk_fma_f32 {vr(vS+4*i+2,2)}, {vr(x0+k,2)}, {vr(x0+k,2)}, {vr(vS+4*i+2,2)}")
    for i in range(nti):
        a.e(f"v_add_f32 v{vS+4*i}, v{vS+4*i}, v{vS+4*i+1}")
        a.e(f"v_add_f32 v{vS+4*i+2}, v{vS+4*i+2}, v{vS+4*i+3}")
    a.e("s_nop 1")
    for i in range(nti): a.e(f"v_permlane16_swap_b32 v{vS+4*i}, v{vS+4*i+2}")
    a.e("s_nop 0")
    for i in range(nti): a.e(f"v_add_f32 v{vS+4*i}, v{vS+4*i}, v{vS+4*i+2}")
    a.e("s_nop 1")
    for i in range(0, nti, 2): a.e(f"v_permlane32_swap_b32 v{vS+4*i}, v{vS+4*i+4}")
    a.e("s_nop 0")
    for i in range(0, nti, 2):
        a.e(f"v_add_f32 v{vS+4*i}, v{vS+4*i}, v{vS+4*i+4}")
        a.e(f"buffer_atomic_add_f32 v{vS+4*i}, v{vaddr}, s[{srd_s}:{srd_s+3}], s{soff} offen offset:{128*i}")

def stat_addr(a, vd):
    a.e(f"v_and_b32 v{vd}, 15, v1"); a.e("v_lshrrev_b32 v3, 5, v1"); a.e(f"v_lshl_add_u32 v{vd}, v3, 4, v{vd}")
    a.e(f"v_lshlrev_b32 v{vd}, 3, v{vd}"); a.e("v_bfe_u32 v3, v1, 4, 1"); a.e(f"v_lshl_add_u32 v{vd}, v3, 2, v{vd}")

def finish_stats(a, s, q, t, n):
    a.e(f"v_mul_f32 v{s}, {hexf(1.0/n)}, v{s}")
    a.e(f"v_mul_f32 v{q}, {hexf(1.0/n)}, v{q}")
    a.e(f"v_fma_f32 v{q}, -v{s}, v{s}, v{q}")
    a.e(f"v_max_f32 v{q}, 0, v{q}")
    a.e(f"v_add_f32 v{q}, {hexf(1e-5)}, v{q}")
    a.e(f"v_rsq_f32 v{t}, v{q}")
    a.e("s_nop 0")
    a.e(f"v_mul_f32_e64 v{q}, -v{s}, v{t}")
    a.e(f"v_mov_b32 v{s}, v{t}")

def k_proj(aL, a, name):
    KI = 3
    c = GemmCfg('woutL', 64, 4, 1024, 6, '2x2s' if 'p' in NOKS else 'ksplitF', 'frag', 'frag', xm=XO, xn=32//XO, MT=32, NT=8)
    EB = ((c.nk - c.NS) % c.NS)*c.stage
    def lpre(a):
        srd(a, 24, P_X, 4*MB); srd(a, 40, 36, 24576)
        a.e("v_lshrrev_b32 v2, 4, v1"); a.e("v_and_b32 v3, 15, v1")
        a.e("s_lshl_b32 s20, s4, 6"); a.e("s_lshl_b32 s21, s3, 4"); a.e("s_add_u32 s20, s20, s21"); a.e("s_lshl_b32 s20, s20, 11")
        a.e("s_lshl_b32 s21, s5, 8"); a.e("s_add_u32 s20, s20, s21")
        for t in range(4):
            a.e(f"v_add_u32 v4, {4*t}, v2"); a.e("v_xor_b32 v5, v4, v3"); a.e("v_lshlrev_b32 v5, 4, v5")
            a.e("v_lshl_add_u32 v5, v4, 11, v5"); a.e(f"v_add_u32 v{40+t}, s20, v5")
        a.e("v_lshrrev_b32 v4, 5, v1"); a.e("v_lshlrev_b32 v4, 13, v4"); a.e("v_and_b32 v5, 31, v1"); a.e("v_lshl_add_u32 v4, v5, 4, v4")
        a.e("s_lshl_b32 s21, s5, 9"); a.e("s_add_u32 s21, s21, 8192"); a.e("v_add_u32 v44, s21, v4")
    def lextra(a):
        a.e("s_lshl_b32 s20, s3, 12")
        for t in range(4):
            a.e(f"s_add_u32 m0, s20, {EB + 1024*t}"); a.e("s_nop 0")
            a.e(f"buffer_load_dwordx4 v{40+t}, s[24:27], 0 offen sc1 lds")
        a.e("buffer_load_dwordx4 v[48:51], v44, s[40:43], 0 offen sc1")
    def lastbar(a):
        a.e("v_lshrrev_b32 v2, 5, v1"); a.e("v_cvt_f32_u32 v2, v2")
        for k in range(4):
            rnd_bf16(a, 48+k, 48+k); a.e(f"v_add_f32 v{48+k}, v{48+k}, v2"); rnd_bf16(a, 48+k, 48+k)
        a.e(f"v_lshlrev_b32 v2, 4, v1"); a.e(f"v_add_u32 v2, {EB + 16384}, v2")
        a.e("ds_write_b128 v2, v[48:51]"); a.e("s_waitcnt lgkmcnt(0)")
    def off(a): a.e("s_lshr_b32 s20, s4, 2"); flag_off(a, FL_O, 20, None)
    def lfin(a):
        if c.ksplit: a.e("s_barrier")
        a.e("s_barrier")
    cp0 = cpoll(name, off, 2)
    def cp(a):
        for w in (1, 2):
            a.e(f"s_cmp_eq_u32 s3, {w}"); a.e(f"s_cbranch_scc0 {name}_ns{w}")
            poll256(a, f"{name}_sp{w}", FL_S + 8*(w-1))
            a.label(f"{name}_ns{w}")
        cp0(a)
    r, cc = prolog(aL, a, name, c, 36, 4*MB, WS_O, 36, 2*MB, WS_WO, KI, pre=lpre, extra=(5, lextra), lfin=lfin,
                   mega=dict(indep='F', indf=' sc1', mid=P0, cpoll=cp, lastbar=lastbar, touch=touch_ws(c, WS_O, WS_WO) if 'p' in TOUCH else None))
    srd(a, 40, 36, 128*1024)
    srd(a, 48, 36, 4*MB, WS_X1); srd(a, 52, 36, 4*MB, WS_H2)
    f = r.free
    vX, vGA, vG = f, f+16, f+32
    vo, vs1, vm, vS, vx = f+48, f+49, f+50, f+52, f+60
    a.e("s_lshl_b32 s56, s4, 6"); a.e("s_lshl_b32 s20, s7, 5"); a.e("s_add_u32 s56, s56, s20")
    a.e("s_lshl_b32 s57, s5, 7"); a.e("s_lshl_b32 s20, s6, 6"); a.e("s_add_u32 s57, s57, s20")
    a.e("v_and_b32 v2, 15, v1"); a.e("v_lshrrev_b32 v3, 4, v1")
    a.e("v_lshrrev_b32 v4, 1, v3"); a.e("s_lshl_b32 s20, s6, 3"); a.e("v_or_b32 v4, s20, v4"); a.e("v_xor_b32 v4, v4, v2")
    a.e("v_and_b32 v5, 1, v3"); a.e("v_lshlrev_b32 v5, 3, v5"); a.e("v_lshl_add_u32 v5, v2, 8, v5")
    a.e("s_lshl_b32 s20, s7, 13"); a.e(f"s_add_u32 s20, s20, {EB}"); a.e("v_add_u32 v5, s20, v5")
    for j in range(4):
        a.e(f"v_xor_b32 v6, {2*j}, v4"); a.e(f"v_lshl_add_u32 v{vx+j}, v6, 4, v5")
    a.e("s_lshl_b32 s20, s6, 8"); a.e(f"s_add_u32 s20, s20, {EB + 16384}"); a.e(f"v_lshl_add_u32 v{vm}, v3, 4, s20")
    stat_addr(a, vs1)
    lane_chunk_off(a, vo, 128)
    a.e("s_lshl_b32 s60, s56, 3"); a.e(f"s_add_u32 s60, s60, {WS_ST1}")
    a.e("s_lshl_b32 s62, s56, 11"); a.e("s_lshl_b32 s20, s57, 5"); a.e("s_add_u32 s62, s62, s20")
    a.e("s_setprio 1")
    compute_loop(a, c, r)
    mstamp(a, 3*KI + 1)
    for i in range(2):
        for j in range(4):
            a.e(f"ds_read_b64 {vr(vX+(i*4+j)*2,2)}, v{vx+j} offset:{4096*i}")
    for j in range(4):
        a.e(f"ds_read_b128 {vr(vGA+4*j,4)}, v{vm} offset:{64*j}")
        a.e(f"ds_read_b128 {vr(vG+4*j,4)}, v{vm} offset:{512+64*j}")
    ksplit_reduce(a, c, r)
    for i in range(2):
        for j in range(4):
            x = r.acc + (i*4+j)*4; s = vX + (i*4+j)*2
            for h in range(2):
                unpack(a, 2, 3, s+h)
                a.e(f"v_pk_fma_f32 {vr(x+2*h,2)}, {vr(x+2*h,2)}, {vr(vGA+4*j+2*h,2)}, v[2:3]")
    stats_atomic(a, r, 4, 2, vS, 40, vs1, 60)
    y0 = r.acc + 32 if c.ksplit else f + 64
    tp = r.T[0] if c.ksplit else f + 96
    for i in range(2):
        for j in range(4):
            for h in range(2):
                x = (i*4+j)*4 + 2*h
                a.e(f"v_pk_mul_f32 {vr(y0+x,2)}, {vr(r.acc+x,2)}, {vr(vG+4*j+2*h,2)}")
    items = [(y0 + j*4, y0 + (4+j)*4, [],
              (lambda t, j=j: f"buffer_store_dwordx4 {vr(t,4)}, v{vo}, s[52:55], s62 offen offset:{512*j}{STF}")) for j in range(4)]
    items += [(r.acc + j*4, r.acc + (4+j)*4, [],
              (lambda t, j=j: f"buffer_store_dwordx4 {vr(t,4)}, v{vo}, s[48:51], s62 offen offset:{512*j}{STF}")) for j in range(4)]
    store_pairs(a, items, tp, 8)
    def so(a):
        a.e("s_and_b32 s21, s4, 1"); a.e("s_lshl_b32 s21, s21, 3"); a.e("s_add_u32 s21, s21, s5"); a.e("s_lshr_b32 s22, s4, 1")
        flag_off(a, FL_P, 22, 21)
    fin(a, KI, so)
    return f + (64 if c.ksplit else 128)

def gelu(a, regs, t0, G=4):
    n = len(regs)//2
    for b in range(0, n, G):
        ps = [(regs[2*k], t0 + 2*(k-b)) for k in range(b, min(n, b+G))]
        for x, t in ps: a.e(f"v_pk_mul_f32 {vr(t,2)}, {vr(x,2)}, {vr(x,2)}")
        for x, t in ps: a.e(f"v_pk_fma_f32 {vr(t,2)}, {vr(t,2)}, s[64:65], {vr(t0+2*G,2)}")
        for x, t in ps: a.e(f"v_pk_mul_f32 {vr(t,2)}, {vr(t,2)}, {vr(x,2)}")
        for x, t in ps: a.e(f"v_exp_f32 v{t}, v{t}"); a.e(f"v_exp_f32 v{t+1}, v{t+1}")
        for x, t in ps: a.e(f"v_pk_add_f32 {vr(t,2)}, {vr(t,2)}, 1.0 op_sel_hi:[1,0]")
        for x, t in ps: a.e(f"v_rcp_f32 v{t}, v{t}"); a.e(f"v_rcp_f32 v{t+1}, v{t+1}")
        for x, t in ps: a.e(f"v_pk_mul_f32 {vr(x,2)}, {vr(x,2)}, {vr(t,2)}")

def bp2gb(bp):
    if bp < 4: return True, bp
    if bp < 7: return False, bp - 4
    if bp < 10: return True, bp - 3
    return False, bp - 7

def k_win(aL, a, name):
    KI = 4
    c = GemmCfg('winL', 128, 7, 1024, 3, '2x2', 'frag', 'frag', xm=XW, xn=32//XW, MT=16, NT=16)
    TB = c.lds
    gbo = lambda bp: (112 if bp2gb(bp)[0] else 0) + bp2gb(bp)[1]
    def fitem(a, t, sd):
        a.e("s_cmp_lt_u32 s3, 2"); a.e(f"s_cselect_b32 s{sd}, {gbo(2*t)}, {gbo(2*t+1)}")
        a.e("s_mul_i32 s22, s5, 7"); a.e(f"s_add_u32 s{sd}, s{sd}, s22")
    def lpre(a):
        srd(a, 40, 36, 128*1024)
        a.e("s_cmp_ge_u32 s3, 2"); a.e(f"s_cbranch_scc1 {name}_lp1")
        a.e(f"s_mul_i32 s20, s3, {3584*4}"); a.e("s_mul_i32 s21, s5, 448"); a.e("s_add_u32 s20, s20, s21"); a.e(f"s_add_u32 s20, s20, {WS_UT}")
        a.e("v_lshlrev_b32 v30, 4, v1")
        a.e(f"v_add_u32 v31, {112*64}, v30")
        for lim, d in ((16, -4*64), (28, (112-3)*64), (40, -7*64)):
            a.e(f"v_cmp_le_u32 vcc, {lim}, v1"); a.e(f"v_add_u32 v29, {d & 0xffffffff}, v30"); a.e("s_nop 0")
            a.e("v_cndmask_b32 v31, v31, v29, vcc")
        a.e("buffer_load_dwordx4 v[32:35], v31, s[40:43], s20 offen sc1")
        a.e(f"s_branch {name}_lp2")
        a.label(f"{name}_lp1")
        a.e("s_lshl_b32 s20, s4, 1"); a.e("s_add_u32 s20, s20, s3"); a.e("s_sub_u32 s20, s20, 2"); a.e("s_lshl_b32 s20, s20, 9")
        a.e(f"s_add_u32 s20, s20, {WS_ST1}")
        a.e("v_lshlrev_b32 v30, 3, v1")
        a.e("buffer_load_dwordx2 v[32:33], v30, s[40:43], s20 offen sc1")
        a.label(f"{name}_lp2")
        return 1
    def lpost(a):
        a.e("s_cmp_ge_u32 s3, 2"); a.e(f"s_cbranch_scc1 {name}_lq1")
        a.e("s_mul_i32 s20, s3, 896"); a.e(f"s_add_u32 s20, s20, {TB}"); a.e("v_add_u32 v30, s20, v30")
        a.e("s_bfm_b64 exec, 56, 0")
        a.e("ds_write_b128 v30, v[32:35]")
        a.e("s_mov_b64 exec, -1")
        a.e(f"s_branch {name}_lq2")
        a.label(f"{name}_lq1")
        finish_stats(a, 32, 33, 34, 1024)
        a.e("s_lshl_b32 s20, s3, 9"); a.e(f"s_add_u32 s20, s20, {TB + 2048 - 1024}"); a.e("v_add_u32 v30, s20, v30")
        a.e("ds_write_b64 v30, v[32:33]")
        a.label(f"{name}_lq2")
        a.e("s_waitcnt lgkmcnt(0)")
    def lfin(a):
        a.e("s_barrier")
        a.e("s_cmp_ge_u32 s3, 2"); a.e(f"s_cbranch_scc1 {name}_lx")
        srd(a, 44, 36, 32768, WS_ST2)
        a.e("s_lshl_b32 s20, s4, 1"); a.e("s_add_u32 s20, s20, s3"); a.e("s_lshl_b32 s20, s20, 10")
        a.e("v_lshlrev_b32 v30, 4, v1")
        a.e("s_mov_b32 s19, 0x8000")
        a.label(f"{name}_poll")
        a.e(f"buffer_load_dwordx3 v[32:34], v30, s[44:47], s20 offen {POLLF}")
        a.e("s_waitcnt vmcnt(0)")
        a.e(f"v_cmp_gt_f32 vcc, {hexf(31.5)}, v34")
        a.e("s_sub_u32 s19, s19, 1"); a.e("s_cmp_eq_u32 s19, 0")
        a.e(f"s_cbranch_scc1 {name}_pd"); a.e(f"s_cbranch_vccz {name}_pd"); a.e("s_sleep 4"); a.e(f"s_branch {name}_poll")
        a.label(f"{name}_pd")
        finish_stats(a, 32, 33, 34, 1792)
        a.e("s_lshl_b32 s20, s3, 9"); a.e(f"s_add_u32 s20, s20, {TB + 3072}"); a.e("v_lshl_add_u32 v30, v1, 3, s20")
        a.e("ds_write_b64 v30, v[32:33]")
        a.e("s_waitcnt lgkmcnt(0)")
        a.label(f"{name}_lx")
        a.e("s_barrier"); a.e("s_barrier")
    def off(a): flag_off(a, FL_P, 4, None)
    r, cc = prolog(aL, a, name, c, 36, 4*MB, WS_H2, 36, 1024*3584*2, WS_WIN, KI, postP=lpost, fitem=fitem, lfin=lfin,
                   extra=(1, lambda a: guard_issue(a, FL_O, 32)),
                   mega=dict(indep='F', indf=' sc1', mid=P0, cpoll=cpoll(name, off, 1), post_dep=lpre,
                             lastbar=lambda a: guard_check(a, a.newlabel(name + "_g"))))
    ZB = 2048*1792*2
    srd(a, 24, 36, ZB, WS_Z1); srd(a, 40, 36, ZB, WS_Z2); srd(a, 44, 36, 32768, WS_ST2)
    f = r.free
    vo, vz, vs0, vs1, vu, vst, vpl, vC = f, f+1, f+2, f+3, f+4, f+5, f+6, f+7
    lane_chunk_off(a, vo, 224)
    swap23(a, vz, 3); a.e(f"v_lshlrev_b32 v{vz}, 5, v{vz}")
    a.e("v_lshrrev_b32 v3, 5, v1"); a.e(f"v_lshl_add_u32 v{vz}, v3, 4, v{vz}")
    a.e("v_and_b32 v2, 15, v1"); a.e("v_lshrrev_b32 v3, 4, v1")
    a.e(f"v_lshlrev_b32 v{vpl}, 4, v2")
    a.e(f"v_lshl_add_u32 v{vs0}, v3, 2, v{vpl}"); a.e(f"v_xor_b32 v{vs1}, 8, v{vs0}")
    a.e("v_and_b32 v4, 1, v3"); a.e("v_xor_b32 v4, 1, v4"); a.e(f"v_cvt_f32_u32 v{vC}, v4")
    a.e("s_mul_i32 s20, s7, 448"); a.e(f"s_add_u32 s20, s20, {TB}")
    a.e(f"v_lshl_add_u32 v{vu}, v3, 4, s20")
    a.e("s_lshl_b32 s20, s6, 9"); a.e(f"s_add_u32 s20, s20, {TB+2048}")
    a.e(f"v_lshl_add_u32 v{vst}, v2, 3, s20")
    a.e("s_lshl_b32 s56, s4, 7"); a.e("s_lshl_b32 s20, s6, 6"); a.e("s_add_u32 s56, s56, s20")
    a.e("s_lshl_b32 s60, s56, 4")
    a.e("s_lshr_b32 s21, s56, 4"); a.e("s_mul_i32 s21, s21, 224"); a.e("s_mul_i32 s20, s5, 14"); a.e("s_add_u32 s21, s21, s20")
    a.e("s_lshl_b32 s68, s21, 8"); a.e(f"s_add_u32 s69, s68, {2*224*256}")
    a.e(f"s_mul_i32 s20, s5, {7*65536}"); a.e("s_lshl_b32 s22, s56, 5"); a.e("s_add_u32 s70, s20, s22")
    c1 = -2*0.7978845608028654*1.4426950408889634
    a.e(f"s_mov_b32 s64, {hexf(c1*0.044715)}"); a.e("s_mov_b32 s65, s64")
    a.e("s_setprio 1")
    compute_loop(a, c, r)
    mstamp(a, 3*KI + 1)
    t0 = r.T[0]
    vU, vTt, vST = t0 + 16, t0 + 44, t0 + 72
    for i in range(4): a.e(f"ds_read_b64 {vr(vST+2*i,2)}, v{vst} offset:{128*i}")
    for j in range(7):
        a.e(f"ds_read_b128 {vr(vU+4*j,4)}, v{vu} offset:{64*j}")
        a.e(f"ds_read_b128 {vr(vTt+4*j,4)}, v{vu} offset:{896+64*j}")
    a.e(f"v_mov_b32 v{t0+8}, {hexf(c1)}"); a.e(f"v_mov_b32 v{t0+9}, {hexf(c1)}")
    acc = lambda i, j: r.acc + (i*7 + j)*4
    def fold_gelu(j):
        for i in range(4):
            for h in range(2):
                t = t0 + 10 + 2*h
                a.e(f"v_pk_fma_f32 {vr(t,2)}, {vr(vU+4*j+2*h,2)}, {vr(vST+2*i,2)}, {vr(vTt+4*j+2*h,2)} op_sel:[0,1,0] op_sel_hi:[1,1,1]")
            for h in range(2):
                t = t0 + 10 + 2*h; x = acc(i, j) + 2*h
                a.e(f"v_pk_fma_f32 {vr(x,2)}, {vr(x,2)}, {vr(vST+2*i,2)}, {vr(t,2)} op_sel:[0,0,0] op_sel_hi:[1,0,1]")
        regs = []
        for i in range(4): regs += list(range(acc(i, j), acc(i, j)+4))
        gelu(a, regs, t0)
    vS = f + 8
    tp = f + 24
    a.e("s_waitcnt lgkmcnt(0)")
    a.e("s_cmp_eq_u32 s7, 0"); a.e(f"s_cbranch_scc0 {name}_e1")
    for fw in range(2):
        if fw: a.label(f"{name}_e1")
        nz = 4 - fw
        for j in range(nz):
            fold_gelu(j)
            for i in range(4):
                x0 = acc(i, j)
                if j == 0:
                    a.e(f"v_pk_add_f32 {vr(vS+4*i,2)}, {vr(x0,2)}, {vr(x0+2,2)}")
                    a.e(f"v_pk_mul_f32 {vr(vS+4*i+2,2)}, {vr(x0,2)}, {vr(x0,2)}")
                else:
                    a.e(f"v_pk_add_f32 {vr(vS+4*i,2)}, {vr(vS+4*i,2)}, {vr(x0,2)}")
                    a.e(f"v_pk_fma_f32 {vr(vS+4*i+2,2)}, {vr(x0,2)}, {vr(x0,2)}, {vr(vS+4*i+2,2)}")
                    a.e(f"v_pk_add_f32 {vr(vS+4*i,2)}, {vr(vS+4*i,2)}, {vr(x0+2,2)}")
                a.e(f"v_pk_fma_f32 {vr(vS+4*i+2,2)}, {vr(x0+2,2)}, {vr(x0+2,2)}, {vr(vS+4*i+2,2)}")
        for i in range(4):
            a.e(f"v_add_f32 v{vS+4*i}, v{vS+4*i}, v{vS+4*i+1}")
            a.e(f"v_add_f32 v{vS+4*i+2}, v{vS+4*i+2}, v{vS+4*i+3}")
        a.e("s_nop 0")
        for i in range(4): a.e(f"v_permlane16_swap_b32 v{vS+4*i}, v{vS+4*i+2}")
        for i in range(4): a.e(f"v_add_f32 v{vS+4*i}, v{vS+4*i}, v{vS+4*i+2}")
        a.e("s_nop 1")
        for i in (0, 2): a.e(f"v_permlane32_swap_b32 v{vS+4*i}, v{vS+4*i+4}")
        a.e("s_bfm_b64 vcc, 32, 32")
        for i in (0, 2): a.e(f"v_add_f32 v{vS+4*i}, v{vS+4*i}, v{vS+4*i+4}")
        for i in (0, 2):
            a.e(f"v_cndmask_b32 v{vS+4*i+1}, v{vS+4*i}, v{vC}, vcc")
            a.e(f"v_cndmask_b32 v{vS+4*i+2}, v{vC}, v{vS+4*i}, vcc")
        for i in (0, 2):
            a.e(f"buffer_atomic_add_f32 v{vS+4*i+1}, v{vs0}, s[44:47], s60 offen offset:{256*i}")
            a.e(f"buffer_atomic_add_f32 v{vS+4*i+2}, v{vs1}, s[44:47], s60 offen offset:{256*(i+1)}")
        mstamp(a, 23)
        for j in range(nz, 7):
            if j == PBAR: a.e("s_barrier")
            fold_gelu(j)
            lb = bp2gb(7*fw + j)[1]
            items = [(acc(2*p, j), acc(2*p+1, j), [],
                      (lambda t, p=p, lb=lb: f"buffer_store_dwordx4 {vr(t,4)}, v{vo}, s[24:27], s{68+p} offen offset:{512*lb}{STF}")) for p in range(2)]
            store_pairs(a, items, tp + 8*(j & 1), 2)
        vP = t0 + 16
        mstamp(a, 24)
        a.e("s_barrier")
        mstamp(a, 25)
        for i in range(4): a.e(f"ds_read_b64 {vr(vP+4*i,2)}, v{vst} offset:{1024 + 128*i}")
        a.e("s_waitcnt lgkmcnt(0)"); a.e("s_barrier")
        items = []
        for j in range(nz):
            lb = bp2gb(7*fw + j)[1]
            for i in range(4):
                for h in range(2):
                    x = acc(i, j) + 2*h
                    a.e(f"v_pk_fma_f32 {vr(x,2)}, {vr(x,2)}, {vr(vP+4*i,2)}, {vr(vP+4*i,2)} op_sel:[0,0,1] op_sel_hi:[1,0,1]")
            for p in range(2):
                pre = [f"s_add_u32 s71, s70, {lb*65536}"] if p == 0 else []
                items.append((acc(2*p, j), acc(2*p+1, j), pre,
                              (lambda t, p=p: f"buffer_store_dwordx4 {vr(t,4)}, v{vz}, s[40:43], s71 offen offset:{1024*p}{STF}")))
        store_pairs(a, items, t0 + 32, 8)
        if fw == 0: a.e(f"s_branch {name}_fin")
    a.label(f"{name}_fin")
    mstamp(a, 26)
    def so(a):
        a.e("s_mov_b32 s21, s4")
        flag_off(a, FL_W, 5, 21)
    fin(a, KI, so)
    return f + 40

def k_spat(aL, a, name):
    KI = 5
    c = GemmCfg('spat', 128, 7, 2048, 5, '4x1' if 's' in NOKS else 'ksplitT', 'nat', 'trp', ldt=4096, xm=XS, xn=32//XS, MT=16, NT=16)
    ZB = 2048*1792*2
    EB = ((c.nk - c.NS) % c.NS)*c.stage
    def lpre(a):
        srd(a, 24, 36, ZB, WS_Z1); srd(a, 44, P_BSP, 4096)
        a.e("s_lshl_b32 s20, s4, 3"); a.e("s_lshl_b32 s21, s3, 1"); a.e("s_add_u32 s20, s20, s21"); a.e(f"s_mul_i32 s20, s20, {224*256}")
        a.e("s_mul_i32 s21, s5, 3584"); a.e("s_add_u32 s20, s20, s21")
        a.e("v_lshl_add_u32 v4, v1, 4, s20")
        for t in range(7):
            if t < 3: a.e(f"v_add_u32 v{40+t}, {1024*t}, v4")
            elif t > 3: a.e(f"v_add_u32 v{40+t}, {1024*t + 224*256 - 3584}, v4")
        a.e("v_lshrrev_b32 v5, 5, v1"); a.e(f"v_mul_u32_u24 v5, {224*256 - 3584}, v5"); a.e("v_add3_u32 v43, v4, v5, 0")
        a.e("v_add_u32 v43, 3072, v43")
        a.e("s_lshl_b32 s21, s4, 8"); a.e("v_lshl_add_u32 v47, v1, 4, s21")
    def lextra(a):
        a.e("s_mul_i32 s20, s3, 7168")
        for t in range(7):
            a.e(f"s_add_u32 m0, s20, {EB + 1024*t}"); a.e("s_nop 0")
            a.e(f"buffer_load_dwordx4 v{40+t}, s[24:27], 0 offen sc1 lds")
        a.e(f"s_mov_b32 m0, {EB + 28672}"); a.e("s_nop 0")
        a.e("buffer_load_dwordx4 v47, s[44:47], 0 offen lds")
        guard_issue(a, FL_W, 16)
    def tsetup(a):
        a.e("s_lshl_b32 s20, s4, 3"); a.e("s_and_b32 s21, s5, 7"); a.e("s_add_u32 s20, s20, s21"); a.e("s_lshl_b32 s20, s20, 2")
        a.e("s_add_u32 s20, s20, s3"); a.e("s_lshl_b32 s38, s20, 14"); a.e(f"s_add_u32 s38, s38, {c.NS*128}")
        a.e("s_and_b32 s21, s4, 3"); a.e("s_lshl_b32 s21, s21, 2"); a.e("s_add_u32 s21, s21, s3"); a.e("s_lshl_b32 s21, s21, 7")
        a.e(f"s_mul_i32 s39, s5, {7*65536}"); a.e("s_add_u32 s39, s39, s21"); a.e(f"s_add_u32 s39, s39, {c.NS*2048}")
    def off(a): flag_off(a, FL_W, 5, None)
    def lfin(a):
        if c.ksplit: a.e("s_barrier")
        a.e("s_barrier")
    r, cc = prolog(aL, a, name, c, P_WSP, 8*MB, 0, 36, ZB, WS_Z2, KI, pre=lpre, extra=(9, lextra), lfin=lfin,
                   mega=dict(indep='T', indf=SPF, mid=P0, cpoll=cpoll(name, off, 1), lastbar=lambda a: guard_check(a, a.newlabel(name + '_g')), touch=dict(setup=tsetup, D=TD, t=[4096*i for i in range(4)], f=[65536*i for i in range(7)]) if 's' in TOUCH else None))
    srd(a, 40, 36, ZB, WS_U)
    f = r.free
    vZ, vB, vo, vz, vb = f, f+28, f+30, f+31, f+32
    a.e("s_lshl_b32 s56, s4, 7"); a.e("s_lshl_b32 s20, s6, 6"); a.e("s_add_u32 s56, s56, s20")
    a.e("s_lshl_b32 s20, s7, 5"); a.e("s_add_u32 s56, s56, s20")
    a.e("s_lshr_b32 s57, s56, 4"); a.e("s_mul_i32 s57, s57, 224"); a.e("s_mul_i32 s20, s5, 14")
    a.e("s_add_u32 s57, s57, s20"); a.e("s_lshl_b32 s57, s57, 8"); a.e(f"s_add_u32 s58, s57, {224*256}")
    a.e("v_and_b32 v2, 15, v1"); a.e(f"v_lshlrev_b32 v{vz}, 4, v2")
    a.e("v_bfe_u32 v3, v1, 4, 1"); a.e(f"v_lshl_add_u32 v{vz}, v3, 3, v{vz}")
    a.e("v_lshrrev_b32 v3, 5, v1"); a.e(f"v_lshl_add_u32 v{vz}, v3, 8, v{vz}")
    a.e("s_lshl_b32 s20, s6, 2"); a.e("s_lshl_b32 s21, s7, 1"); a.e("s_add_u32 s20, s20, s21")
    a.e("s_mul_i32 s21, s20, 3584"); a.e(f"s_add_u32 s21, s21, {EB}"); a.e(f"v_add_u32 v{vz}, s21, v{vz}")
    a.e("s_lshl_b32 s20, s20, 5"); a.e(f"s_add_u32 s20, s20, {EB + 28672}"); a.e(f"v_lshl_add_u32 v{vb}, v2, 1, s20")
    lane_chunk_off(a, vo, 224)
    a.e("s_setprio 1")
    compute_loop(a, c, r)
    mstamp(a, 3*KI + 1)
    for i in range(2):
        for j in range(7):
            a.e(f"ds_read_b64 {vr(vZ+(i*7+j)*2,2)}, v{vz} offset:{3584*i + 512*j}")
    a.e("s_waitcnt lgkmcnt(8)")
    for i in range(2): a.e(f"ds_read_u16 v{vB+i}, v{vb} offset:{32*i}")
    ksplit_reduce(a, c, r)
    for i in range(2): a.e(f"v_lshlrev_b32 v{vB+i}, 16, v{vB+i}")
    for i in range(2):
        for j in range(7):
            x = r.acc + (i*7+j)*4; s = vZ + (i*7+j)*2
            for h in range(2):
                unpack(a, 2, 3, s+h)
                a.e(f"v_pk_add_f32 {vr(x+2*h,2)}, {vr(x+2*h,2)}, {vr(vB,2)} op_sel:[0,{i}] op_sel_hi:[1,{i}]")
                a.e(f"v_pk_mul_f32 {vr(x+2*h,2)}, {vr(x+2*h,2)}, v[2:3]")
    items = [(r.acc + j*4, r.acc + (7+j)*4, [],
              (lambda t, j=j: f"buffer_store_dwordx4 {vr(t,4)}, v{vo}, s[40:43], s57 offen offset:{512*j}{STF}")) for j in range(7)]
    store_pairs(a, items, r.T[0], 8)
    def so(a):
        a.e("s_mov_b32 s21, s5")
        flag_off(a, FL_U, 4, 21)
    fin(a, KI, so)
    return f + 33

def k_wout(aL, a, name):
    KI = 6
    c = GemmCfg('woutL', 64, 4, 1792, 6, '2x2s' if 'o' in NOKS else 'ksplitF', 'frag', 'frag', xm=XO, xn=32//XO, MT=32, NT=8)
    ZB = 2048*1792*2
    EB = ((c.nk - c.NS) % c.NS)*c.stage
    def lpre(a):
        srd(a, 40, 36, 24576); srd(a, 48, 36, 4*MB, WS_X1)
        a.e("s_lshl_b32 s20, s4, 2"); a.e("s_add_u32 s20, s20, s3"); a.e("s_lshl_b32 s20, s20, 15")
        a.e("s_lshl_b32 s21, s5, 12"); a.e("s_add_u32 s20, s20, s21"); a.e("v_lshl_add_u32 v40, v1, 4, s20")
        a.e("s_lshl_b32 s21, s5, 9"); a.e(f"s_add_u32 s21, s21, {5*4096}"); a.e("v_lshl_add_u32 v44, v1, 4, s21")
    def lextra(a):
        a.e("s_lshl_b32 s20, s3, 12"); a.e(f"s_add_u32 m0, s20, {EB}"); a.e("s_nop 0")
        for t in range(4):
            a.e(f"buffer_load_dwordx4 v40, s[48:51], 0 offen offset:{1024*t} sc1 lds")
        a.e("buffer_load_dwordx4 v[48:51], v44, s[40:43], 0 offen sc1")
    def lastbar(a):
        for k in range(4): rnd_bf16(a, 48+k, 48+k)
        a.e(f"v_lshlrev_b32 v2, 4, v1"); a.e(f"v_add_u32 v2, {EB + 16384}, v2")
        a.e("ds_write_b128 v2, v[48:51]"); a.e("s_waitcnt lgkmcnt(0)")
    def off(a): a.e("s_lshr_b32 s20, s4, 1"); flag_off(a, FL_U, 20, None)
    r, cc = prolog(aL, a, name, c, 36, ZB, WS_U, 36, 1792*2048, WS_WOUT, KI, pre=lpre, extra=(5, lextra),
                   mega=dict(indep='F', indf=' sc1', mid=P0, cpoll=cpoll(name, off, 1), lastbar=lastbar, touch=touch_ws(c, WS_U, WS_WOUT) if 'o' in TOUCH else None))
    srd(a, 24, P_OUT, 4*MB)
    f = r.free
    vX, vG, vo, vx, vm = f, f+16, f+32, f+33, f+34
    a.e("s_lshl_b32 s56, s4, 6"); a.e("s_lshl_b32 s20, s7, 5"); a.e("s_add_u32 s56, s56, s20")
    a.e("s_lshl_b32 s57, s5, 7"); a.e("s_lshl_b32 s20, s6, 6"); a.e("s_add_u32 s57, s57, s20")
    a.e("s_lshl_b32 s62, s56, 11"); a.e("s_lshl_b32 s20, s57, 5"); a.e("s_add_u32 s60, s62, s20"); a.e("s_add_u32 s61, s60, 32768")
    a.e("s_lshl_b32 s20, s57, 1"); a.e("s_add_u32 s62, s62, s20"); a.e("s_add_u32 s63, s62, 32768")
    a.e("v_and_b32 v2, 15, v1"); a.e(f"v_lshlrev_b32 v{vx}, 4, v2")
    a.e("v_bfe_u32 v3, v1, 4, 1"); a.e(f"v_lshl_add_u32 v{vx}, v3, 3, v{vx}")
    a.e(f"v_lshlrev_b32 v{vo}, 11, v2"); a.e(f"v_lshl_add_u32 v{vo}, v3, 5, v{vo}")
    a.e("v_lshrrev_b32 v3, 5, v1"); a.e(f"v_lshl_add_u32 v{vx}, v3, 8, v{vx}"); a.e(f"v_lshl_add_u32 v{vo}, v3, 4, v{vo}")
    a.e("s_lshl_b32 s20, s7, 13"); a.e("s_lshl_b32 s21, s6, 11"); a.e("s_add_u32 s20, s20, s21"); a.e(f"s_add_u32 s20, s20, {EB}")
    a.e(f"v_add_u32 v{vx}, s20, v{vx}")
    a.e("v_lshrrev_b32 v3, 4, v1"); a.e("s_lshl_b32 s20, s6, 8"); a.e(f"s_add_u32 s20, s20, {EB + 16384}"); a.e(f"v_lshl_add_u32 v{vm}, v3, 4, s20")
    a.e("s_setprio 1")
    compute_loop(a, c, r)
    mstamp(a, 3*KI + 1)
    for i in range(2):
        for j in range(4):
            a.e(f"ds_read_b64 {vr(vX+(i*4+j)*2,2)}, v{vx} offset:{4096*i + 512*j}")
    for j in range(4):
        a.e(f"ds_read_b128 {vr(vG+4*j,4)}, v{vm} offset:{64*j}")
    ksplit_reduce(a, c, r)
    for i in range(2):
        for j in range(4):
            x = r.acc + (i*4+j)*4; s = vX + (i*4+j)*2
            for h in range(2):
                unpack(a, 2, 3, s+h)
                a.e(f"v_pk_fma_f32 {vr(x+2*h,2)}, {vr(x+2*h,2)}, {vr(vG+4*j+2*h,2)}, v[2:3]")
    items = []
    for i in range(2):
        for jp in range(2):
            items.append((r.acc + (i*4+2*jp)*4, r.acc + (i*4+2*jp+1)*4, [],
                          (lambda t, i=i, jp=jp: f"buffer_store_dwordx4 {vr(t,4)}, v{vo}, s[24:27], s{62+i} offen offset:{64*jp}{FINF}")))
    store_pairs(a, items, r.T[0])
    if STAMPS: a.e("s_waitcnt vmcnt(0)")
    fin(a, KI, None)
    return f + 35
```
